```python
import torch

def _softmax(x, axis=-1):
    return torch.softmax(x, dim=axis)

def _gelu(x):
    return torch.nn.functional.gelu(x, approximate='tanh')

def _silu(x):
    return torch.nn.functional.silu(x)

def _sigmoid(x):
    return torch.sigmoid(x)

def _layernorm(x, axis=-1, eps=1e-05):
    m = x.mean(dim=axis, keepdim=True)
    v = x.var(dim=axis, keepdim=True, unbiased=False)
    return (x - m) / torch.sqrt(v + eps)

def _scatter_add(tgt, idx, src, axis=0):
    return tgt.clone().index_add_(axis, idx, src)

def _segment_sum(src, seg, n):
    out = torch.zeros((n,) + src.shape[1:], dtype=src.dtype)
    return out.index_add_(0, seg, src)

def _pad(x, pw):
    flat = tuple((v for pair in reversed(pw) for v in pair))
    return torch.nn.functional.pad(x, flat)
kernel_name = 'adaLN_cond__spectral_fnet__mixer_gmlp__prompt'

def setup_inputs():

    _w = lambda a: (lambda t: t.to(torch.bfloat16) if t.is_floating_point() else t)(torch.as_tensor(a))

    def _A_setup():
        B, S, D = (1, 2048, 640)
        ns = torch.arange(S)[:, None] * torch.arange(S)[None, :]
        nd = torch.arange(D)[:, None] * torch.arange(D)[None, :]
        Ws_re = torch.cos(-2.0 * torch.pi * ns / S).to(float)
        Ws_im = torch.sin(-2.0 * torch.pi * ns / S).to(float)
        Wd_re = torch.cos(-2.0 * torch.pi * nd / D).to(float)
        Wd_im = torch.sin(-2.0 * torch.pi * nd / D).to(float)
        return {'x': _w((lambda *s: torch.randn(*s, dtype=torch.bfloat16) * 0.1)(B, S, D)), 'dft_seq_re': _w(Ws_re), 'dft_seq_im': _w(Ws_im), 'dft_hid_re': _w(Wd_re), 'dft_hid_im': _w(Wd_im)}
    _A_in = _A_setup()

    def _B_setup():
        B, S, D, F = (1, 2048, 640, 1728)
        Fh = F // 2
        return {'x': _w((lambda *s: torch.randn(*s, dtype=torch.bfloat16) * 0.1)(B, S, D)), 'w_in': _w((lambda *s: torch.randn(*s, dtype=torch.bfloat16) * 3.2)(D, 2 * Fh)), 'w_sp': _w(0.01 * (lambda *s: torch.randn(*s, dtype=torch.bfloat16) * 3.2)(S, S)), 'b_sp': _w(1.0 + 0.01 * (lambda *s: torch.randn(*s, dtype=torch.bfloat16) * 1.6)(S)), 'w_out': _w((lambda *s: torch.randn(*s, dtype=torch.bfloat16) * 1.6)(Fh, D))}
    _B_in = _B_setup()
    return {'A_x': _A_in['x'], 'A_dft_seq_re': _A_in['dft_seq_re'], 'A_dft_seq_im': _A_in['dft_seq_im'], 'A_dft_hid_re': _A_in['dft_hid_re'], 'A_dft_hid_im': _A_in['dft_hid_im'], 'B_x': _B_in['x'], 'B_w_in': _B_in['w_in'], 'B_w_sp': _B_in['w_sp'], 'B_b_sp': _B_in['b_sp'], 'B_w_out': _B_in['w_out'], 'c': _w((lambda *s: torch.randn(*s, dtype=torch.bfloat16) * 0.2)(1, 640) * 8.0), 'w_mod': _w((lambda *s: torch.randn(*s, dtype=torch.bfloat16) * 0.2)(640, 6 * 640) * 640 ** (-0.5) * 8.0)}

def reference(A_x, A_dft_seq_re, A_dft_seq_im, A_dft_hid_re, A_dft_hid_im, B_x, B_w_in, B_w_sp, B_b_sp, B_w_out, c, w_mod):

    def _A_ref(x, dft_seq_re, dft_seq_im, dft_hid_re, dft_hid_im):
        a = torch.einsum('bsd,ed->bse', x, dft_hid_re)
        b = torch.einsum('bsd,ed->bse', x, dft_hid_im)
        y = torch.einsum('ts,bse->bte', dft_seq_re, a) - torch.einsum('ts,bse->bte', dft_seq_im, b)
        return y

    def _B_ref(x, w_in, w_sp, b_sp, w_out):
        B, S, D = x.shape
        F = w_in.shape[-1]
        Fh = F // 2
        z = _gelu(torch.einsum('bsd,df->bsf', x, w_in))
        z1 = z[..., :Fh].clone()
        z2 = _layernorm(z[..., Fh:], axis=-1)
        g = torch.einsum('ts,bsf->btf', w_sp, z2) + b_sp[None, :, None]
        return torch.einsum('bsf,fd->bsd', z1 * g, w_out)
    x = A_x
    mod = (_silu(c) @ w_mod).reshape(c.shape[0], 6, 1, -1)
    sa, ca, ga, sb, cb, gb = (mod[:, 0].clone(), mod[:, 1].clone(), mod[:, 2].clone(), mod[:, 3].clone(), mod[:, 4].clone(), mod[:, 5].clone())
    h = _layernorm(x, axis=-1) * (1 + ca) + sa
    x = x + ga * _A_ref(h, A_dft_seq_re, A_dft_seq_im, A_dft_hid_re, A_dft_hid_im)
    h = _layernorm(x, axis=-1) * (1 + cb) + sb
    x = x + gb * _B_ref(h, B_w_in, B_w_sp, B_b_sp, B_w_out)
    return x
```

```python
import re

TRANS = ("v_exp_f32", "v_log_f32", "v_rcp_f32", "v_rsq_f32", "v_sqrt_f32", "v_sin_f32", "v_cos_f32")
_reg_re = re.compile(r"^(-|\|)?(v|a|s)(\d+|\[(\d+):(\d+)\])\|?$")


def regs_of(tok):
    tok = tok.strip()
    m = re.match(r"^(?:neg|abs)\((.*)\)$", tok)
    if m:
        tok = m.group(1)
    tok = tok.lstrip("-").strip("|")
    if tok == "vcc":
        return {("s", 106), ("s", 107)}
    if tok == "vcc_lo":
        return {("s", 106)}
    if tok == "exec":
        return {("s", 126), ("s", 127)}
    if tok == "m0":
        return {("s", 124)}
    m = _reg_re.match(tok)
    if not m:
        return set()
    f = m.group(2)
    if m.group(4) is not None:
        return {(f, i) for i in range(int(m.group(4)), int(m.group(5)) + 1)}
    return {(f, int(m.group(3)))}


class Ins:
    def __init__(self, text):
        self.text = text
        t = text.split(";")[0].strip()
        self.is_label = t.endswith(":")
        self.is_dir = t.startswith(".")
        self.op = t.split()[0] if t else ""
        rest = t[len(self.op):].strip()
        ops = [o.strip() for o in rest.split(",")] if rest else []
        last_mods = ""
        if ops:
            parts = ops[-1].split()
            ops[-1] = parts[0] if parts else ""
            last_mods = " ".join(parts[1:])
        self.ops = ops
        self.mods = last_mods
        op = self.op
        self.reads, self.writes = set(), set()
        self.cls = "other"
        if self.is_label or self.is_dir or not op:
            self.cls = "none"
            return
        R = [regs_of(o) for o in ops]
        if op.startswith("v_mfma"):
            self.cls = "mfma"
            self.writes = R[0]
            self.srcA, self.srcB, self.srcC = R[1], R[2], R[3]
            self.reads = R[1] | R[2] | R[3]
            self.passes = 8 if "32x32" in op else 4
        elif op.startswith("v_cmp"):
            self.cls = "valu"
            self.writes = R[0]
            self.reads = set().union(*R[1:])
            if op.startswith("v_cmpx"):
                self.writes = self.writes | regs_of("exec")
        elif op.startswith("v_readfirstlane") or op.startswith("v_readlane"):
            self.cls = "valu"
            self.writes = R[0]
            self.reads = set().union(*R[1:])
            self.lane_read = True
        elif op.startswith("v_permlane") and "swap" in op:
            self.cls = "valu"
            self.writes = R[0] | R[1]
            self.reads = R[0] | R[1]
            self.permlane = True
        elif op.startswith("v_"):
            self.cls = "valu"
            self.writes = R[0]
            srcs = R[1:]
            if op.startswith(("v_add_co", "v_sub_co", "v_addc_co", "v_subb_co")):
                self.writes = R[0] | R[1]
                srcs = R[2:]
            self.reads = set().union(*srcs) if srcs else set()
            if op.startswith(("v_fmac", "v_dot2c", "v_pk_fmac")):
                self.reads |= R[0]
            if op.startswith("v_cndmask") and len(ops) == 3:
                self.reads |= regs_of("vcc")
            if "dpp" in op or "row_" in last_mods or "quad_perm" in last_mods:
                self.dpp = True
                self.reads |= R[0]
            if op.split("_e")[0] in TRANS or op in TRANS:
                self.trans = True
        elif op.startswith("ds_"):
            self.cls = "ds"
            if op.startswith(("ds_read", "ds_bpermute", "ds_permute", "ds_swizzle")):
                self.writes = R[0]
                self.reads = set().union(*R[1:])
            else:
                self.reads = set().union(*R)
        elif op.startswith(("buffer_", "global_")):
            self.cls = "vmem"
            if op in ("buffer_wbl2", "buffer_inv"):
                return
            lds = " lds" in (" " + last_mods) or "_lds_" in op
            if "load" in op and not lds:
                self.writes = R[0]
                self.reads = set().union(*R[1:])
            else:
                self.reads = set().union(*R)
                if lds:
                    self.reads |= regs_of("m0")
                    self.lds_dma = True
                if ("store" in op or "atomic" in op) and ("x3" in op or "x4" in op):
                    self.wide_store = R[0] if op.startswith("buffer_") else R[1]
        elif op.startswith("s_"):
            self.cls = "salu"
            if op.startswith(("s_nop", "s_waitcnt", "s_barrier", "s_endpgm", "s_branch", "s_cbranch", "s_setprio", "s_sleep")):
                return
            if op.startswith("s_cmp"):
                self.reads = set().union(*R) if R else set()
                return
            self.writes = R[0] if R else set()
            self.reads = set().union(*R[1:]) if len(R) > 1 else set()
            if "saveexec" in op:
                self.writes = self.writes | regs_of("exec")

    def g(self, name):
        return getattr(self, name, None)

    def states(self):
        if self.cls == "none":
            return 0
        if self.op == "s_nop":
            return int(self.ops[0], 0) + 1
        return 1


def vec(rs):
    return {r for r in rs if r[0] in "va"}


def sc(rs):
    return {r for r in rs if r[0] == "s"}


def need(p, c):
    n = 0
    if p.cls == "valu":
        vw, sw = vec(p.writes), sc(p.writes)
        if c.cls == "mfma" and vw & c.reads:
            n = max(n, 2)
        if c.cls == "valu":
            if c.g("dpp") and vw & c.reads:
                n = max(n, 2)
            if c.g("permlane") and vw & c.reads:
                n = max(n, 2)
            if c.g("lane_read") and vw & c.reads:
                n = max(n, 1)
            if p.g("trans") and not c.g("trans") and vw & c.reads:
                n = max(n, 1)
            if p.g("trans") and c.g("trans") and vw & c.reads:
                n = max(n, 1)
            if sw & c.reads:
                n = max(n, 4 if c.g("lane_read") else 2)
            if ("s", 126) in sw and (c.g("dpp") or c.g("permlane") or c.g("lane_read")):
                n = max(n, 5)
        if c.cls == "mfma" and ("s", 126) in sw:
            n = max(n, 4)
        if c.cls == "vmem" and sw & c.reads:
            n = max(n, 5)
        if c.cls == "salu" and sw & c.reads:
            n = max(n, 2)
        if p.g("trans") and c.cls in ("ds", "vmem") and vw & c.reads:
            n = max(n, 1)
    if p.cls == "salu" and ("s", 124) in p.writes and c.g("lds_dma"):
        n = max(n, 1)
    if p.cls == "mfma":
        D = p.writes
        big = p.passes == 8
        if c.cls == "mfma":
            if D & (c.srcA | c.srcB):
                n = max(n, 12 if big else 8)
            if D & c.srcC and not (D == c.srcC and c.passes == p.passes):
                n = max(n, 10 if big else 6)
            if D & c.writes and not (D == c.writes and D == c.srcC):
                n = max(n, 12 if big else 8)
        elif c.cls in ("valu", "ds", "vmem"):
            if D & (c.reads | c.writes):
                n = max(n, 12 if big else 8)
            if c.cls == "valu" and p.srcC & c.writes:
                n = max(n, 7 if big else 3)
    if p.g("wide_store") and (p.wide_store & c.writes):
        n = max(n, 2)
    return n


def pad(lines):
    out = []
    hist = []
    for text in lines:
        for t in text.split("\n"):
            ins = Ins(t)
            if ins.cls == "none":
                out.append(t)
                continue
            dist = 0
            short = 0
            for p in reversed(hist):
                if dist >= 20:
                    break
                k = need(p, ins) - dist
                if k > short:
                    short = k
                dist += p.states()
            if short > 0:
                nop = Ins(f"  s_nop {short - 1}")
                out.append(nop.text)
                hist.append(nop)
            out.append(t)
            hist.append(ins)
            if len(hist) > 64:
                hist = hist[-40:]
    return out


class Kern:
    def __init__(self, name, grid, block, lds, vgpr, agpr=0, sgpr=96):
        self.name, self.grid, self.block, self.lds = name, grid, block, lds
        self.vgpr, self.agpr, self.sgpr = vgpr, agpr, sgpr
        self.L = []

    def e(self, s):
        for t in s.split("\n"):
            t = t.strip()
            if not t:
                continue
            self.L.append(t if t.endswith(":") else "  " + t)

    def lab(self, s):
        return f"L{self.name[:-7]}_{s}"

    def launch_line(self):
        return f"; @launch kernel={self.name} grid=({self.grid},1,1) block=({self.block},1,1) lds={self.lds}"

    def text(self):
        head = [f".globl {self.name}", ".p2align 8", f".type {self.name},@function", f"{self.name}:"]
        return "\n".join(head + pad(self.L))

    def desc(self):
        acc = (self.vgpr + 3) // 4 * 4
        nfv = acc + self.agpr if self.agpr else self.vgpr
        return f""".p2align 6
.amdhsa_kernel {self.name}
  .amdhsa_next_free_vgpr {nfv}
  .amdhsa_next_free_sgpr {self.sgpr}
  .amdhsa_accum_offset {acc}
  .amdhsa_group_segment_fixed_size 0
  .amdhsa_kernarg_size 120
  .amdhsa_user_sgpr_count 2
  .amdhsa_user_sgpr_kernarg_segment_ptr 1
  .amdhsa_system_sgpr_workgroup_id_x 1
.end_amdhsa_kernel
"""


def vr(a, n=1, f="v"):
    return f"{f}{a}" if n == 1 else f"{f}[{a}:{a + n - 1}]"


def ar(a, n=1):
    return vr(a, n, "a")


def sr(a, n=1):
    return vr(a, n, "s")


def f2u(x):
    import struct
    return struct.unpack("<I", struct.pack("<f", x))[0]


def fhex(x):
    return f"0x{f2u(x):08x}"
```

```python
from asmlib import *

S, D, F, FH = 2048, 640, 1728, 864
WS_MOD, SZ_MOD = 0x000000, 6 * 640 * 4
WS_STATS, SZ_STATS = 0x004000, 2048 * 8
WS_V, SZ_V = 0x100000, 2048 * 1280
WS_X1, SZ_X1 = 0x380000, 2048 * 1280
WS_H2, SZ_H2 = 0x600000, 2048 * 1280
WS_Z1P, SZ_Z1P = 0x880000, 64 * 8 * 7 * 1024
WS_Z2P, SZ_Z2P = 0xC00000, 64 * 8 * 7 * 1024
WS_A5P, SZ_A5P = 0xF80000, 128 * 28 * 1024
WS_WINP, SZ_WINP = 0x1300000, 16 * 20 * 7 * 1024
WS_WOUTP, SZ_WOUTP = 0x1530000, 8 * 28 * 5 * 1024
WS_TS = 0x1800000

KA_X, KA_WIN, KA_WSP, KA_BSP, KA_WOUT, KA_C, KA_WMOD, KA_OUT, KA_DBG, KA_WS = 0, 48, 56, 64, 72, 80, 88, 96, 104, 112


def srd(k, s, ptr, off, size):
    if off:
        k.e(f"s_add_u32 s{s}, s{ptr}, 0x{off:x}")
        k.e(f"s_addc_u32 s{s+1}, s{ptr+1}, 0")
    else:
        k.e(f"s_mov_b32 s{s}, s{ptr}")
        k.e(f"s_mov_b32 s{s+1}, s{ptr+1}")
    k.e(f"s_mov_b32 s{s+2}, 0x{size:x}")
    k.e(f"s_mov_b32 s{s+3}, 0x20000")


def fbase(kappa, h):
    p, q = divmod(kappa, 7)
    if q < 3:
        return 216 * p + 32 * q + 16 * h
    if q < 6:
        return 216 * p + 112 + 32 * (q - 3) + 16 * h
    return 216 * p + (96 if h == 0 else 208)


def colstart(nb):
    return 216 * (nb // 2) + 112 * (nb % 2)


def dma_rows1280_addr(k, vlane, vdst, tmp, rowstride):
    for n in range(5):
        C, row, ch = tmp, tmp + 1, tmp + 2
        k.e(f"v_add_u32 v{C}, {64*n}, v{vlane}")
        k.e(f"v_mul_u32_u24 v{row}, 205, v{C}")
        k.e(f"v_lshrrev_b32 v{row}, 14, v{row}")
        k.e(f"v_mul_u32_u24 v{ch}, 80, v{row}")
        k.e(f"v_sub_u32 v{ch}, v{C}, v{ch}")
        k.e(f"v_lshlrev_b32 v{C}, 1, v{row}")
        k.e(f"v_xor_b32 v{ch}, v{ch}, v{C}")
        k.e(f"v_lshlrev_b32 v{ch}, 4, v{ch}")
        k.e(f"v_mul_u32_u24 v{row}, {rowstride}, v{row}")
        k.e(f"v_add_u32 v{vdst+n}, v{row}, v{ch}")


def dma_rows1280_issue(k, vaddr, srd_s, s_goff, s_lds, s_tmp, rowstride):
    for half in range(2):
        if half == 1:
            for n in range(5):
                k.e(f"v_xor_b32 v{vaddr+n}, 128, v{vaddr+n}")
            k.e(f"s_add_u32 s{s_tmp}, s{s_goff}, {4*rowstride}")
        so = s_goff if half == 0 else s_tmp
        for n in range(5):
            k.e(f"s_add_u32 m0, s{s_lds}, {(half*5+n)*1024}")
            k.e(f"buffer_load_dwordx4 v{vaddr+n}, s[{srd_s}:{srd_s+3}], s{so} offen lds")


def stamp(k, which, ws_ptr_s, kidx, stmp, vtmp):
    a = stmp
    k.e(f"s_memrealtime s[{a}:{a+1}]")
    srd(k, a + 4, ws_ptr_s, WS_TS, 0x10000)
    k.e(f"s_lshl_b32 s{a+2}, s2, 3")
    k.e(f"s_add_u32 s{a+2}, s{a+2}, {kidx*4096 + which*4}")
    k.e("s_waitcnt lgkmcnt(0)")
    k.e(f"v_mov_b32 v{vtmp}, s{a}")
    k.e(f"v_mov_b32 v{vtmp+1}, s{a+2}")
    k.e(f"buffer_store_dword v{vtmp}, v{vtmp+1}, s[{a+4}:{a+7}], 0 offen")
```

```python
from common import *


def build(diag=False):
    k = Kern("p1_kernel", 256, 512, 112 * 1024, vgpr=128, sgpr=64)
    e = k.e
    L = k.lab
    e(f"s_cmp_ge_u32 s2, 255\ns_cbranch_scc1 {L('end')}")
    e(f"s_load_dwordx2 s[4:5], s[0:1], {KA_X}")
    e(f"s_load_dwordx2 s[6:7], s[0:1], {KA_WIN}")
    e(f"s_load_dwordx2 s[8:9], s[0:1], {KA_WOUT}")
    e(f"s_load_dwordx4 s[12:15], s[0:1], {KA_C}")
    e(f"s_load_dwordx2 s[10:11], s[0:1], {KA_WS}")
    e("v_and_b32 v1, 63, v0")
    e("v_lshrrev_b32 v2, 6, v0")
    e("v_readfirstlane_b32 s3, v2")
    e(f"s_cmp_ge_u32 s2, 160\ns_cbranch_scc1 {L('notfft')}")

    TB = 0
    OT = 512
    XL = 16896
    e("s_and_b32 s16, s2, 7\ns_lshr_b32 s17, s2, 3")
    e("s_mul_i32 s18, s17, 205\ns_lshr_b32 s18, s18, 10")
    e("s_mul_i32 s19, s18, 5\ns_sub_u32 s19, s17, s19")
    e("s_lshl_b32 s16, s16, 2\ns_add_u32 s18, s16, s18")
    dma_rows1280_addr(k, 1, 4, 10, 40960)
    e("s_mul_i32 s20, s18, 1280")
    e(f"s_mul_i32 s21, s3, {8*40960}\ns_add_u32 s20, s20, s21")
    e(f"s_mul_i32 s21, s3, 10240\ns_add_u32 s21, s21, {XL}")
    e("s_waitcnt lgkmcnt(0)")
    if diag:
        stamp(k, 0, 10, 0, 40, 100)
    srd(k, 24, 4, 0, S * 1280)
    dma_rows1280_issue(k, 4, 24, 20, 21, 22, 40960)
    srd(k, 28, 10, WS_V, SZ_V)
    e("v_and_b32 v10, 15, v1\nv_lshrrev_b32 v11, 4, v1")
    e("s_lshr_b32 s23, s3, 2\ns_lshl_b32 s23, s23, 4")
    e("v_add_u32 v12, s23, v10")
    e("v_cmp_eq_u32 vcc, 0, v12")
    e("v_cvt_f32_u32 v13, v12")
    e(f"v_mul_f32 v13, {fhex(1/64)}, v13")
    e("v_mov_b32 v14, 0.5")
    e("v_cndmask_b32 v14, v13, v14, vcc")
    e(f"v_mov_b32 v15, {fhex(0.25)}")
    e("v_cndmask_b32 v15, v15, 0, vcc")
    e("v_lshlrev_b32 v16, 2, v11\nv_cvt_f32_u32 v16, v16")
    e("v_mul_f32 v17, v13, v16")
    e("v_fma_f32 v18, v14, v16, v15")
    RE, IM = 32, 48
    for ks in range(2):
        for jj in range(8):
            c = 32 * ks + (jj % 4) + 16 * (jj // 4)
            i = 8 * ks + jj
            e(f"v_fmamk_f32 v{RE+i}, v13, {fhex(c)}, v17")
            e(f"v_fmamk_f32 v{IM+i}, v14, {fhex(c)}, v18")
    for i in range(16):
        e(f"v_cos_f32 v{RE+i}, v{RE+i}")
        e(f"v_cos_f32 v{IM+i}, v{IM+i}")
    e("v_lshrrev_b32 v20, 3, v1\nv_and_b32 v21, 7, v1")
    e("v_bfe_u32 v22, v20, 1, 1\nv_lshlrev_b32 v22, 3, v22")
    e("v_add_u32 v22, v22, v21\nv_lshlrev_b32 v22, 4, v22")
    e("v_mul_u32_u24 v23, 1280, v20\nv_add_u32 v22, v22, v23")
    e("v_add_u32 v22, s21, v22")
    e("v_xor_b32 v23, 128, v22")
    e("v_mov_b32 v24, 0x3f803f80")
    for i in range(4):
        e(f"v_mov_b32 v{26+i}, 0")
    e("s_waitcnt vmcnt(0)")
    for i in range(10):
        e(f"ds_read_b128 v[{64+4*i}:{67+4*i}], v{22 + i % 2} offset:{256*(i//2)}")
    for i in range(10):
        e(f"s_waitcnt lgkmcnt({9-i})")
        for d in range(4):
            r = 64 + 4 * i + d
            e(f"v_dot2_f32_bf16 v{26 + d % 2}, v{r}, v24, v{26 + d % 2}")
            e(f"v_dot2_f32_bf16 v{28 + d % 2}, v{r}, v{r}, v{28 + d % 2}")
    e("s_nop 2")
    e("v_add_f32 v26, v26, v27\nv_add_f32 v28, v28, v29")
    for m in ("quad_perm:[1,0,3,2]", "quad_perm:[2,3,0,1]", "row_half_mirror"):
        e(f"v_add_f32_dpp v26, v26, v26 {m} row_mask:0xf bank_mask:0xf")
        e(f"v_add_f32_dpp v28, v28, v28 {m} row_mask:0xf bank_mask:0xf")
    e(f"v_mul_f32 v26, {fhex(1/640)}, v26")
    e(f"v_mul_f32 v28, {fhex(1/640)}, v28")
    e("v_fma_f32 v28, -v26, v26, v28")
    e(f"v_add_f32 v28, {fhex(1e-5)}, v28")
    e("v_rsq_f32 v28, v28")
    e("v_sub_f32 v26, 0, v26")
    e("v_cvt_pk_bf16_f32 v26, v26, v26")
    e("s_lshl_b32 s22, s3, 3")
    e("v_add_u32 v20, s22, v20")
    e("v_lshlrev_b32 v21, 2, v20\nv_lshlrev_b32 v20, 1, v20")
    e(f"ds_write_b32 v21, v28 offset:{TB}")
    e(f"ds_write_b16 v20, v26 offset:{TB+256}")
    e("v_bfe_u32 v20, v1, 2, 2\nv_and_b32 v21, 3, v1")
    e("v_lshl_add_u32 v20, v11, 2, v20")
    e("s_and_b32 s22, s3, 3\ns_lshl_b32 s22, s22, 2")
    e("s_lshl_b32 s23, s19, 4\ns_add_u32 s22, s22, s23")
    e("v_add_u32 v21, s22, v21")
    e("v_and_b32 v22, 7, v20\nv_lshlrev_b32 v22, 1, v22")
    e("v_xor_b32 v21, v21, v22\nv_lshlrev_b32 v21, 4, v21")
    e(f"v_mul_u32_u24 v20, 1280, v20\nv_add_u32 v21, {XL}, v21\nv_add_u32 v20, v20, v21")
    e("v_lshlrev_b32 v21, 4, v11\nv_lshlrev_b32 v22, 3, v11")
    e("s_waitcnt lgkmcnt(0)\ns_barrier")
    RT, MF, DA = 64, 80, 88
    for ks in range(2):
        for h in range(2):
            e(f"ds_read_b128 v[{RT+8*ks+4*h}:{RT+8*ks+4*h+3}], v21 offset:{TB + (32*ks+16*h)*4}")
    for ks in range(2):
        for h in range(2):
            e(f"ds_read_b64 v[{MF+4*ks+2*h}:{MF+4*ks+2*h+1}], v22 offset:{TB + 256 + (32*ks+16*h)*2}")
    for u in range(2):
        for ks in range(2):
            for h in range(2):
                b = DA + 8 * u + 4 * ks + 2 * h
                e(f"ds_read_b64_tr_b16 v[{b}:{b+1}], v20 offset:{8*u + (32*ks+16*h)*1280}")
    e("s_waitcnt lgkmcnt(12)")
    for i in range(16):
        e(f"v_mul_f32 v{RE+i}, v{RE+i}, v{RT+i}")
        e(f"v_mul_f32 v{IM+i}, v{IM+i}, v{RT+i}")
    FR, FI = 104, 112
    for i in range(8):
        e(f"v_cvt_pk_bf16_f32 v{FR+i}, v{RE+2*i}, v{RE+2*i+1}")
        e(f"v_cvt_pk_bf16_f32 v{FI+i}, v{IM+2*i}, v{IM+2*i+1}")
    e("s_waitcnt lgkmcnt(8)")
    KR, KI = 120, 124
    e(f"v_mfma_f32_16x16x32_bf16 v[{KR}:{KR+3}], v[{MF}:{MF+3}], v[{FR}:{FR+3}], 0")
    e(f"v_mfma_f32_16x16x32_bf16 v[{KI}:{KI+3}], v[{MF}:{MF+3}], v[{FI}:{FI+3}], 0")
    e(f"v_mfma_f32_16x16x32_bf16 v[{KR}:{KR+3}], v[{MF+4}:{MF+7}], v[{FR+4}:{FR+7}], v[{KR}:{KR+3}]")
    e(f"v_mfma_f32_16x16x32_bf16 v[{KI}:{KI+3}], v[{MF+4}:{MF+7}], v[{FI+4}:{FI+7}], v[{KI}:{KI+3}]")
    e("s_waitcnt lgkmcnt(0)")
    AC = 32
    for ks in range(2):
        for u in range(2):
            for c, (fm, kk) in enumerate(((FR, KR), (FI, KI))):
                a = AC + 8 * c + 4 * u
                src = f"v[{kk}:{kk+3}]" if ks == 0 else f"v[{a}:{a+3}]"
                d = DA + 8 * u + 4 * ks
                e(f"v_mfma_f32_16x16x32_bf16 v[{a}:{a+3}], v[{d}:{d+3}], v[{fm+4*ks}:{fm+4*ks+3}], {src}")
    e("v_and_b32 v20, 7, v12\nv_lshlrev_b32 v20, 1, v20")
    e("s_and_b32 s22, s3, 3\ns_lshl_b32 s22, s22, 2")
    e("v_add_u32 v21, s22, v11\nv_xor_b32 v21, v21, v20\nv_lshlrev_b32 v21, 4, v21")
    e("v_lshl_add_u32 v21, v12, 9, v21")
    for c in range(2):
        for i in range(4):
            e(f"v_cvt_pk_bf16_f32 v{48+4*c+i}, v{AC+8*c+2*i}, v{AC+8*c+2*i+1}")
    for c in range(2):
        e(f"ds_write_b128 v21, v[{48+4*c}:{51+4*c}] offset:{OT + 256*c}")
    e("s_lshl_b32 s22, s3, 3")
    e("v_add_u32 v22, s22, v11")
    for a in range(2):
        if a:
            e("v_add_u32 v22, 4, v22")
        e("v_bfe_u32 v23, v22, 1, 3\nv_lshlrev_b32 v23, 1, v23")
        e("v_xor_b32 v23, v23, v10\nv_lshlrev_b32 v23, 4, v23")
        e(f"v_lshl_add_u32 v{24+a}, v22, 8, v23")
        e(f"v_mul_u32_u24 v23, 40960, v22")
        e(f"v_lshl_add_u32 v{26+a}, v10, 4, v23")
    e("s_mul_i32 s22, s18, 1280\ns_lshl_b32 s23, s19, 8\ns_add_u32 s22, s22, s23")
    e("s_waitcnt lgkmcnt(0)\ns_barrier")
    for a in range(2):
        e(f"ds_read_b128 v[{56+4*a}:{59+4*a}], v{24+a} offset:{OT}")
    for a in range(2):
        e(f"s_waitcnt lgkmcnt({1-a})")
        e(f"buffer_store_dwordx4 v[{56+4*a}:{59+4*a}], v{26+a}, s[28:31], s22 offen")
    e(f"s_branch {L('fin')}")

    e(f"{L('notfft')}:")
    e(f"s_cmp_ge_u32 s2, 220\ns_cbranch_scc1 {L('notmod')}")
    e("s_sub_u32 s16, s2, 160")
    e("v_lshrrev_b32 v10, 3, v1\nv_and_b32 v11, 7, v1")
    e("s_mul_i32 s17, s3, 80")
    e("v_add_u32 v12, s17, v10")
    e("v_mul_u32_u24 v13, 7680, v12\nv_lshl_add_u32 v13, v11, 4, v13")
    e("v_lshlrev_b32 v12, 1, v12")
    e("s_lshl_b32 s17, s16, 7")
    e("s_waitcnt lgkmcnt(0)")
    if diag:
        stamp(k, 0, 10, 0, 40, 100)
    srd(k, 24, 12, 0, 1280)
    srd(k, 28, 14, 0, 640 * 7680)
    for i in range(10):
        e(f"buffer_load_ushort v{20+i}, v12, s[24:27], 0 offen offset:{16*i}")
    for i in range(10):
        e(f"s_add_u32 s18, s17, {i*8*7680}")
        e(f"buffer_load_dwordx4 v[{64+4*i}:{67+4*i}], v13, s[28:31], s18 offen")
    srd(k, 32, 10, WS_MOD, SZ_MOD)
    for j in range(8):
        e(f"v_mov_b32 v{50+j}, 0")
    e("s_waitcnt vmcnt(10)")
    for i in range(10):
        e(f"v_lshlrev_b32 v{20+i}, 16, v{20+i}")
    for i in range(10):
        e(f"v_mul_f32 v{30+i}, {fhex(-1.4426950408889634)}, v{20+i}")
    for i in range(10):
        e(f"v_exp_f32 v{30+i}, v{30+i}")
    for i in range(10):
        e(f"v_add_f32 v{30+i}, 1.0, v{30+i}")
    for i in range(10):
        e(f"v_rcp_f32 v{30+i}, v{30+i}")
    for i in range(10):
        e(f"v_mul_f32 v{20+i}, v{20+i}, v{30+i}")
    for i in range(10):
        e(f"v_cvt_pk_bf16_f32 v{30+i}, v{20+i}, 0")
        e(f"v_cvt_pk_bf16_f32 v{40+i}, 0, v{20+i}")
    for i in range(10):
        e(f"s_waitcnt vmcnt({9-i})")
        for d in range(4):
            e(f"v_dot2_f32_bf16 v{50+2*d}, v{64+4*i+d}, v{30+i}, v{50+2*d}")
            e(f"v_dot2_f32_bf16 v{51+2*d}, v{64+4*i+d}, v{40+i}, v{51+2*d}")
    e("s_nop 2")
    for j in range(4):
        e(f"v_permlane32_swap_b32 v{50+j}, v{54+j}")
    for j in range(4):
        e(f"v_add_f32 v{50+j}, v{50+j}, v{54+j}")
    for j in range(2):
        e(f"v_permlane16_swap_b32 v{50+j}, v{52+j}")
    for j in range(2):
        e(f"v_add_f32 v{50+j}, v{50+j}, v{52+j}")
    e("v_bfe_u32 v14, v1, 3, 1\ns_lshl_b32 s18, s3, 1\nv_add_u32 v14, s18, v14\nv_lshlrev_b32 v14, 8, v14")
    e("v_lshrrev_b32 v15, 4, v1\nv_lshlrev_b32 v15, 3, v15\nv_lshl_add_u32 v15, v11, 5, v15\nv_add_u32 v14, v14, v15")
    e("ds_write_b64 v14, v[50:51]")
    e("s_waitcnt lgkmcnt(0)\ns_barrier")
    e(f"s_cmp_lg_u32 s3, 0\ns_cbranch_scc1 {L('fin')}")
    e("v_lshlrev_b32 v14, 2, v1")
    for p in range(16):
        e(f"ds_read_b32 v{64+p}, v14 offset:{256*p}")
    e("s_waitcnt lgkmcnt(0)")
    for st in (8, 4, 2, 1):
        for p in range(st):
            e(f"v_add_f32 v{64+p}, v{64+p}, v{64+p+st}")
    e("v_cvt_pk_bf16_f32 v64, 0, v64")
    e("s_mul_i32 s18, s16, 205\ns_lshr_b32 s18, s18, 11")
    e("s_cmp_eq_u32 s18, 1\ns_cselect_b32 s19, 1.0, 0")
    e("s_cmp_eq_u32 s18, 4\ns_cselect_b32 s19, 1.0, s19")
    e("v_add_f32 v64, s19, v64")
    e("v_cvt_pk_bf16_f32 v64, 0, v64")
    e("s_lshl_b32 s18, s16, 8")
    e("buffer_store_dword v64, v14, s[32:35], s18 offen")
    e(f"s_branch {L('fin')}")

    e(f"{L('notmod')}:")
    e(f"s_cmp_ge_u32 s2, 240\ns_cbranch_scc1 {L('notwin')}")
    PI = 3488
    e("s_sub_u32 s16, s2, 220")
    e("v_lshlrev_b32 v10, 4, v1")
    e("s_lshl_b32 s17, s16, 5\ns_lshl_b32 s18, s3, 2\ns_add_u32 s17, s17, s18")
    e("s_mul_i32 s17, s17, 3456")
    e("s_and_b32 s18, s3, 1\ns_lshl_b32 s18, s18, 4\ns_lshr_b32 s19, s3, 1\ns_lshl_b32 s19, s19, 2\ns_add_u32 s18, s18, s19")
    e(f"s_mul_i32 s18, s18, {PI}")
    e("s_waitcnt lgkmcnt(0)")
    if diag:
        stamp(k, 0, 10, 0, 40, 100)
    srd(k, 24, 6, 0, 640 * 3456)
    for i in range(4):
        if i == 3:
            e("s_mov_b64 exec, 0xffffff")
        for r in range(4):
            e(f"s_add_u32 s19, s17, {r*3456 + i*1024}")
            e(f"s_add_u32 m0, s18, {r*PI + i*1024}")
            e("buffer_load_dwordx4 v10, s[24:27], s19 offen lds")
    e("s_mov_b64 exec, -1")
    srd(k, 28, 10, WS_WINP, SZ_WINP)
    e("v_lshrrev_b32 v11, 2, v1\nv_and_b32 v12, 3, v1")
    e(f"v_mul_u32_u24 v11, {PI}, v11\nv_lshl_add_u32 v11, v12, 3, v11")
    e("s_mul_i32 s19, s3, 432\nv_add_u32 v11, s19, v11")
    e("s_mul_i32 s19, s3, 40\ns_add_u32 s19, s19, s16\ns_mul_i32 s19, s19, 7168")
    e("s_waitcnt vmcnt(0)\ns_barrier")
    for i in range(14):
        for h in range(2):
            b = 16 + 4 * i + 2 * h
            e(f"ds_read_b64_tr_b16 v[{b}:{b+1}], v11 offset:{32*i + 16*PI*h}")
        if i >= 6:
            j = i - 6
            e(f"s_waitcnt lgkmcnt(12)")
            e(f"s_add_u32 s20, s19, {(j//7)*20*7168 + (j%7)*1024}")
            e(f"buffer_store_dwordx4 v[{16+4*j}:{19+4*j}], v10, s[28:31], s20 offen")
    for j in range(8, 14):
        e(f"s_waitcnt lgkmcnt({2*(13-j)})")
        e(f"s_add_u32 s20, s19, {(j//7)*20*7168 + (j%7)*1024}")
        e(f"buffer_store_dwordx4 v[{16+4*j}:{19+4*j}], v10, s[28:31], s20 offen")
    e(f"s_branch {L('fin')}")

    e(f"{L('notwin')}:")
    e(f"s_cmp_ge_u32 s2, 254\ns_cbranch_scc1 {L('zero')}")
    e("s_sub_u32 s16, s2, 240\ns_lshl_b32 s16, s16, 1\ns_lshr_b32 s17, s3, 2\ns_add_u32 s16, s16, s17")
    dma_rows1280_addr(k, 1, 4, 10, 1280)
    e("s_mul_i32 s17, s16, 37\ns_lshr_b32 s17, s17, 8")
    e("s_mul_i32 s18, s17, 7\ns_sub_u32 s18, s16, s18")
    e("s_bfe_u32 s19, s3, 0x10001")
    e("s_lshl_b32 s20, s18, 5\ns_lshl_b32 s21, s19, 4\ns_add_u32 s20, s20, s21")
    e("s_cmp_ge_u32 s18, 3\ns_cselect_b32 s21, 16, 0\ns_add_u32 s20, s20, s21")
    e("s_mul_i32 s21, s19, 112\ns_add_u32 s21, s21, 96")
    e("s_cmp_eq_u32 s18, 6\ns_cselect_b32 s20, s21, s20")
    e("s_mul_i32 s21, s17, 216\ns_add_u32 s20, s20, s21")
    e("s_and_b32 s21, s3, 1\ns_lshl_b32 s21, s21, 3\ns_add_u32 s20, s20, s21")
    e("s_mul_i32 s20, s20, 1280\ns_mul_i32 s21, s3, 10240")
    e("s_waitcnt lgkmcnt(0)")
    if diag:
        stamp(k, 0, 10, 0, 40, 100)
    srd(k, 24, 8, 0, 864 * 1280)
    dma_rows1280_issue(k, 4, 24, 20, 21, 22, 1280)
    srd(k, 28, 10, WS_WOUTP, SZ_WOUTP)
    e("v_lshrrev_b32 v10, 2, v1\nv_and_b32 v11, 3, v1")
    e("v_and_b32 v12, 7, v10\nv_lshlrev_b32 v12, 1, v12")
    e("v_mul_u32_u24 v10, 1280, v10\nv_and_b32 v13, 1, v11\nv_lshl_add_u32 v10, v13, 3, v10")
    e("s_lshr_b32 s17, s3, 2\ns_mul_i32 s17, s17, 40960\nv_add_u32 v10, s17, v10")
    e("s_and_b32 s17, s3, 3\ns_mul_i32 s18, s17, 20\nv_lshrrev_b32 v11, 1, v11\nv_add_u32 v11, s18, v11")
    for i in range(10):
        e(f"v_add_u32 v13, {2*i}, v11\nv_xor_b32 v13, v13, v12\nv_lshl_add_u32 v{20+i}, v13, 4, v10")
    e("s_mul_i32 s17, s17, 56\ns_add_u32 s17, s17, s16\ns_mul_i32 s17, s17, 5120")
    e("v_lshlrev_b32 v10, 4, v1")
    e("s_waitcnt vmcnt(0)\ns_barrier")
    for i in range(10):
        for h in range(2):
            b = 32 + 4 * i + 2 * h
            e(f"ds_read_b64_tr_b16 v[{b}:{b+1}], v{20+i} offset:{16*1280*h}")
        if i >= 6:
            j = i - 6
            e("s_waitcnt lgkmcnt(12)")
            e(f"s_add_u32 s20, s17, {(j//5)*28*5120 + (j%5)*1024}")
            e(f"buffer_store_dwordx4 v[{32+4*j}:{35+4*j}], v10, s[28:31], s20 offen")
    for j in range(4, 10):
        e(f"s_waitcnt lgkmcnt({2*(9-j)})")
        e(f"s_add_u32 s20, s17, {(j//5)*28*5120 + (j%5)*1024}")
        e(f"buffer_store_dwordx4 v[{32+4*j}:{35+4*j}], v10, s[28:31], s20 offen")
    e(f"s_branch {L('fin')}")

    e(f"{L('zero')}:")
    e("s_waitcnt lgkmcnt(0)")
    if diag:
        stamp(k, 0, 10, 0, 40, 100)
    srd(k, 24, 10, WS_STATS, SZ_STATS)
    e("v_lshlrev_b32 v10, 4, v0")
    for i in range(4):
        e(f"v_mov_b32 v{12+i}, 0")
    e("buffer_store_dwordx4 v[12:15], v10, s[24:27], 0 offen")
    e("s_mov_b32 s16, 8192")
    e("buffer_store_dwordx4 v[12:15], v10, s[24:27], s16 offen")
    e(f"{L('fin')}:")
    if diag:
        e("s_waitcnt vmcnt(0)")
        stamp(k, 1, 10, 0, 40, 100)
    e(f"{L('end')}:")
    e("s_endpgm")
    return k
```

```python
from common import *
import numpy as np

TAB_FA, TAB_TW, TAB_FB, TAB_SZ = 0, 2048, 2048 + 5120, 2048 + 5120 + 9216


def bf16_bits(x):
    u = np.asarray(x, dtype=np.float32).view(np.uint32).astype(np.uint64)
    return ((u + 0x7FFF + ((u >> 16) & 1)) >> 16).astype(np.uint16)


def tables():
    fa = np.zeros((2, 64, 8))
    fb = np.zeros((3, 3, 64, 8))
    for l in range(64):
        m, g = l % 16, l // 16
        for jj in range(8):
            c = jj % 2
            for a in range(2):
                e1, cp, d1 = 8 * a + 2 * (m // 4) + (m % 4) // 2, m % 2, 4 * g + jj // 2
                th = 2 * np.pi * ((e1 * d1) % 16) / 16
                fa[a, l, jj] = [[np.cos(th), np.sin(th)], [-np.sin(th), np.cos(th)]][cp][c]
            for b in range(3):
                for ks in range(3):
                    e2, d2 = 16 * b + m, 16 * ks + 4 * g + jj // 2
                    ps = 2 * np.pi * ((e2 * d2) % 40) / 40
                    fb[b, ks, l, jj] = 0.0 if d2 >= 40 else (np.cos(ps) if c == 0 else np.sin(ps))
    tw = np.zeros((40, 16, 2), dtype=np.float32)
    for d2 in range(40):
        for e1 in range(16):
            th = 2 * np.pi * e1 * d2 / 640
            tw[d2, e1] = (np.cos(th), np.sin(th))
    raw = bf16_bits(fa).tobytes() + tw.tobytes() + bf16_bits(fb).tobytes()
    assert len(raw) == TAB_SZ
    w = np.frombuffer(raw, dtype=np.uint32)
    out = [".p2align 8", ".type p2_tab,@object", "p2_tab:"]
    for i in range(0, len(w), 8):
        out.append("  .long " + ",".join(f"0x{x:x}" for x in w[i:i + 8]))
    out.append(f".size p2_tab, {TAB_SZ}")
    return "\n".join(out)


def wave_allsum(k, r, t):
    for m in ("quad_perm:[1,0,3,2]", "quad_perm:[2,3,0,1]", "row_half_mirror", "row_mirror"):
        k.e(f"v_add_f32_dpp v{r}, v{r}, v{r} {m} row_mask:0xf bank_mask:0xf")
    for sw in ("v_permlane16_swap_b32", "v_permlane32_swap_b32"):
        k.e(f"v_mov_b32 v{t}, v{r}")
        k.e(f"{sw} v{r}, v{t}")
        k.e(f"v_add_f32 v{r}, v{r}, v{t}")


def build(diag=False):
    HB, HJ = 0, 800 * 4
    TB, TJ, TE = HB + 8 * HJ, 704 * 4, 44 * 4
    YB, YJ = TB + 5 * TJ, 772 * 4
    VL = 55296
    assert YB + 5 * YJ <= VL
    k = Kern("p2_kernel", 256, 512, VL + 81920, vgpr=208, sgpr=64)
    e = k.e
    L = k.lab
    e(f"s_cmp_ge_u32 s2, 256\ns_cbranch_scc1 {L('end')}")
    e(f"s_load_dwordx2 s[4:5], s[0:1], {KA_X}")
    e(f"s_load_dwordx2 s[10:11], s[0:1], {KA_WS}")
    e("s_getpc_b64 s[6:7]")
    e("s_add_u32 s6, s6, p2_tab@rel32@lo+4\ns_addc_u32 s7, s7, p2_tab@rel32@hi+12")
    e("v_and_b32 v1, 63, v0\nv_lshrrev_b32 v2, 6, v0\nv_readfirstlane_b32 s3, v2")
    e("s_and_b32 s16, s2, 7\ns_lshr_b32 s17, s2, 3")
    e("s_lshl_b32 s16, s16, 2\ns_lshr_b32 s18, s17, 3\ns_add_u32 s16, s16, s18")
    e("s_and_b32 s17, s17, 7")
    dma_rows1280_addr(k, 1, 4, 10, 1280)
    e(f"s_mul_i32 s21, s3, 10240\ns_mul_i32 s20, s16, 81920\ns_add_u32 s20, s20, s21\ns_add_u32 s21, s21, {VL}")
    e("s_waitcnt lgkmcnt(0)")
    if diag:
        stamp(k, 0, 10, 1, 48, 200)
    srd(k, 24, 10, WS_V, SZ_V)
    dma_rows1280_issue(k, 4, 24, 20, 21, 22, 1280)
    srd(k, 28, 10, WS_MOD, SZ_MOD)
    srd(k, 32, 6, 0, TAB_SZ)
    srd(k, 36, 4, 0, S * 1280)
    e("s_lshl_b32 s18, s17, 8\ns_add_u32 s18, s18, s16")
    e("s_mov_b32 s19, 1.0\ns_mov_b32 s20, 1.0")
    e(f"s_mov_b32 s21, {fhex(-0.25)}")
    e(f"s_cmp_lg_u32 s16, 0\ns_cbranch_scc1 {L('par')}")
    e("s_cmp_ge_u32 s17, 4")
    e("s_cselect_b32 s19, 0, 1.0\ns_cselect_b32 s20, 1.0, 0\ns_cselect_b32 s22, 992, 0")
    e("s_sub_u32 s18, s18, s22\ns_mov_b32 s21, 0")
    e(f"{L('par')}:")
    e("v_and_b32 v10, 15, v1\nv_lshrrev_b32 v11, 4, v1")
    CA, SA, FA, TW, FB, X, GA, CB, SB = 20, 25, 32, 40, 56, 80, 86, 96, 106
    e("s_mul_i32 s22, s3, 320\nv_lshl_add_u32 v12, v10, 2, s22")
    for u in range(5):
        e(f"buffer_load_dword v{CA+u}, v12, s[28:31], 0 offen offset:{2560 + 64*u}")
    for u in range(5):
        e(f"buffer_load_dword v{SA+u}, v12, s[28:31], 0 offen offset:{64*u}")
    e("v_lshlrev_b32 v13, 4, v1")
    for a in range(2):
        e(f"buffer_load_dwordx4 v[{FA+4*a}:{FA+4*a+3}], v13, s[32:35], 0 offen offset:{TAB_FA + 1024*a}")
    e("v_lshrrev_b32 v14, 2, v10\nv_and_b32 v15, 3, v10")
    e("s_lshl_b32 s22, s3, 3\nv_add_u32 v16, s22, v15\nv_add_u32 v17, 4, v16")
    e(f"s_cmp_lt_u32 s3, 5\ns_cbranch_scc1 {L('pa')}")
    e("s_sub_u32 s22, s3, 5\ns_lshl_b32 s22, s22, 4")
    e("v_mov_b32 v14, 4\nv_add_u32 v16, s22, v10\nv_min_u32 v16, 39, v16\nv_mov_b32 v17, v16")
    e(f"{L('pa')}:")
    RA, TA = 116, 118
    for r in range(2):
        e(f"v_lshlrev_b32 v18, 7, v{16+r}\nv_lshl_add_u32 v18, v11, 4, v18")
        for a in range(2):
            b = TW + 8 * r + 4 * a
            e(f"buffer_load_dwordx4 v[{b}:{b+3}], v18, s[32:35], 0 offen offset:{TAB_TW + 64*a}")
        e(f"v_mul_u32_u24 v18, {HJ}, v14\nv_mul_u32_u24 v19, 80, v{16+r}\nv_add_u32 v18, v18, v19")
        e(f"v_lshl_add_u32 v{RA+r}, v11, 4, v18")
        e(f"v_mul_u32_u24 v18, {TJ}, v14\nv_mul_u32_u24 v19, {2*TE}, v11\nv_add_u32 v18, v18, v19")
        e(f"v_lshl_add_u32 v{TA+r}, v{16+r}, 2, v18")
    RB, RBC, YA = 120, 122, 124
    for r in range(2):
        e(f"s_add_u32 s22, s3, {8*r}\ns_min_u32 s22, s22, 14")
        e("s_mul_i32 s23, s22, 86\ns_lshr_b32 s23, s23, 8")
        e("s_mul_i32 s40, s23, 3\ns_sub_u32 s40, s22, s40")
        e(f"s_mul_i32 s41, s40, 3072\ns_add_u32 s41, s41, {TAB_FB}")
        for ks in range(3):
            b = FB + 12 * r + 4 * ks
            e(f"buffer_load_dwordx4 v[{b}:{b+3}], v13, s[32:35], s41 offen offset:{1024*ks}")
        e("s_lshl_b32 s41, s23, 2")
        e("v_lshrrev_b32 v2, 2, v10\nv_and_b32 v3, 3, v10\nv_add_u32 v3, s41, v3")
        e("v_mov_b32 v18, v11\nv_mov_b32 v19, s41")
        e(f"s_cmp_lt_u32 s23, 4\ns_cbranch_scc1 {L('pb%d' % r)}")
        e("v_mov_b32 v2, 4\nv_mov_b32 v3, v10\nv_mov_b32 v18, 4\nv_lshlrev_b32 v19, 2, v11")
        e(f"{L('pb%d' % r)}:")
        e(f"v_mul_u32_u24 v2, {TJ}, v2\nv_mul_u32_u24 v3, {TE}, v3\nv_add_u32 v2, v2, v3")
        e(f"v_lshl_add_u32 v{RB+r}, v11, 4, v2")
        e(f"v_and_b32 v3, 1, v11\nv_lshl_add_u32 v{RBC+r}, v3, 4, v2")
        e(f"v_mul_u32_u24 v18, {YJ}, v18\nv_lshl_add_u32 v18, v19, 2, v18\nv_lshl_add_u32 v18, v10, 6, v18")
        e(f"s_lshl_b32 s41, s40, 10\nv_add_u32 v{YA+r}, s41, v18")
    e("s_and_b32 s44, s3, 3\ns_lshl_b32 s42, s44, 6\ns_add_u32 s42, s42, s18")
    e("s_lshr_b32 s43, s3, 2\ns_sub_u32 s45, 2048, s42")
    e("s_cmp_eq_u32 s43, 1\ns_cselect_b32 s42, s45, s42")
    e("s_cmp_eq_u32 s42, 2048")
    e("s_cselect_b32 s42, 1024, s42\ns_cselect_b32 s43, 0, s43\ns_cselect_b32 s44, 4, s44")
    e("s_mul_i32 s45, s42, 1280")
    e("v_lshlrev_b32 v126, 2, v1\nv_lshlrev_b32 v12, 3, v1")
    for u in range(5):
        e(f"buffer_load_dword v{X+u}, v126, s[36:39], s45 offen offset:{256*u}")
    for (reg, ch) in ((GA, 2), (CB, 4), (SB, 3)):
        e(f"s_mov_b32 s46, {ch*2560}")
        for u in range(5):
            e(f"buffer_load_dwordx2 v[{reg+2*u}:{reg+2*u+1}], v12, s[28:31], s46 offen offset:{512*u}")
    NLATER = 5 + 5 + 2 + 4 + 6 + 5 + 15
    srd(k, 24, 10, WS_X1, SZ_X1)
    srd(k, 36, 10, WS_H2, SZ_H2)
    M, MF = 128, 144
    e("v_lshrrev_b32 v2, 1, v10\nv_and_b32 v3, 1, v10")
    e("v_lshlrev_b32 v12, 6, v2\nv_add_u32 v12, s18, v12")
    e("v_cmp_eq_u32 vcc, 4, v2\nv_mov_b32 v13, 1024\nv_cndmask_b32 v12, v12, v13, vcc")
    e(f"v_cvt_f32_u32 v12, v12\nv_mul_f32 v12, {fhex(1/2048)}, v12")
    e(f"v_cvt_f32_u32 v3, v3\nv_mul_f32 v3, {fhex(0.25)}, v3")
    e("v_lshlrev_b32 v13, 2, v11\nv_cvt_f32_u32 v13, v13\nv_fma_f32 v13, v12, v13, v3")
    for jj in range(8):
        c = (jj % 4) + 16 * (jj // 4)
        e(f"v_fmamk_f32 v{M+jj}, v12, {fhex(c)}, v13")
        e(f"v_add_f32 v{M+8+jj}, s21, v{M+jj}")
    for i in range(16):
        e(f"v_cos_f32 v{M+i}, v{M+i}")
    for i in range(16):
        e(f"v_mul_f32 v{M+i}, s{19 + i // 8}, v{M+i}")
    for i in range(8):
        e(f"v_cvt_pk_bf16_f32 v{MF+i}, v{M+2*i}, v{M+2*i+1}")
    TR, HW = 128, 133
    e("v_lshrrev_b32 v2, 2, v1\nv_and_b32 v3, 3, v1")
    e("v_and_b32 v12, 7, v2\nv_lshlrev_b32 v12, 1, v12")
    e(f"v_mul_u32_u24 v2, 1280, v2\nv_and_b32 v13, 1, v3\nv_lshl_add_u32 v2, v13, 3, v2\nv_add_u32 v2, {VL}, v2")
    e("s_mul_i32 s22, s3, 10\nv_lshrrev_b32 v3, 1, v3\nv_add_u32 v3, s22, v3")
    for u in range(5):
        e(f"v_add_u32 v13, {2*u}, v3\nv_xor_b32 v13, v13, v12\nv_lshl_add_u32 v{TR+u}, v13, 4, v2")
    e(f"s_mul_i32 s22, s3, 80\nv_add_u32 v2, s22, v10\nv_mul_u32_u24 v3, {2*HJ}, v11")
    for u in range(5):
        e(f"v_add_u32 v12, {16*u}, v2\nv_mul_u32_u24 v13, 205, v12\nv_lshrrev_b32 v13, 13, v13")
        e(f"v_mul_u32_u24 v18, 40, v13\nv_sub_u32 v12, v12, v18\nv_mul_u32_u24 v12, 80, v12")
        e(f"v_lshl_add_u32 v12, v13, 2, v12\nv_add_u32 v{HW+u}, v12, v3")
    e(f"s_cmp_eq_u32 s2, 0\ns_cselect_b32 s22, {fhex(2048.0)}, 0")
    e("v_cmp_eq_u32 vcc, 0, v11\nv_mov_b32 v2, s22\nv_cndmask_b32 v127, 0, v2, vcc")
    e(f"s_waitcnt vmcnt({NLATER})\ns_barrier")
    DA, AC = 152, 192
    ACC = [152 + 8 * u for u in range(5)]
    for u in range(5):
        for ks in range(2):
            for h in range(2):
                b = DA + 8 * u + 4 * ks + 2 * h
                e(f"ds_read_b64_tr_b16 v[{b}:{b+1}], v{TR+u} offset:{(32*ks+16*h)*1280}")
        if u >= 2:
            uu = u - 2
            e("s_waitcnt lgkmcnt(8)")
            step1(e, uu, DA, MF)
    for uu in (3, 4):
        e(f"s_waitcnt lgkmcnt({4*(4-uu)})")
        step1(e, uu, DA, MF)
    e(f"s_waitcnt vmcnt({NLATER-10})")
    for u in range(5):
        e(f"v_mul_f32 v{SA+u}, v{SA+u}, v127")
    for u in range(5):
        a = ACCR(u)
        e(f"v_fma_f32 v{a}, v{a}, v{CA+u}, v{SA+u}")
        for i in range(1, 4):
            e(f"v_mul_f32 v{a+i}, v{a+i}, v{CA+u}")
        e(f"v_cvt_pk_bf16_f32 v{a}, v{a}, v{a+1}")
        e(f"v_cvt_pk_bf16_f32 v{a+2}, v{a+2}, v{a+3}")
        e(f"ds_write_b32 v{HW+u}, v{a} offset:{HB}")
        e(f"ds_write_b32 v{HW+u}, v{a+2} offset:{HB+HJ}")
    e("s_waitcnt lgkmcnt(0)\ns_barrier")
    for r in range(2):
        e(f"ds_read_b128 v[{152+4*r}:{155+4*r}], v{RA+r} offset:{HB}")
    e(f"s_waitcnt vmcnt({NLATER-16})")
    for r in range(2):
        e(f"s_waitcnt lgkmcnt({1-r})")
        for a in range(2):
            d = 160 + 8 * r + 4 * a
            e(f"v_mfma_f32_16x16x32_bf16 v[{d}:{d+3}], v[{FA+4*a}:{FA+4*a+3}], v[{152+4*r}:{155+4*r}], 0")
    for r in range(2):
        for a in range(2):
            for p in range(2):
                br, bi = 160 + 8 * r + 4 * a + 2 * p, 161 + 8 * r + 4 * a + 2 * p
                tc, ts = TW + 8 * r + 4 * a + 2 * p, TW + 8 * r + 4 * a + 2 * p + 1
                t = 176 + 8 * r + 4 * a + 2 * p
                e(f"v_mul_f32 v{t}, v{br}, v{tc}")
                e(f"v_mul_f32 v{t+1}, v{bi}, v{tc}")
                e(f"v_fma_f32 v{t}, v{bi}, v{ts}, v{t}")
                e(f"v_fma_f32 v{t+1}, -v{br}, v{ts}, v{t+1}")
                e(f"v_cvt_pk_bf16_f32 v{t}, v{t}, v{t+1}")
                e(f"ds_write_b32 v{TA+r}, v{t} offset:{TB + (8*a+p)*TE}")
    e("s_waitcnt lgkmcnt(0)\ns_barrier")
    for r in range(2):
        for ks in range(3):
            b = 152 + 12 * r + 4 * ks
            e(f"ds_read_b128 v[{b}:{b+3}], v{(RB if ks < 2 else RBC)+r} offset:{TB + 64*ks}")
    e(f"s_waitcnt vmcnt({NLATER-22})")
    for r in range(2):
        for ks in range(3):
            b = 152 + 12 * r + 4 * ks
            d = 176 + 4 * r
            e(f"s_waitcnt lgkmcnt({5 - 3*r - ks})")
            src = "0" if ks == 0 else f"v[{d}:{d+3}]"
            e(f"v_mfma_f32_16x16x32_bf16 v[{d}:{d+3}], v[{b}:{b+3}], v[{FB+12*r+4*ks}:{FB+12*r+4*ks+3}], {src}")
    e(f"s_mul_i32 s22, s44, {YJ}\ns_add_u32 s22, s22, {YB}\ns_mov_b32 s23, 512")
    e(f"s_cmp_eq_u32 s43, 1\ns_cselect_b32 s23, -512, s23\ns_cselect_b32 s40, {639*4}, 0\ns_cselect_b32 s41, -8, 8")
    e("s_add_u32 s22, s22, s40")
    e("v_mul_i32_i24 v2, s41, v1\nv_add_u32 v128, s22, v2")
    for u in range(1, 5):
        e(f"v_add_u32 v{128+u}, s23, v{127+u}")
    for r in range(2):
        e(f"ds_write_b128 v{YA+r}, v[{176+4*r}:{179+4*r}] offset:{YB}")
    e("s_waitcnt lgkmcnt(0)\ns_barrier")
    Y = 152
    for u in range(5):
        e(f"ds_read2_b32 v[{Y+2*u}:{Y+2*u+1}], v{128+u} offset0:0 offset1:1")
    e("s_waitcnt vmcnt(0)")
    XF = 164
    for u in range(5):
        e(f"v_lshlrev_b32 v{XF+2*u}, 16, v{X+u}")
        e(f"v_and_b32 v{XF+2*u+1}, 0xffff0000, v{X+u}")
    e("s_waitcnt lgkmcnt(0)")
    e(f"s_cmp_eq_u32 s43, 0\ns_cbranch_scc1 {L('nosw')}")
    for u in range(5):
        e(f"v_swap_b32 v{Y+2*u}, v{Y+2*u+1}")
    e(f"{L('nosw')}:")
    for i in range(10):
        e(f"v_fma_f32 v{XF+i}, v{GA+i}, v{Y+i}, v{XF+i}")
    for u in range(5):
        e(f"v_cvt_pk_bf16_f32 v{X+u}, v{XF+2*u}, v{XF+2*u+1}")
    for u in range(5):
        e(f"buffer_store_dword v{X+u}, v126, s[24:27], s45 offen offset:{256*u}")
        e(f"v_lshlrev_b32 v{XF+2*u}, 16, v{X+u}")
        e(f"v_and_b32 v{XF+2*u+1}, 0xffff0000, v{X+u}")
    for i in range(5):
        e(f"v_add_f32 v{Y+i}, v{XF+2*i}, v{XF+2*i+1}")
    e(f"v_add_f32 v{Y}, v{Y}, v{Y+1}\nv_add_f32 v{Y+2}, v{Y+2}, v{Y+3}\nv_add_f32 v{Y}, v{Y}, v{Y+4}\nv_add_f32 v{Y}, v{Y}, v{Y+2}")
    wave_allsum(k, Y, Y + 1)
    e(f"v_mul_f32 v{Y}, {fhex(-1/640)}, v{Y}")
    for i in range(10):
        e(f"v_add_f32 v{XF+i}, v{XF+i}, v{Y}")
    e(f"v_mul_f32 v{Y}, v{XF}, v{XF}\nv_mul_f32 v{Y+1}, v{XF+1}, v{XF+1}")
    for i in range(2, 10):
        e(f"v_fmac_f32 v{Y + i % 2}, v{XF+i}, v{XF+i}")
    e(f"v_add_f32 v{Y}, v{Y}, v{Y+1}")
    wave_allsum(k, Y, Y + 1)
    e(f"v_mov_b32 v{Y+1}, {fhex(1e-5)}\nv_fmamk_f32 v{Y}, v{Y}, {fhex(1/640)}, v{Y+1}")
    e(f"v_rsq_f32 v{Y}, v{Y}")
    for i in range(10):
        e(f"v_mul_f32 v{XF+i}, v{XF+i}, v{Y}")
    for i in range(10):
        e(f"v_fma_f32 v{XF+i}, v{XF+i}, v{CB+i}, v{SB+i}")
    for u in range(5):
        e(f"v_cvt_pk_bf16_f32 v{Y+2+u}, v{XF+2*u}, v{XF+2*u+1}")
        e(f"buffer_store_dword v{Y+2+u}, v126, s[36:39], s45 offen offset:{256*u}")
    if diag:
        e("s_waitcnt vmcnt(0)")
        stamp(k, 1, 10, 1, 48, 200)
    e(f"{L('end')}:")
    e("s_endpgm")
    return k


def ACCR(u):
    return [192, 196, 200, 204, 140][u]


def step1(e, u, DA, MF):
    a = ACCR(u)
    for ks in range(2):
        d = DA + 8 * u + 4 * ks
        src = "0" if ks == 0 else f"v[{a}:{a+3}]"
        e(f"v_mfma_f32_16x16x32_bf16 v[{a}:{a+3}], v[{MF+4*ks}:{MF+4*ks+3}], v[{d}:{d+3}], {src}")
```

```python
from common import *

C1 = 2 * 0.7978845608028654 * 1.4426950408889634
C2 = C1 * 0.044715


def gelu(e, regs, tmp, vneg_c2):
    n = len(regs)
    for i, r in enumerate(regs):
        e(f"v_mul_f32 v{tmp+i}, v{r}, v{r}")
    for i in range(n):
        e(f"v_fmaak_f32 v{tmp+i}, v{tmp+i}, v{vneg_c2}, {fhex(-C1)}")
    for i, r in enumerate(regs):
        e(f"v_mul_f32 v{tmp+i}, v{tmp+i}, v{r}")
    for i in range(n):
        e(f"v_exp_f32 v{tmp+i}, v{tmp+i}")
    for i in range(n):
        e(f"v_add_f32 v{tmp+i}, 1.0, v{tmp+i}")
    for i in range(n):
        e(f"v_rcp_f32 v{tmp+i}, v{tmp+i}")
    for i, r in enumerate(regs):
        e(f"v_mul_f32 v{r}, v{r}, v{tmp+i}")


def build(diag=False):
    k = Kern("p3_kernel", 256, 512, 163840, vgpr=128, sgpr=64)
    e = k.e
    L = k.lab
    SL = 32768
    e(f"s_cmp_ge_u32 s2, 256\ns_cbranch_scc1 {L('end')}")
    e(f"s_load_dwordx2 s[10:11], s[0:1], {KA_WS}")
    e("v_and_b32 v1, 63, v0\nv_lshrrev_b32 v2, 6, v0\nv_readfirstlane_b32 s3, v2")
    e("s_and_b32 s16, s2, 7\ns_lshr_b32 s17, s2, 3")
    e("s_and_b32 s18, s16, 3\ns_lshl_b32 s18, s18, 2\ns_and_b32 s19, s17, 3\ns_add_u32 s18, s18, s19")
    e("s_lshr_b32 s19, s16, 2\ns_lshl_b32 s19, s19, 3\ns_lshr_b32 s17, s17, 2\ns_add_u32 s19, s19, s17")
    e("v_lshrrev_b32 v2, 3, v1\nv_and_b32 v3, 7, v1\nv_bfe_u32 v4, v2, 1, 1\nv_lshlrev_b32 v4, 2, v4")
    e("s_and_b32 s20, s3, 1\ns_lshl_b32 s20, s20, 1\nv_or_b32 v4, s20, v4\nv_xor_b32 v3, v3, v4")
    e("v_mul_u32_u24 v2, 1280, v2\nv_lshl_add_u32 v4, v3, 4, v2")
    e("v_lshlrev_b32 v5, 4, v1")
    e("s_lshl_b32 s20, s18, 3\ns_add_u32 s20, s20, s3\ns_mul_i32 s20, s20, 20480")
    e("s_mul_i32 s21, s19, 140\ns_lshl_b32 s22, s3, 1\ns_add_u32 s21, s21, s22\ns_lshl_b32 s21, s21, 10")
    e("s_cmp_eq_u32 s3, 7\ns_cselect_b32 s21, 0x40000000, s21")
    e("s_lshl_b32 s22, s3, 11")
    e("s_waitcnt lgkmcnt(0)")
    if diag:
        stamp(k, 0, 10, 2, 48, 120)
    srd(k, 24, 10, WS_H2, SZ_H2)
    srd(k, 28, 10, WS_WINP, SZ_WINP)

    def dma(st):
        sl = (st % 5) * SL
        for i in range(2):
            e(f"s_add_u32 s23, s20, {st*128 + i*10240}")
            e(f"s_add_u32 m0, s22, {sl + i*1024}")
            e("buffer_load_dwordx4 v4, s[24:27], s23 offen lds")
        e(f"s_add_u32 s23, s21, {st*14336}")
        e(f"s_add_u32 m0, s22, {sl + 16384}")
        e("buffer_load_dwordx4 v5, s[28:31], s23 offen lds")
        e("buffer_load_dwordx4 v5, s[28:31], s23 offen offset:1024 lds")

    for st in range(5):
        dma(st)
    e("v_and_b32 v2, 15, v1\nv_lshrrev_b32 v3, 4, v1")
    e("v_lshrrev_b32 v15, 2, v2\nv_and_b32 v16, 3, v2")
    e("v_lshrrev_b32 v17, 1, v16\nv_lshlrev_b32 v17, 2, v17\nv_and_b32 v18, 2, v15\nv_or_b32 v17, v17, v18")
    e("v_xor_b32 v17, v17, v3\nv_lshlrev_b32 v17, 4, v17")
    e("v_lshl_add_u32 v16, v15, 3, v16\nv_lshl_add_u32 v6, v16, 7, v17")
    e("s_and_b32 s23, s3, 3\ns_lshl_b32 s23, s23, 12\nv_add_u32 v6, s23, v6\nv_xor_b32 v7, 64, v6")
    e("s_lshr_b32 s23, s3, 2\ns_lshl_b32 s23, s23, 12\nv_add_u32 v12, s23, v5")
    for b in (1, 2):
        e(f"v_add_u32 v{6+2*b}, {65536*b}, v6\nv_add_u32 v{7+2*b}, {65536*b}, v7\nv_add_u32 v{12+b}, {65536*b}, v12")
    e(f"v_mov_b32 v15, {fhex(-C2)}")
    AC, FRG = 32, 64

    def variant(z2, nt, tag):
        def reads(kap):
            st, ks = divmod(kap, 2)
            sl = st % 5
            base, off = sl // 2, (sl % 2) * SL
            b = FRG + 24 * (kap % 2)
            for mt in range(2):
                e(f"ds_read_b128 v[{b+4*mt}:{b+4*mt+3}], v{6+2*base+ks} offset:{off + 512*mt}")
            for j in range(nt):
                e(f"ds_read_b128 v[{b+8+4*j}:{b+11+4*j}], v{12+base} offset:{off + 16384 + (7*ks+j)*1024}")

        e("s_waitcnt vmcnt(16)\ns_barrier")
        reads(0)
        for kap in range(20):
            nxt = kap + 1
            if nxt < 20 and nxt % 2 == 0:
                st = nxt // 2
                last = min(9, max(4, st + 3))
                e(f"s_waitcnt vmcnt({4*(last-st)}) lgkmcnt(0)\ns_barrier")
                reads(nxt)
                if st + 4 <= 9:
                    dma(st + 4)
            elif nxt < 20:
                reads(nxt)
                e(f"s_waitcnt lgkmcnt({2+nt})")
            else:
                e("s_waitcnt lgkmcnt(0)")
            b = FRG + 24 * (kap % 2)
            for j in range(nt):
                for mt in range(2):
                    a = AC + 8 * j + 4 * mt
                    h, w = f"v[{b+4*mt}:{b+4*mt+3}]", f"v[{b+8+4*j}:{b+11+4*j}]"
                    src = "0" if kap == 0 else f"v[{a}:{a+3}]"
                    e(f"v_mfma_f32_16x16x32_bf16 v[{a}:{a+3}], {h if z2 else w}, {w if z2 else h}, {src}")
        e("s_lshl_b32 s20, s18, 2\ns_and_b32 s21, s3, 3\ns_add_u32 s20, s20, s21")
        e("s_and_b32 s21, s19, 7")
        if z2:
            srd(k, 24, 10, WS_Z2P, SZ_Z2P)
            srd(k, 28, 10, WS_STATS, SZ_STATS)
            e("s_lshl_b32 s22, s21, 6\ns_add_u32 s22, s22, s20")
        else:
            srd(k, 24, 10, WS_Z1P, SZ_Z1P)
            e("s_lshl_b32 s22, s20, 3\ns_add_u32 s22, s22, s21")
        e(f"s_mul_i32 s22, s22, 7168")
        if nt == 3:
            e("s_add_u32 s22, s22, 4096")
        ST = 96
        for j in range(nt):
            regs = [AC + 8 * j + i for i in range(8)]
            gelu(e, regs, FRG, 15)
            if z2 and nt == 3 and j == 2:
                e("s_and_b32 s23, s19, 1\ns_cmp_eq_u32 s23, 1\ns_cselect_b32 s40, 0x00ff00ff, -1\ns_mov_b32 s41, s40")
                for r in regs:
                    e(f"v_cndmask_b32 v{r}, 0, v{r}, s[40:41]")
            for i in range(4):
                e(f"v_cvt_pk_bf16_f32 v{FRG+8+4*j+i}, v{regs[2*i]}, v{regs[2*i+1]}")
            e(f"buffer_store_dwordx4 v[{FRG+8+4*j}:{FRG+11+4*j}], v5, s[24:27], s22 offen offset:{1024*j}")
            if z2:
                for i, r in enumerate(regs):
                    if j == 0:
                        e(f"v_mov_b32 v{ST+2*i}, v{r}\nv_mul_f32 v{ST+2*i+1}, v{r}, v{r}")
                    else:
                        e(f"v_add_f32 v{ST+2*i}, v{ST+2*i}, v{r}\nv_fmac_f32 v{ST+2*i+1}, v{r}, v{r}")
        if z2:
            m = 8
            for mask, dpp in ((0xff00ff00, "row_ror:8"), (0xf0f0f0f0, "row_half_mirror"),
                              (0xcccccccc, "quad_perm:[2,3,0,1]"), (0xaaaaaaaa, "quad_perm:[1,0,3,2]")):
                e(f"s_mov_b32 s40, 0x{mask:x}\ns_mov_b32 s41, s40")
                for i in range(m):
                    e(f"v_cndmask_b32 v{AC+i}, v{ST+i+m}, v{ST+i}, s[40:41]")
                for i in range(m):
                    e(f"v_cndmask_b32 v{ST+i}, v{ST+i}, v{ST+i+m}, s[40:41]")
                for i in range(m):
                    e(f"v_add_f32_dpp v{ST+i}, v{AC+i}, v{ST+i} {dpp} row_mask:0xf bank_mask:0xf")
                m //= 2
            e("v_lshlrev_b32 v2, 2, v1\ns_lshl_b32 s20, s20, 8")
            e(f"buffer_atomic_add_f32 v{ST}, v2, s[28:31], s20 offen")
        e(f"s_branch {L('fin')}")

    e(f"s_cmp_ge_u32 s19, 8\ns_cbranch_scc1 {L('z2')}")
    e(f"s_cmp_ge_u32 s3, 4\ns_cbranch_scc1 {L('z1b')}")
    variant(False, 4, "z1a")
    e(f"{L('z1b')}:")
    variant(False, 3, "z1b")
    e(f"{L('z2')}:")
    e(f"s_cmp_ge_u32 s3, 4\ns_cbranch_scc1 {L('z2b')}")
    variant(True, 4, "z2a")
    e(f"{L('z2b')}:")
    variant(True, 3, "z2b")
    e(f"{L('fin')}:")
    if diag:
        e("s_waitcnt vmcnt(0)")
        stamp(k, 1, 10, 2, 48, 120)
    e(f"{L('end')}:")
    e("s_endpgm")
    return k
```

```python
from common import *


def build(diag=False):
    k = Kern("p4_kernel", 256, 256, 147456, vgpr=160, agpr=240, sgpr=64)
    e = k.e
    L = k.lab
    TBL = 131072
    e(f"s_cmp_ge_u32 s2, 256\ns_cbranch_scc1 {L('end')}")
    e(f"s_load_dwordx4 s[4:7], s[0:1], {KA_WSP}")
    e(f"s_load_dwordx2 s[10:11], s[0:1], {KA_WS}")
    e("v_and_b32 v1, 63, v0\nv_lshrrev_b32 v2, 6, v0\nv_readfirstlane_b32 s3, v2")
    e("s_and_b32 s16, s2, 7\ns_lshr_b32 s17, s2, 3")
    e("s_and_b32 s18, s16, 3\ns_lshl_b32 s18, s18, 3\ns_and_b32 s19, s17, 7\ns_add_u32 s18, s18, s19")
    e("s_lshr_b32 s19, s16, 2\ns_lshl_b32 s19, s19, 2\ns_lshr_b32 s17, s17, 3\ns_add_u32 s19, s19, s17")
    e("v_lshrrev_b32 v2, 3, v1\nv_and_b32 v3, 7, v1\nv_bfe_u32 v4, v2, 1, 1\nv_lshlrev_b32 v4, 2, v4")
    e("v_xor_b32 v3, v3, v4\nv_lshlrev_b32 v2, 12, v2\nv_lshl_add_u32 v4, v3, 4, v2\nv_xor_b32 v6, 32, v4")
    e("v_lshlrev_b32 v5, 4, v1")
    e("s_lshl_b32 s20, s18, 18\ns_lshl_b32 s21, s3, 10\ns_add_u32 s20, s20, s21")
    e("s_lshl_b32 s21, s19, 6\ns_lshl_b32 s22, s3, 4\ns_add_u32 s21, s21, s22\ns_mul_i32 s21, s21, 7168")
    e("s_lshl_b32 s22, s3, 15")
    e("s_lshl_b32 s23, s3, 12")
    e("s_waitcnt lgkmcnt(0)")
    if diag:
        stamp(k, 0, 10, 3, 48, 150)
    srd(k, 24, 4, 0, S * 4096)
    srd(k, 28, 10, WS_Z2P, SZ_Z2P)
    srd(k, 32, 10, WS_STATS, SZ_STATS)
    srd(k, 36, 10, WS_Z1P, SZ_Z1P)
    srd(k, 40, 6, 0, 4096)
    q = []

    def vm(tag, n=1):
        q.extend([tag] * n)

    def need(tags):
        idx = max(i for i, t in enumerate(q) if t in tags)
        return min(63, len(q) - 1 - idx)

    STV = 112
    for a in range(4):
        e(f"buffer_load_dwordx4 v[{STV+4*a}:{STV+4*a+3}], v5, s[32:35], s23 offen offset:{1024*a}")
    vm("st", 4)

    def dma(st, x):
        for a in range(8):
            e(f"s_add_u32 s44, s20, {a*32768}")
            e(f"s_add_u32 m0, s22, {x*8192 + a*1024}")
            e(f"buffer_load_dwordx4 v{6 if (a >> 1) & 1 else 4}, s[24:27], s44 offen lds")
        e("s_add_u32 s20, s20, 128")
        vm(("w", st), 8)

    ZR = 128

    def zload(kap):
        e("s_add_u32 s44, s21, 4096")
        for j in range(7):
            b = ZR + 28 * (kap % 4) + 4 * j
            so, off = ("s21", 1024 * j) if j < 4 else ("s44", 1024 * (j - 4))
            e(f"buffer_load_dwordx4 a[{b}:{b+3}], v5, s[28:31], {so} offen offset:{off}")
        e("s_add_u32 s21, s21, 7168")
        vm(("z", kap), 7)

    dma(0, 0)
    dma(1, 1)
    dma(2, 2)
    zload(0)
    zload(1)
    dma(3, 3)
    zload(2)
    zload(3)
    Z1, BS = 128, 142
    e("v_and_b32 v2, 15, v1\nv_lshrrev_b32 v3, 4, v1")
    e("v_lshrrev_b32 v15, 2, v2\nv_and_b32 v16, 3, v2")
    e("v_lshl_add_u32 v18, v15, 3, v16")
    e("s_lshr_b32 s44, s3, 1\ns_and_b32 s45, s3, 1")
    e("s_lshl_b32 s46, s18, 1\ns_add_u32 s46, s46, s44\ns_lshl_b32 s47, s46, 3\ns_add_u32 s47, s47, s19\ns_mul_i32 s47, s47, 7168")
    e("s_lshl_b32 s44, s45, 3\nv_add_u32 v17, s44, v5\ns_add_u32 s44, s47, 4096")
    for j in range(7):
        so, off = ("s47", 1024 * j) if j < 4 else ("s44", 1024 * (j - 4))
        e(f"buffer_load_dwordx2 v[{Z1+2*j}:{Z1+2*j+1}], v17, s[36:39], {so} offen offset:{off}")
    e("s_lshl_b32 s46, s46, 6\ns_lshl_b32 s45, s45, 3\ns_add_u32 s46, s46, s45\nv_lshlrev_b32 v17, 1, v18")
    e(f"buffer_load_ushort v{BS}, v17, s[40:43], s46 offen")
    vm("ep", 8)
    e("v_lshrrev_b32 v17, 1, v16\nv_lshlrev_b32 v17, 2, v17\nv_and_b32 v19, 2, v15\nv_or_b32 v17, v17, v19")
    e("v_xor_b32 v17, v17, v3\nv_lshlrev_b32 v17, 4, v17\nv_lshl_add_u32 v8, v18, 7, v17")
    e("v_add_u32 v8, s22, v8\nv_xor_b32 v9, 64, v8\nv_xor_b32 v10, 16384, v8\nv_xor_b32 v11, 16384, v9")
    e(f"s_mul_i32 s44, s3, 3072\ns_add_u32 s44, s44, {TBL}")
    e("v_lshl_add_u32 v12, v3, 5, s44\ns_add_u32 s45, s44, 2048\nv_lshl_add_u32 v13, v3, 4, s45")
    e("v_lshl_add_u32 v14, v1, 3, s44\nv_lshl_add_u32 v15, v1, 2, s45")
    for i in range(128):
        e(f"v_accvgpr_write_b32 a{i}, 0")
    e(f"s_waitcnt vmcnt({need(['st'])})")
    e(f"v_mov_b32 v16, {fhex(1e-5)}")
    for a in range(4):
        for h in range(2):
            s1, s2 = STV + 4 * a + 2 * h, STV + 4 * a + 2 * h + 1
            e(f"v_mul_f32 v{s1}, {fhex(-1/864)}, v{s1}")
            e(f"v_fmamk_f32 v{s2}, v{s2}, {fhex(1/864)}, v16")
            e(f"v_fma_f32 v{s2}, -v{s1}, v{s1}, v{s2}")
            e(f"v_rsq_f32 v{s2}, v{s2}")
        b = STV + 4 * a
        e(f"v_cvt_pk_bf16_f32 v{b}, v{b}, v{b+2}")
        e(f"v_mov_b32 v{b+2}, v{b+1}")
        e(f"ds_write_b64 v14, v[{b+2}:{b+3}] offset:{512*a}")
        e(f"ds_write_b32 v15, v{b} offset:{256*a}")
    RAW, WS_, RR, MM, T = 32, 64, 96, 144, 20
    MFR = [144, 148, 152, 156]

    def lreads(kap, rel):
        st_rel, ks = divmod(rel, 2)
        base = (8 if st_rel < 2 else 10) + ks
        off = (st_rel % 2) * 8192
        for tt in range(4):
            b = RAW + 16 * (kap % 2) + 4 * tt
            e(f"ds_read_b128 v[{b}:{b+3}], v{base} offset:{off + (tt//2)*4096 + (tt%2)*512}")
        for h in range(2):
            b = RR + 8 * (kap % 2) + 4 * h
            e(f"ds_read_b128 v[{b}:{b+3}], v12 offset:{rel*128 + 16*h}")
        b = MFR[kap % 4]
        e(f"ds_read_b128 v[{b}:{b+3}], v13 offset:{rel*64}")

    def scale_ops(kap):
        ops = []
        for tt in range(4):
            grp = [[], [], [], [], []]
            for d in range(4):
                raw = RAW + 16 * (kap % 2) + 4 * tt + d
                lo, hi = T + 2 * d, T + 2 * d + 1
                r = RR + 8 * (kap % 2) + 2 * d
                grp[0].append(f"v_lshlrev_b32 v{lo}, 16, v{raw}")
                grp[1].append(f"v_and_b32 v{hi}, 0xffff0000, v{raw}")
                grp[2].append(f"v_mul_f32 v{lo}, v{lo}, v{r}")
                grp[3].append(f"v_mul_f32 v{hi}, v{hi}, v{r+1}")
                grp[4].append(f"v_cvt_pk_bf16_f32 v{WS_ + 16*(kap%2) + 4*tt + d}, v{lo}, v{hi}")
            for g in grp:
                ops += g
        return ops

    def mfmas(kap):
        ops = []
        for tt in range(4):
            w = WS_ + 16 * (kap % 2) + 4 * tt
            for j in range(7):
                a = (tt * 7 + j) * 4
                z = ZR + 28 * (kap % 4) + 4 * j
                ops.append(f"v_mfma_f32_16x16x32_bf16 a[{a}:{a+3}], a[{z}:{z+3}], v[{w}:{w+3}], a[{a}:{a+3}]")
            a = 112 + 4 * tt
            m = MFR[kap % 4]
            ops.append(f"v_mfma_f32_16x16x32_bf16 a[{a}:{a+3}], v[{m}:{m+3}], v[{w}:{w+3}], a[{a}:{a+3}]")
        return ops

    e(f"s_waitcnt vmcnt({need([('w', 0)])}) lgkmcnt(0)")
    lreads(0, 0)
    lreads(1, 1)
    e("s_waitcnt lgkmcnt(7)")
    for o in scale_ops(0):
        e(o)
    e("s_mov_b32 s45, 0")
    waits = []
    body_start = len(k.L)
    for body in range(4):
        emit = body == 0
        ee = e if emit else (lambda s: None)
        save = k.L
        if not emit:
            k.L = []
        if emit:
            e(f"{L('loop')}:")
        w = []
        for rel in range(4):
            kap = 4 * body + rel
            n1 = need([("w", (kap + 2) // 2), ("z", kap)])
            w.append(n1)
            e(f"s_waitcnt vmcnt(@W{rel}@)")
            lreads(kap + 2, rel + 2)
            e("s_waitcnt lgkmcnt(7)")
            if rel % 2 == 0:
                dma(kap // 2 + 4, rel // 2)
            mf, sc_ = mfmas(kap), scale_ops(kap + 1)
            vi = 0
            for i, m in enumerate(mf):
                e(m)
                tgt = (i + 1) * len(sc_) // len(mf)
                while vi < tgt:
                    e(sc_[vi])
                    vi += 1
            zload(kap + 4)
        waits.append(w)
        e("v_xor_b32 v8, 16384, v8\nv_xor_b32 v9, 16384, v9\nv_xor_b32 v10, 16384, v10\nv_xor_b32 v11, 16384, v11")
        e("v_add_u32 v12, 512, v12\nv_add_u32 v13, 256, v13\ns_xor_b32 s22, s22, 16384")
        e("s_add_u32 s45, s45, 1")
        e("s_cmp_ge_u32 s45, 2\ns_cselect_b32 s20, 0x40000000, s20")
        e("s_cmp_ge_u32 s45, 3\ns_cselect_b32 s21, 0x40000000, s21")
        e(f"s_cmp_lt_u32 s45, 4\ns_cbranch_scc1 {L('loop')}")
        if not emit:
            k.L = save
    wmin = [min(w[r] for w in waits) for r in range(4)]
    for i in range(body_start, len(k.L)):
        for r in range(4):
            k.L[i] = k.L[i].replace(f"@W{r}@", str(wmin[r]))
    k.waits = waits
    e("s_waitcnt vmcnt(0) lgkmcnt(0)\ns_barrier")
    e("s_lshl_b32 s44, s3, 13\nv_add_u32 v8, s44, v5\nv_add_u32 v9, 65536, v8")
    e("v_lshl_add_u32 v10, v1, 2, s44\nv_add_u32 v11, 65536, v10")
    for tt in range(4):
        off = (tt % 2) * 32768
        for j in range(7):
            a = (tt * 7 + j) * 4
            e(f"ds_write_b128 v{8 + tt//2}, a[{a}:{a+3}] offset:{off + 1024*j}")
        e(f"ds_write_b32 v{10 + tt//2}, a{112+4*tt} offset:{off + 7168}")
    e("s_lshl_b32 s44, s3, 15\nv_add_u32 v8, s44, v5\nv_lshl_add_u32 v10, v1, 2, s44")
    srd(k, 24, 10, WS_A5P, SZ_A5P)
    e("s_lshl_b32 s20, s18, 2\ns_add_u32 s20, s20, s3\ns_mul_i32 s20, s20, 28")
    e("s_lshr_b32 s21, s19, 1\ns_mul_i32 s21, s21, 7\ns_add_u32 s20, s20, s21\ns_lshl_b32 s20, s20, 10")
    e("s_and_b32 s21, s19, 1\ns_mul_i32 s22, s21, 3072\ns_add_u32 s22, s22, s20\ns_add_u32 s20, s20, 6144")
    e("s_lshl_b32 s23, s21, 3\nv_add_u32 v6, s23, v5")
    e("s_cmp_eq_u32 s21, 1\ns_cselect_b32 s41, 0, -1\ns_mov_b32 s40, -1")
    e(f"v_lshlrev_b32 v{BS}, 16, v{BS}")
    e("s_waitcnt lgkmcnt(0)\ns_barrier")
    for s in range(4):
        e(f"ds_read_b32 v{20+s}, v10 offset:{8192*s + 7168}")
    P = 32

    def pread(j):
        for s in range(4):
            b = P + 16 * (j % 4) + 4 * s
            e(f"ds_read_b128 v[{b}:{b+3}], v8 offset:{8192*s + 1024*j}")

    pread(0)
    pread(1)
    e("s_waitcnt lgkmcnt(8)")
    e(f"v_add_f32 v20, v20, v21\nv_add_f32 v22, v22, v23\nv_add_f32 v20, v20, v22\nv_add_f32 v{BS}, v{BS}, v20")
    O = 96
    for j in range(7):
        if j + 2 < 7:
            pread(j + 2)
        e(f"s_waitcnt lgkmcnt({4*min(2, 6-j)})")
        b = P + 16 * (j % 4)
        for i in range(4):
            e(f"v_add_f32 v{b+i}, v{b+i}, v{b+4+i}\nv_add_f32 v{b+8+i}, v{b+8+i}, v{b+12+i}")
        for i in range(4):
            e(f"v_add_f32 v{b+8+i}, v{b+8+i}, v{BS}")
        for i in range(4):
            e(f"v_add_f32 v{b+i}, v{b+i}, v{b+8+i}")
        for h in range(2):
            e(f"v_lshlrev_b32 v{b+4+2*h}, 16, v{Z1+2*j+h}\nv_and_b32 v{b+5+2*h}, 0xffff0000, v{Z1+2*j+h}")
        for i in range(4):
            e(f"v_mul_f32 v{b+i}, v{b+i}, v{b+4+i}")
        for h in range(2):
            e(f"v_cvt_pk_bf16_f32 v{O+2*j+h}, v{b+2*h}, v{b+2*h+1}")
        if j % 2 == 1:
            e(f"buffer_store_dwordx4 v[{O+2*j-2}:{O+2*j+1}], v5, s[24:27], s22 offen offset:{1024*(j//2)}")
    for h in range(2):
        e(f"v_cndmask_b32 v{O+12+h}, 0, v{O+12+h}, s[40:41]")
    e(f"buffer_store_dwordx2 v[{O+12}:{O+13}], v6, s[24:27], s20 offen")
    if diag:
        e("s_waitcnt vmcnt(0)")
        stamp(k, 1, 10, 3, 48, 150)
    e(f"{L('end')}:")
    e("s_endpgm")
    return k
```

```python
from common import *


def build(diag=False):
    k = Kern("p5_kernel", 256, 256, 163840, vgpr=224, sgpr=64)
    e = k.e
    L = k.lab
    OT = 143360
    e(f"s_cmp_ge_u32 s2, 256\ns_cbranch_scc1 {L('end')}")
    e(f"s_load_dwordx2 s[4:5], s[0:1], {KA_OUT}")
    e(f"s_load_dwordx2 s[10:11], s[0:1], {KA_WS}")
    e("v_and_b32 v1, 63, v0\nv_lshrrev_b32 v2, 6, v0\nv_readfirstlane_b32 s3, v2")
    e("s_and_b32 s16, s2, 7\ns_lshr_b32 s17, s2, 3")
    e("s_lshl_b32 s18, s16, 2\ns_lshr_b32 s19, s17, 3\ns_add_u32 s18, s18, s19")
    e("s_and_b32 s19, s17, 7")
    e("v_lshlrev_b32 v5, 4, v1")
    e("s_mul_i32 s20, s19, 28\ns_add_u32 s20, s20, s3\ns_mul_i32 s20, s20, 5120")
    e("s_mul_i32 s22, s3, 5120")
    e("s_lshl_b32 s21, s18, 2\ns_add_u32 s21, s21, s3\ns_mul_i32 s21, s21, 28672")
    e("s_waitcnt lgkmcnt(0)")
    if diag:
        stamp(k, 0, 10, 4, 48, 220)
    srd(k, 24, 10, WS_WOUTP, SZ_WOUTP)
    srd(k, 28, 10, WS_A5P, SZ_A5P)
    q = []
    AF, BF, AC, X1, GB = 32, 144, 184, 204, 12

    def need(tags):
        idx = max(i for i, t in enumerate(q) if t in tags)
        return len(q) - 1 - idx

    def chunk(c):
        e(f"s_add_u32 s23, s20, {c*20480}\ns_add_u32 m0, s22, {c*20480}")
        for j in range(4):
            e(f"buffer_load_dwordx4 v5, s[24:27], s23 offen offset:{1024*j} lds")
        e(f"s_add_u32 s23, s20, {c*20480+4096}\ns_add_u32 m0, s22, {c*20480+4096}")
        e("buffer_load_dwordx4 v5, s[24:27], s23 offen lds")
        e(f"s_add_u32 s23, s21, {c*4096}")
        for i in range(4):
            b = AF + 16 * c + 4 * i
            e(f"buffer_load_dwordx4 v[{b}:{b+3}], v5, s[28:31], s23 offen offset:{1024*i}")
        q.extend([c] * 9)

    for c in range(6):
        chunk(c)
    srd(k, 32, 10, WS_X1, SZ_X1)
    srd(k, 36, 10, WS_MOD, SZ_MOD)
    srd(k, 40, 4, 0, S * 1280)
    e("v_add_u32 v6, 65536, v5\nv_add_u32 v7, 131072, v5")
    e("v_and_b32 v2, 15, v1\nv_lshrrev_b32 v3, 4, v1")
    e(f"s_mul_i32 s23, s3, 5120\ns_add_u32 s23, s23, {OT}")
    e("v_bfe_u32 v9, v2, 1, 2\nv_xor_b32 v9, v9, v3")
    e("v_mul_u32_u24 v8, 320, v2\nv_lshl_add_u32 v8, v9, 4, v8\nv_add_u32 v8, s23, v8")
    e("v_lshlrev_b32 v9, 4, v3")
    for i in range(5):
        e(f"v_add_u32 v10, {64*i}, v1\nv_mul_u32_u24 v11, 205, v10\nv_lshrrev_b32 v11, 12, v11")
        e(f"v_mul_u32_u24 v2, 20, v11\nv_sub_u32 v10, v10, v2")
        e("v_bfe_u32 v4, v11, 1, 2\nv_xor_b32 v4, v4, v10")
        e(f"v_mul_u32_u24 v2, 320, v11\nv_lshl_add_u32 v2, v4, 4, v2\nv_add_u32 v{219+i}, s23, v2")
        e("v_lshrrev_b32 v2, 2, v11\nv_and_b32 v11, 3, v11\nv_lshl_add_u32 v11, v2, 3, v11")
        e(f"v_mul_u32_u24 v11, 1280, v11\nv_lshl_add_u32 v{214+i}, v10, 3, v11")
    e("s_lshr_b32 s44, s3, 1\ns_lshl_b32 s44, s44, 5\ns_and_b32 s45, s3, 1\ns_lshl_b32 s45, s45, 2\ns_add_u32 s44, s44, s45")
    e("s_lshl_b32 s45, s18, 6\ns_add_u32 s44, s44, s45\ns_mul_i32 s44, s44, 1280\ns_mul_i32 s45, s19, 160\ns_add_u32 s44, s44, s45")
    e(f"s_mul_i32 s45, s19, 320\ns_add_u32 s45, s45, {5*2560}")

    def reads(kap):
        addr = kap * 5120
        base, off = 5 + addr // 65536, addr % 65536
        for j in range(5):
            o = off + 1024 * j
            bb, oo = (base, o) if o < 65536 else (base + 1, o - 65536)
            b = BF + 20 * (kap % 2) + 4 * j
            e(f"ds_read_b128 v[{b}:{b+3}], v{bb} offset:{oo}")

    e(f"s_waitcnt vmcnt({need([0])})\ns_barrier")
    reads(0)
    chunk(6)
    for kap in range(28):
        nxt = kap + 1
        if nxt < 28:
            if nxt % 4 == 0:
                e(f"s_waitcnt vmcnt({need([nxt//4])})\ns_barrier")
            reads(nxt)
            if nxt == 4:
                for i in range(5):
                    e(f"buffer_load_dwordx2 v[{X1+2*i}:{X1+2*i+1}], v{214+i}, s[32:35], s44 offen")
                for j in range(5):
                    e(f"buffer_load_dwordx4 v[{GB+4*j}:{GB+4*j+3}], v9, s[36:39], s45 offen offset:{64*j}")
                q.extend(["ep"] * 10)
            e("s_waitcnt lgkmcnt(5)")
        else:
            e("s_waitcnt lgkmcnt(0)")
        for j in range(5):
            a = AC + 4 * j
            b = BF + 20 * (kap % 2) + 4 * j
            src = "0" if kap == 0 else f"v[{a}:{a+3}]"
            e(f"v_mfma_f32_16x16x32_bf16 v[{a}:{a+3}], v[{b}:{b+3}], v[{AF+4*kap}:{AF+4*kap+3}], {src}")
    e("s_waitcnt vmcnt(0)")
    for j in range(5):
        for i in range(4):
            e(f"v_mul_f32 v{AC+4*j+i}, v{AC+4*j+i}, v{GB+4*j+i}")
        e(f"ds_write_b128 v8, v[{AC+4*j}:{AC+4*j+3}] offset:{64*j}")
    e("s_waitcnt lgkmcnt(0)")
    for i in range(5):
        e(f"ds_read_b128 v[{BF+4*i}:{BF+4*i+3}], v{219+i}")
    for i in range(5):
        for h in range(2):
            e(f"v_lshlrev_b32 v{AF+4*i+2*h}, 16, v{X1+2*i+h}\nv_and_b32 v{AF+4*i+2*h+1}, 0xffff0000, v{X1+2*i+h}")
    for i in range(5):
        e(f"s_waitcnt lgkmcnt({4-i})")
        for d in range(4):
            e(f"v_add_f32 v{AF+4*i+d}, v{AF+4*i+d}, v{BF+4*i+d}")
        for h in range(2):
            e(f"v_cvt_pk_bf16_f32 v{X1+2*i+h}, v{AF+4*i+2*h}, v{AF+4*i+2*h+1}")
        e(f"buffer_store_dwordx2 v[{X1+2*i}:{X1+2*i+1}], v{214+i}, s[40:43], s44 offen")
    if diag:
        e("s_waitcnt vmcnt(0)")
        stamp(k, 1, 10, 4, 48, 220)
    e(f"{L('end')}:")
    e("s_endpgm")
    return k
```

```python
import sys
import k1, k2, k3, k4, k5

HEADER = open("adaLN_cond__spectral_fnet__mixer_gmlp__prompt.s.ref").read().split("; Override launch")[0]


def make(diag=False):
    ks = [k1.build(diag), k2.build(diag), k3.build(diag), k4.build(diag), k5.build(diag)]
    out = HEADER + "\n".join(k.launch_line() for k in ks) + "\n"
    out += '.amdgcn_target "amdgcn-amd-amdhsa--gfx950"\n.text\n'
    out += "\n".join(k.text() for k in ks) + "\n"
    out += k2.tables() + "\ncode_end:\n" + '.section .rodata,"a"\n' + "".join(k.desc() for k in ks)
    return out, ks


if __name__ == "__main__":
    diag = "dbg" if "dbg" in sys.argv else ("diag" in sys.argv)
    out, ks = make(diag)
    path = sys.argv[1]
    open(path, "w").write(out)
    print("P4 waits", ks[3].waits)
```

```python
from asmlib import *

S, D, F, FH = 2048, 640, 1728, 864
WS_MOD, SZ_MOD = 0x000000, 6 * 640 * 4
WS_STATS, SZ_STATS = 0x004000, 2048 * 8
WS_V, SZ_V = 0x100000, 2048 * 1280
WS_X1, SZ_X1 = 0x380000, 2048 * 1280
WS_H2, SZ_H2 = 0x600000, 2048 * 1280
WS_Z1P, SZ_Z1P = 0x880000, 64 * 8 * 7 * 1024
WS_Z2P, SZ_Z2P = 0xC00000, 64 * 8 * 7 * 1024
WS_A5P, SZ_A5P = 0xF80000, 128 * 28 * 1024
WS_WINP, SZ_WINP = 0x1300000, 16 * 20 * 7 * 1024
WS_WOUTP, SZ_WOUTP = 0x1530000, 8 * 28 * 5 * 1024
WS_TS = 0x1800000

KA_X, KA_WIN, KA_WSP, KA_BSP, KA_WOUT, KA_C, KA_WMOD, KA_OUT, KA_DBG, KA_WS = 0, 48, 56, 64, 72, 80, 88, 96, 104, 112


def srd(k, s, ptr, off, size):
    if off:
        k.e(f"s_add_u32 s{s}, s{ptr}, 0x{off:x}")
        k.e(f"s_addc_u32 s{s+1}, s{ptr+1}, 0")
    else:
        k.e(f"s_mov_b32 s{s}, s{ptr}")
        k.e(f"s_mov_b32 s{s+1}, s{ptr+1}")
    k.e(f"s_mov_b32 s{s+2}, 0x{size:x}")
    k.e(f"s_mov_b32 s{s+3}, 0x20000")


def fbase(kappa, h):
    p, q = divmod(kappa, 7)
    if q < 3:
        return 216 * p + 32 * q + 16 * h
    if q < 6:
        return 216 * p + 112 + 32 * (q - 3) + 16 * h
    return 216 * p + (96 if h == 0 else 208)


def colstart(nb):
    return 216 * (nb // 2) + 112 * (nb % 2)


def dma_rows1280_addr(k, vlane, vdst, tmp, rowstride):
    for n in range(5):
        C, row, ch = tmp, tmp + 1, tmp + 2
        k.e(f"v_add_u32 v{C}, {64*n}, v{vlane}")
        k.e(f"v_mul_u32_u24 v{row}, 205, v{C}")
        k.e(f"v_lshrrev_b32 v{row}, 14, v{row}")
        k.e(f"v_mul_u32_u24 v{ch}, 80, v{row}")
        k.e(f"v_sub_u32 v{ch}, v{C}, v{ch}")
        k.e(f"v_lshlrev_b32 v{C}, 1, v{row}")
        k.e(f"v_xor_b32 v{ch}, v{ch}, v{C}")
        k.e(f"v_lshlrev_b32 v{ch}, 4, v{ch}")
        k.e(f"v_mul_u32_u24 v{row}, {rowstride}, v{row}")
        k.e(f"v_add_u32 v{vdst+n}, v{row}, v{ch}")


def dma_rows1280_issue(k, vaddr, srd_s, s_goff, s_lds, s_tmp, rowstride):
    for half in range(2):
        if half == 1:
            for n in range(5):
                k.e(f"v_xor_b32 v{vaddr+n}, 128, v{vaddr+n}")
            k.e(f"s_add_u32 s{s_tmp}, s{s_goff}, {4*rowstride}")
        so = s_goff if half == 0 else s_tmp
        for n in range(5):
            k.e(f"s_add_u32 m0, s{s_lds}, {(half*5+n)*1024}")
            k.e(f"buffer_load_dwordx4 v{vaddr+n}, s[{srd_s}:{srd_s+3}], s{so} offen lds")


NTS = 12


def ts(k, i):
    if k.diag:
        k.e(f"s_memrealtime s[{64+2*i}:{65+2*i}]")


def ts_begin(k):
    if k.diag:
        for i in range(NTS):
            k.e(f"s_mov_b32 s{64+2*i}, 0")
        k.e("s_memtime s[88:89]")
        k.e("s_memrealtime s[64:65]")


def ts_end(k, kidx, ws_ptr_s, vtmp):
    if not k.diag:
        return
    lab = k.lab("tsend")
    k.e("s_waitcnt vmcnt(0)")
    k.e(f"s_memrealtime s[{64+2*(NTS-1)}:{65+2*(NTS-1)}]")
    k.e("s_memtime s[90:91]")
    k.e(f"s_cmp_lg_u32 s3, 0\ns_cbranch_scc1 {lab}")
    srd(k, 92, ws_ptr_s, WS_TS, 0x40000)
    k.e(f"s_lshl_b32 s63, s2, 6\ns_add_u32 s63, s63, {kidx*16384}")
    k.e("s_waitcnt lgkmcnt(0)")
    k.e("s_sub_u32 s90, s90, s88")
    k.e(f"v_mov_b32 v{vtmp+1}, 0")
    for i in range(NTS):
        k.e(f"v_mov_b32 v{vtmp}, s{64+2*i}")
        k.e(f"buffer_store_dword v{vtmp}, v{vtmp+1}, s[92:95], s63 offen offset:{4*i}")
    k.e(f"v_mov_b32 v{vtmp}, s90")
    k.e(f"buffer_store_dword v{vtmp}, v{vtmp+1}, s[92:95], s63 offen offset:{4*NTS}")
    k.e(f"{lab}:")
```

```python
from common import *


def build(diag=False):
    k = Kern("p1_kernel", 256, 512, 112 * 1024, vgpr=128, sgpr=96 if diag else 64)
    k.diag = diag
    e = k.e
    L = k.lab
    ts_begin(k)
    e(f"s_cmp_ge_u32 s2, 255\ns_cbranch_scc1 {L('end')}")
    e(f"s_load_dwordx2 s[4:5], s[0:1], {KA_X}")
    e(f"s_load_dwordx2 s[6:7], s[0:1], {KA_WIN}")
    e(f"s_load_dwordx2 s[8:9], s[0:1], {KA_WOUT}")
    e(f"s_load_dwordx4 s[12:15], s[0:1], {KA_C}")
    e(f"s_load_dwordx2 s[10:11], s[0:1], {KA_WS}")
    e("v_and_b32 v1, 63, v0")
    e("v_lshrrev_b32 v2, 6, v0")
    e("v_readfirstlane_b32 s3, v2")
    e(f"s_cmp_ge_u32 s2, 160\ns_cbranch_scc1 {L('notfft')}")

    TB = 0
    OT = 512
    XL = 16896
    e("s_and_b32 s16, s2, 7\ns_lshr_b32 s17, s2, 3")
    e("s_mul_i32 s18, s17, 205\ns_lshr_b32 s18, s18, 10")
    e("s_mul_i32 s19, s18, 5\ns_sub_u32 s19, s17, s19")
    e("s_lshl_b32 s16, s16, 2\ns_add_u32 s18, s16, s18")
    dma_rows1280_addr(k, 1, 4, 10, 40960)
    e("s_mul_i32 s20, s18, 1280")
    e(f"s_mul_i32 s21, s3, {8*40960}\ns_add_u32 s20, s20, s21")
    e(f"s_mul_i32 s21, s3, 10240\ns_add_u32 s21, s21, {XL}")
    e("s_waitcnt lgkmcnt(0)")
    ts(k, 1)
    srd(k, 24, 4, 0, S * 1280)
    dma_rows1280_issue(k, 4, 24, 20, 21, 22, 40960)
    srd(k, 28, 10, WS_V, SZ_V)
    e("v_and_b32 v10, 15, v1\nv_lshrrev_b32 v11, 4, v1")
    e("s_lshr_b32 s23, s3, 2\ns_lshl_b32 s23, s23, 4")
    e("v_add_u32 v12, s23, v10")
    e("v_cmp_eq_u32 vcc, 0, v12")
    e("v_cvt_f32_u32 v13, v12")
    e(f"v_mul_f32 v13, {fhex(1/64)}, v13")
    e("v_mov_b32 v14, 0.5")
    e("v_cndmask_b32 v14, v13, v14, vcc")
    e(f"v_mov_b32 v15, {fhex(0.25)}")
    e("v_cndmask_b32 v15, v15, 0, vcc")
    e("v_lshlrev_b32 v16, 2, v11\nv_cvt_f32_u32 v16, v16")
    e("v_mul_f32 v17, v13, v16")
    e("v_fma_f32 v18, v14, v16, v15")
    RE, IM = 32, 48
    for ks in range(2):
        for jj in range(8):
            c = 32 * ks + (jj % 4) + 16 * (jj // 4)
            i = 8 * ks + jj
            e(f"v_fmamk_f32 v{RE+i}, v13, {fhex(c)}, v17")
            e(f"v_fmamk_f32 v{IM+i}, v14, {fhex(c)}, v18")
    for i in range(16):
        e(f"v_cos_f32 v{RE+i}, v{RE+i}")
        e(f"v_cos_f32 v{IM+i}, v{IM+i}")
    e("v_lshrrev_b32 v20, 3, v1\nv_and_b32 v21, 7, v1")
    e("v_bfe_u32 v22, v20, 1, 1\nv_lshlrev_b32 v22, 3, v22")
    e("v_add_u32 v22, v22, v21\nv_lshlrev_b32 v22, 4, v22")
    e("v_mul_u32_u24 v23, 1280, v20\nv_add_u32 v22, v22, v23")
    e("v_add_u32 v22, s21, v22")
    e("v_xor_b32 v23, 128, v22")
    e("v_mov_b32 v24, 0x3f803f80")
    for i in range(4):
        e(f"v_mov_b32 v{26+i}, 0")
    ts(k, 2)
    e("s_waitcnt vmcnt(0)")
    ts(k, 3)
    for i in range(10):
        e(f"ds_read_b128 v[{64+4*i}:{67+4*i}], v{22 + i % 2} offset:{256*(i//2)}")
    for i in range(10):
        e(f"s_waitcnt lgkmcnt({9-i})")
        for d in range(4):
            r = 64 + 4 * i + d
            e(f"v_dot2_f32_bf16 v{26 + d % 2}, v{r}, v24, v{26 + d % 2}")
            e(f"v_dot2_f32_bf16 v{28 + d % 2}, v{r}, v{r}, v{28 + d % 2}")
    e("s_nop 2")
    e("v_add_f32 v26, v26, v27\nv_add_f32 v28, v28, v29")
    for m in ("quad_perm:[1,0,3,2]", "quad_perm:[2,3,0,1]", "row_half_mirror"):
        e(f"v_add_f32_dpp v26, v26, v26 {m} row_mask:0xf bank_mask:0xf")
        e(f"v_add_f32_dpp v28, v28, v28 {m} row_mask:0xf bank_mask:0xf")
    e(f"v_mul_f32 v26, {fhex(1/640)}, v26")
    e(f"v_mul_f32 v28, {fhex(1/640)}, v28")
    e("v_fma_f32 v28, -v26, v26, v28")
    e(f"v_add_f32 v28, {fhex(1e-5)}, v28")
    e("v_rsq_f32 v28, v28")
    e("v_sub_f32 v26, 0, v26")
    e("v_cvt_pk_bf16_f32 v26, v26, v26")
    e("s_lshl_b32 s22, s3, 3")
    e("v_add_u32 v20, s22, v20")
    e("v_lshlrev_b32 v21, 2, v20\nv_lshlrev_b32 v20, 1, v20")
    e(f"ds_write_b32 v21, v28 offset:{TB}")
    e(f"ds_write_b16 v20, v26 offset:{TB+256}")
    e("v_bfe_u32 v20, v1, 2, 2\nv_and_b32 v21, 3, v1")
    e("v_lshl_add_u32 v20, v11, 2, v20")
    e("s_and_b32 s22, s3, 3\ns_lshl_b32 s22, s22, 2")
    e("s_lshl_b32 s23, s19, 4\ns_add_u32 s22, s22, s23")
    e("v_add_u32 v21, s22, v21")
    e("v_and_b32 v22, 7, v20\nv_lshlrev_b32 v22, 1, v22")
    e("v_xor_b32 v21, v21, v22\nv_lshlrev_b32 v21, 4, v21")
    e(f"v_mul_u32_u24 v20, 1280, v20\nv_add_u32 v21, {XL}, v21\nv_add_u32 v20, v20, v21")
    e("v_lshlrev_b32 v21, 4, v11\nv_lshlrev_b32 v22, 3, v11")
    e("s_waitcnt lgkmcnt(0)\ns_barrier")
    ts(k, 4)
    RT, MF, DA = 64, 80, 88
    for ks in range(2):
        for h in range(2):
            e(f"ds_read_b128 v[{RT+8*ks+4*h}:{RT+8*ks+4*h+3}], v21 offset:{TB + (32*ks+16*h)*4}")
    for ks in range(2):
        for h in range(2):
            e(f"ds_read_b64 v[{MF+4*ks+2*h}:{MF+4*ks+2*h+1}], v22 offset:{TB + 256 + (32*ks+16*h)*2}")
    for u in range(2):
        for ks in range(2):
            for h in range(2):
                b = DA + 8 * u + 4 * ks + 2 * h
                e(f"ds_read_b64_tr_b16 v[{b}:{b+1}], v20 offset:{8*u + (32*ks+16*h)*1280}")
    e("s_waitcnt lgkmcnt(12)")
    for i in range(16):
        e(f"v_mul_f32 v{RE+i}, v{RE+i}, v{RT+i}")
        e(f"v_mul_f32 v{IM+i}, v{IM+i}, v{RT+i}")
    FR, FI = 104, 112
    for i in range(8):
        e(f"v_cvt_pk_bf16_f32 v{FR+i}, v{RE+2*i}, v{RE+2*i+1}")
        e(f"v_cvt_pk_bf16_f32 v{FI+i}, v{IM+2*i}, v{IM+2*i+1}")
    e("s_waitcnt lgkmcnt(8)")
    KR, KI = 120, 124
    e(f"v_mfma_f32_16x16x32_bf16 v[{KR}:{KR+3}], v[{MF}:{MF+3}], v[{FR}:{FR+3}], 0")
    e(f"v_mfma_f32_16x16x32_bf16 v[{KI}:{KI+3}], v[{MF}:{MF+3}], v[{FI}:{FI+3}], 0")
    e(f"v_mfma_f32_16x16x32_bf16 v[{KR}:{KR+3}], v[{MF+4}:{MF+7}], v[{FR+4}:{FR+7}], v[{KR}:{KR+3}]")
    e(f"v_mfma_f32_16x16x32_bf16 v[{KI}:{KI+3}], v[{MF+4}:{MF+7}], v[{FI+4}:{FI+7}], v[{KI}:{KI+3}]")
    e("s_waitcnt lgkmcnt(0)")
    AC = 32
    for ks in range(2):
        for u in range(2):
            for c, (fm, kk) in enumerate(((FR, KR), (FI, KI))):
                a = AC + 8 * c + 4 * u
                src = f"v[{kk}:{kk+3}]" if ks == 0 else f"v[{a}:{a+3}]"
                d = DA + 8 * u + 4 * ks
                e(f"v_mfma_f32_16x16x32_bf16 v[{a}:{a+3}], v[{d}:{d+3}], v[{fm+4*ks}:{fm+4*ks+3}], {src}")
    e("v_and_b32 v20, 7, v12\nv_lshlrev_b32 v20, 1, v20")
    e("s_and_b32 s22, s3, 3\ns_lshl_b32 s22, s22, 2")
    e("v_add_u32 v21, s22, v11\nv_xor_b32 v21, v21, v20\nv_lshlrev_b32 v21, 4, v21")
    e("v_lshl_add_u32 v21, v12, 9, v21")
    for c in range(2):
        for i in range(4):
            e(f"v_cvt_pk_bf16_f32 v{48+4*c+i}, v{AC+8*c+2*i}, v{AC+8*c+2*i+1}")
    for c in range(2):
        e(f"ds_write_b128 v21, v[{48+4*c}:{51+4*c}] offset:{OT + 256*c}")
    e("s_lshl_b32 s22, s3, 3")
    e("v_add_u32 v22, s22, v11")
    for a in range(2):
        if a:
            e("v_add_u32 v22, 4, v22")
        e("v_bfe_u32 v23, v22, 1, 3\nv_lshlrev_b32 v23, 1, v23")
        e("v_xor_b32 v23, v23, v10\nv_lshlrev_b32 v23, 4, v23")
        e(f"v_lshl_add_u32 v{24+a}, v22, 8, v23")
        e(f"v_mul_u32_u24 v23, 40960, v22")
        e(f"v_lshl_add_u32 v{26+a}, v10, 4, v23")
    e("s_mul_i32 s22, s18, 1280\ns_lshl_b32 s23, s19, 8\ns_add_u32 s22, s22, s23")
    e("s_waitcnt lgkmcnt(0)\ns_barrier")
    ts(k, 5)
    for a in range(2):
        e(f"ds_read_b128 v[{56+4*a}:{59+4*a}], v{24+a} offset:{OT}")
    for a in range(2):
        e(f"s_waitcnt lgkmcnt({1-a})")
        e(f"buffer_store_dwordx4 v[{56+4*a}:{59+4*a}], v{26+a}, s[28:31], s22 offen")
    e(f"s_branch {L('fin')}")

    e(f"{L('notfft')}:")
    e(f"s_cmp_ge_u32 s2, 220\ns_cbranch_scc1 {L('notmod')}")
    e("s_sub_u32 s16, s2, 160")
    e("v_lshrrev_b32 v10, 3, v1\nv_and_b32 v11, 7, v1")
    e("s_mul_i32 s17, s3, 80")
    e("v_add_u32 v12, s17, v10")
    e("v_mul_u32_u24 v13, 7680, v12\nv_lshl_add_u32 v13, v11, 4, v13")
    e("v_lshlrev_b32 v12, 1, v12")
    e("s_lshl_b32 s17, s16, 7")
    e("s_waitcnt lgkmcnt(0)")
    srd(k, 24, 12, 0, 1280)
    srd(k, 28, 14, 0, 640 * 7680)
    for i in range(10):
        e(f"buffer_load_ushort v{20+i}, v12, s[24:27], 0 offen offset:{16*i}")
    for i in range(10):
        e(f"s_add_u32 s18, s17, {i*8*7680}")
        e(f"buffer_load_dwordx4 v[{64+4*i}:{67+4*i}], v13, s[28:31], s18 offen")
    srd(k, 32, 10, WS_MOD, SZ_MOD)
    for j in range(8):
        e(f"v_mov_b32 v{50+j}, 0")
    e("s_waitcnt vmcnt(10)")
    for i in range(10):
        e(f"v_lshlrev_b32 v{20+i}, 16, v{20+i}")
    for i in range(10):
        e(f"v_mul_f32 v{30+i}, {fhex(-1.4426950408889634)}, v{20+i}")
    for i in range(10):
        e(f"v_exp_f32 v{30+i}, v{30+i}")
    for i in range(10):
        e(f"v_add_f32 v{30+i}, 1.0, v{30+i}")
    for i in range(10):
        e(f"v_rcp_f32 v{30+i}, v{30+i}")
    for i in range(10):
        e(f"v_mul_f32 v{20+i}, v{20+i}, v{30+i}")
    for i in range(10):
        e(f"v_cvt_pk_bf16_f32 v{30+i}, v{20+i}, 0")
        e(f"v_cvt_pk_bf16_f32 v{40+i}, 0, v{20+i}")
    for i in range(10):
        e(f"s_waitcnt vmcnt({9-i})")
        for d in range(4):
            e(f"v_dot2_f32_bf16 v{50+2*d}, v{64+4*i+d}, v{30+i}, v{50+2*d}")
            e(f"v_dot2_f32_bf16 v{51+2*d}, v{64+4*i+d}, v{40+i}, v{51+2*d}")
    e("s_nop 2")
    for j in range(4):
        e(f"v_permlane32_swap_b32 v{50+j}, v{54+j}")
    for j in range(4):
        e(f"v_add_f32 v{50+j}, v{50+j}, v{54+j}")
    for j in range(2):
        e(f"v_permlane16_swap_b32 v{50+j}, v{52+j}")
    for j in range(2):
        e(f"v_add_f32 v{50+j}, v{50+j}, v{52+j}")
    e("v_bfe_u32 v14, v1, 3, 1\ns_lshl_b32 s18, s3, 1\nv_add_u32 v14, s18, v14\nv_lshlrev_b32 v14, 8, v14")
    e("v_lshrrev_b32 v15, 4, v1\nv_lshlrev_b32 v15, 3, v15\nv_lshl_add_u32 v15, v11, 5, v15\nv_add_u32 v14, v14, v15")
    e("ds_write_b64 v14, v[50:51]")
    e("s_waitcnt lgkmcnt(0)\ns_barrier")
    e(f"s_cmp_lg_u32 s3, 0\ns_cbranch_scc1 {L('fin')}")
    e("v_lshlrev_b32 v14, 2, v1")
    for p in range(16):
        e(f"ds_read_b32 v{64+p}, v14 offset:{256*p}")
    e("s_waitcnt lgkmcnt(0)")
    for st in (8, 4, 2, 1):
        for p in range(st):
            e(f"v_add_f32 v{64+p}, v{64+p}, v{64+p+st}")
    e("v_cvt_pk_bf16_f32 v64, 0, v64")
    e("s_mul_i32 s18, s16, 205\ns_lshr_b32 s18, s18, 11")
    e("s_cmp_eq_u32 s18, 1\ns_cselect_b32 s19, 1.0, 0")
    e("s_cmp_eq_u32 s18, 4\ns_cselect_b32 s19, 1.0, s19")
    e("v_add_f32 v64, s19, v64")
    e("v_cvt_pk_bf16_f32 v64, 0, v64")
    e("s_lshl_b32 s18, s16, 8")
    e("buffer_store_dword v64, v14, s[32:35], s18 offen")
    e(f"s_branch {L('fin')}")

    e(f"{L('notmod')}:")
    e(f"s_cmp_ge_u32 s2, 240\ns_cbranch_scc1 {L('notwin')}")
    PI = 3488
    e("s_sub_u32 s16, s2, 220")
    e("v_lshlrev_b32 v10, 4, v1")
    e("s_lshl_b32 s17, s16, 5\ns_lshl_b32 s18, s3, 2\ns_add_u32 s17, s17, s18")
    e("s_mul_i32 s17, s17, 3456")
    e("s_and_b32 s18, s3, 1\ns_lshl_b32 s18, s18, 4\ns_lshr_b32 s19, s3, 1\ns_lshl_b32 s19, s19, 2\ns_add_u32 s18, s18, s19")
    e(f"s_mul_i32 s18, s18, {PI}")
    e("s_waitcnt lgkmcnt(0)")
    srd(k, 24, 6, 0, 640 * 3456)
    for i in range(4):
        if i == 3:
            e("s_mov_b64 exec, 0xffffff")
        for r in range(4):
            e(f"s_add_u32 s19, s17, {r*3456 + i*1024}")
            e(f"s_add_u32 m0, s18, {r*PI + i*1024}")
            e("buffer_load_dwordx4 v10, s[24:27], s19 offen lds")
    e("s_mov_b64 exec, -1")
    srd(k, 28, 10, WS_WINP, SZ_WINP)
    e("v_lshrrev_b32 v11, 2, v1\nv_and_b32 v12, 3, v1")
    e(f"v_mul_u32_u24 v11, {PI}, v11\nv_lshl_add_u32 v11, v12, 3, v11")
    e("s_mul_i32 s19, s3, 432\nv_add_u32 v11, s19, v11")
    e("s_mul_i32 s19, s3, 40\ns_add_u32 s19, s19, s16\ns_mul_i32 s19, s19, 7168")
    e("s_waitcnt vmcnt(0)\ns_barrier")
    for i in range(14):
        for h in range(2):
            b = 16 + 4 * i + 2 * h
            e(f"ds_read_b64_tr_b16 v[{b}:{b+1}], v11 offset:{32*i + 16*PI*h}")
        if i >= 6:
            j = i - 6
            e(f"s_waitcnt lgkmcnt(12)")
            e(f"s_add_u32 s20, s19, {(j//7)*20*7168 + (j%7)*1024}")
            e(f"buffer_store_dwordx4 v[{16+4*j}:{19+4*j}], v10, s[28:31], s20 offen")
    for j in range(8, 14):
        e(f"s_waitcnt lgkmcnt({2*(13-j)})")
        e(f"s_add_u32 s20, s19, {(j//7)*20*7168 + (j%7)*1024}")
        e(f"buffer_store_dwordx4 v[{16+4*j}:{19+4*j}], v10, s[28:31], s20 offen")
    e(f"s_branch {L('fin')}")

    e(f"{L('notwin')}:")
    e(f"s_cmp_ge_u32 s2, 254\ns_cbranch_scc1 {L('zero')}")
    e("s_sub_u32 s16, s2, 240\ns_lshl_b32 s16, s16, 1\ns_lshr_b32 s17, s3, 2\ns_add_u32 s16, s16, s17")
    dma_rows1280_addr(k, 1, 4, 10, 1280)
    e("s_mul_i32 s17, s16, 37\ns_lshr_b32 s17, s17, 8")
    e("s_mul_i32 s18, s17, 7\ns_sub_u32 s18, s16, s18")
    e("s_bfe_u32 s19, s3, 0x10001")
    e("s_lshl_b32 s20, s18, 5\ns_lshl_b32 s21, s19, 4\ns_add_u32 s20, s20, s21")
    e("s_cmp_ge_u32 s18, 3\ns_cselect_b32 s21, 16, 0\ns_add_u32 s20, s20, s21")
    e("s_mul_i32 s21, s19, 112\ns_add_u32 s21, s21, 96")
    e("s_cmp_eq_u32 s18, 6\ns_cselect_b32 s20, s21, s20")
    e("s_mul_i32 s21, s17, 216\ns_add_u32 s20, s20, s21")
    e("s_and_b32 s21, s3, 1\ns_lshl_b32 s21, s21, 3\ns_add_u32 s20, s20, s21")
    e("s_mul_i32 s20, s20, 1280\ns_mul_i32 s21, s3, 10240")
    e("s_waitcnt lgkmcnt(0)")
    srd(k, 24, 8, 0, 864 * 1280)
    dma_rows1280_issue(k, 4, 24, 20, 21, 22, 1280)
    srd(k, 28, 10, WS_WOUTP, SZ_WOUTP)
    e("v_lshrrev_b32 v10, 2, v1\nv_and_b32 v11, 3, v1")
    e("v_and_b32 v12, 7, v10\nv_lshlrev_b32 v12, 1, v12")
    e("v_mul_u32_u24 v10, 1280, v10\nv_and_b32 v13, 1, v11\nv_lshl_add_u32 v10, v13, 3, v10")
    e("s_lshr_b32 s17, s3, 2\ns_mul_i32 s17, s17, 40960\nv_add_u32 v10, s17, v10")
    e("s_and_b32 s17, s3, 3\ns_mul_i32 s18, s17, 20\nv_lshrrev_b32 v11, 1, v11\nv_add_u32 v11, s18, v11")
    for i in range(10):
        e(f"v_add_u32 v13, {2*i}, v11\nv_xor_b32 v13, v13, v12\nv_lshl_add_u32 v{20+i}, v13, 4, v10")
    e("s_mul_i32 s17, s17, 56\ns_add_u32 s17, s17, s16\ns_mul_i32 s17, s17, 5120")
    e("v_lshlrev_b32 v10, 4, v1")
    e("s_waitcnt vmcnt(0)\ns_barrier")
    for i in range(10):
        for h in range(2):
            b = 32 + 4 * i + 2 * h
            e(f"ds_read_b64_tr_b16 v[{b}:{b+1}], v{20+i} offset:{16*1280*h}")
        if i >= 6:
            j = i - 6
            e("s_waitcnt lgkmcnt(12)")
            e(f"s_add_u32 s20, s17, {(j//5)*28*5120 + (j%5)*1024}")
            e(f"buffer_store_dwordx4 v[{32+4*j}:{35+4*j}], v10, s[28:31], s20 offen")
    for j in range(4, 10):
        e(f"s_waitcnt lgkmcnt({2*(9-j)})")
        e(f"s_add_u32 s20, s17, {(j//5)*28*5120 + (j%5)*1024}")
        e(f"buffer_store_dwordx4 v[{32+4*j}:{35+4*j}], v10, s[28:31], s20 offen")
    e(f"s_branch {L('fin')}")

    e(f"{L('zero')}:")
    e("s_waitcnt lgkmcnt(0)")
    srd(k, 24, 10, WS_STATS, SZ_STATS)
    e("v_lshlrev_b32 v10, 4, v0")
    for i in range(4):
        e(f"v_mov_b32 v{12+i}, 0")
    e("buffer_store_dwordx4 v[12:15], v10, s[24:27], 0 offen")
    e("s_mov_b32 s16, 8192")
    e("buffer_store_dwordx4 v[12:15], v10, s[24:27], s16 offen")
    e(f"{L('fin')}:")
    ts_end(k, 0, 10, 100)
    e(f"{L('end')}:")
    e("s_endpgm")
    return k
```

```python
from common import *
import numpy as np

TAB_FA, TAB_TW, TAB_FB, TAB_SZ = 0, 2048, 2048 + 5120, 2048 + 5120 + 9216


def bf16_bits(x):
    u = np.asarray(x, dtype=np.float32).view(np.uint32).astype(np.uint64)
    return ((u + 0x7FFF + ((u >> 16) & 1)) >> 16).astype(np.uint16)


def tables():
    fa = np.zeros((2, 64, 8))
    fb = np.zeros((3, 3, 64, 8))
    for l in range(64):
        m, g = l % 16, l // 16
        for jj in range(8):
            c = jj % 2
            for a in range(2):
                e1, cp, d1 = 8 * a + 2 * (m // 4) + (m % 4) // 2, m % 2, 4 * g + jj // 2
                th = 2 * np.pi * ((e1 * d1) % 16) / 16
                fa[a, l, jj] = [[np.cos(th), np.sin(th)], [-np.sin(th), np.cos(th)]][cp][c]
            for b in range(3):
                for ks in range(3):
                    e2, d2 = 16 * b + m, 16 * ks + 4 * g + jj // 2
                    ps = 2 * np.pi * ((e2 * d2) % 40) / 40
                    fb[b, ks, l, jj] = 0.0 if d2 >= 40 else (np.cos(ps) if c == 0 else np.sin(ps))
    tw = np.zeros((40, 16, 2), dtype=np.float32)
    for d2 in range(40):
        for e1 in range(16):
            th = 2 * np.pi * e1 * d2 / 640
            tw[d2, e1] = (np.cos(th), np.sin(th))
    raw = bf16_bits(fa).tobytes() + tw.tobytes() + bf16_bits(fb).tobytes()
    assert len(raw) == TAB_SZ
    w = np.frombuffer(raw, dtype=np.uint32)
    out = [".p2align 8", ".type p2_tab,@object", "p2_tab:"]
    for i in range(0, len(w), 8):
        out.append("  .long " + ",".join(f"0x{x:x}" for x in w[i:i + 8]))
    out.append(f".size p2_tab, {TAB_SZ}")
    return "\n".join(out)


def wave_allsum(k, r, t):
    for m in ("quad_perm:[1,0,3,2]", "quad_perm:[2,3,0,1]", "row_half_mirror", "row_mirror"):
        k.e(f"v_add_f32_dpp v{r}, v{r}, v{r} {m} row_mask:0xf bank_mask:0xf")
    for sw in ("v_permlane16_swap_b32", "v_permlane32_swap_b32"):
        k.e(f"v_mov_b32 v{t}, v{r}")
        k.e(f"{sw} v{r}, v{t}")
        k.e(f"v_add_f32 v{r}, v{r}, v{t}")


def build(diag=False):
    HB, HJ = 0, 800 * 4
    TB, TJ, TE = HB + 8 * HJ, 704 * 4, 44 * 4
    YB, YJ = 0, 772 * 4
    TABL = TB + 5 * TJ
    MODL = TABL + TAB_SZ
    VL = MODL + 16384
    assert VL % 256 == 0
    k = Kern("p2_kernel", 256, 512, VL + 81920, vgpr=208, sgpr=96 if diag else 64)
    k.diag = diag
    e = k.e
    L = k.lab
    ts_begin(k)
    e(f"s_cmp_ge_u32 s2, 256\ns_cbranch_scc1 {L('end')}")
    e(f"s_load_dwordx2 s[4:5], s[0:1], {KA_X}")
    e(f"s_load_dwordx2 s[10:11], s[0:1], {KA_WS}")
    e(f"s_load_dwordx2 s[8:9], s[0:1], {KA_WSP}")
    e("s_getpc_b64 s[6:7]")
    e("s_add_u32 s6, s6, p2_tab@rel32@lo+4\ns_addc_u32 s7, s7, p2_tab@rel32@hi+12")
    e("v_and_b32 v1, 63, v0\nv_lshrrev_b32 v2, 6, v0\nv_readfirstlane_b32 s3, v2")
    e("s_and_b32 s14, s2, 7\ns_lshr_b32 s15, s2, 3")
    e("s_lshl_b32 s16, s14, 2\ns_lshr_b32 s18, s15, 3\ns_add_u32 s16, s16, s18")
    e("s_and_b32 s17, s15, 7")
    e("v_lshlrev_b32 v9, 4, v1")
    e(f"s_cmp_ge_u32 s3, 4\ns_cbranch_scc1 {L('tabs')}")
    dma_rows1280_addr(k, 1, 4, 10, 1280)
    e(f"s_mul_i32 s21, s3, 20480\ns_mul_i32 s20, s16, 81920\ns_add_u32 s20, s20, s21\ns_add_u32 s21, s21, {VL}")
    e("s_waitcnt lgkmcnt(0)")
    ts(k, 1)
    srd(k, 24, 10, WS_V, SZ_V)
    dma_rows1280_issue(k, 4, 24, 20, 21, 22, 1280)
    for n in range(5):
        e(f"v_xor_b32 v{4+n}, 128, v{4+n}")
    e("s_add_u32 s20, s20, 10240\ns_add_u32 s21, s21, 10240")
    dma_rows1280_issue(k, 4, 24, 20, 21, 22, 1280)
    e(f"s_branch {L('common')}")
    e(f"{L('tabs')}:")
    e("s_sub_u32 s20, s3, 4\ns_lshl_b32 s20, s20, 12")
    e("s_waitcnt lgkmcnt(0)")
    srd(k, 28, 10, WS_MOD, SZ_MOD)
    srd(k, 32, 6, 0, TAB_SZ)
    e(f"s_add_u32 m0, s20, {MODL}")
    for i in range(4):
        e(f"buffer_load_dwordx4 v9, s[28:31], s20 offen offset:{1024*i} lds")
    e(f"s_add_u32 m0, s20, {TABL}")
    for i in range(4):
        e(f"buffer_load_dwordx4 v9, s[32:35], s20 offen offset:{1024*i} lds")
    e(f"{L('common')}:")
    srd(k, 36, 4, 0, S * 1280)
    e("s_lshl_b32 s18, s17, 8\ns_add_u32 s18, s18, s16")
    e("s_mov_b32 s19, 1.0\ns_mov_b32 s20, 1.0")
    e(f"s_mov_b32 s21, {fhex(-0.25)}")
    e(f"s_cmp_lg_u32 s16, 0\ns_cbranch_scc1 {L('par')}")
    e("s_cmp_ge_u32 s17, 4")
    e("s_cselect_b32 s19, 0, 1.0\ns_cselect_b32 s20, 1.0, 0\ns_cselect_b32 s22, 992, 0")
    e("s_sub_u32 s18, s18, s22\ns_mov_b32 s21, 0")
    e(f"{L('par')}:")
    e("s_and_b32 s44, s3, 3\ns_lshl_b32 s42, s44, 6\ns_add_u32 s42, s42, s18")
    e("s_lshr_b32 s43, s3, 2\ns_sub_u32 s45, 2048, s42")
    e("s_cmp_eq_u32 s43, 1\ns_cselect_b32 s42, s45, s42")
    e("s_cmp_eq_u32 s42, 2048")
    e("s_cselect_b32 s42, 1024, s42\ns_cselect_b32 s43, 0, s43\ns_cselect_b32 s44, 4, s44")
    e("s_mul_i32 s45, s42, 1280")
    CA, SA, FA, TW, FB, X, GA, CB, SB = 20, 25, 32, 40, 56, 80, 86, 96, 106
    e("v_lshlrev_b32 v126, 3, v1\nv_lshlrev_b32 v125, 2, v1")
    e(f"buffer_load_dwordx2 v[{X}:{X+1}], v126, s[36:39], s45 offen")
    e(f"buffer_load_dwordx2 v[{X+2}:{X+3}], v126, s[36:39], s45 offen offset:512")
    e(f"buffer_load_dword v{X+4}, v125, s[36:39], s45 offen offset:1024")
    ts(k, 2)
    srd(k, 24, 10, WS_X1, SZ_X1)
    srd(k, 36, 10, WS_H2, SZ_H2)
    e("v_and_b32 v10, 15, v1\nv_lshrrev_b32 v11, 4, v1")
    e("v_lshrrev_b32 v14, 2, v10\nv_and_b32 v15, 3, v10")
    e("s_lshl_b32 s22, s3, 3\nv_add_u32 v16, s22, v15\nv_add_u32 v17, 4, v16")
    e(f"s_cmp_lt_u32 s3, 5\ns_cbranch_scc1 {L('pa')}")
    e("s_sub_u32 s22, s3, 5\ns_lshl_b32 s22, s22, 4")
    e("v_mov_b32 v14, 4\nv_add_u32 v16, s22, v10\nv_min_u32 v16, 39, v16\nv_mov_b32 v17, v16")
    e(f"{L('pa')}:")
    RA, TA, TWA, FBA = 116, 118, 138, 204
    for r in range(2):
        e(f"v_lshlrev_b32 v18, 7, v{16+r}\nv_lshl_add_u32 v{TWA+r}, v11, 4, v18")
        e(f"v_mul_u32_u24 v18, {HJ}, v14\nv_mul_u32_u24 v19, 80, v{16+r}\nv_add_u32 v18, v18, v19")
        e(f"v_lshl_add_u32 v{RA+r}, v11, 4, v18")
        e(f"v_mul_u32_u24 v18, {TJ}, v14\nv_mul_u32_u24 v19, {2*TE}, v11\nv_add_u32 v18, v18, v19")
        e(f"v_lshl_add_u32 v{TA+r}, v{16+r}, 2, v18")
    RB, RBC, YA = 120, 122, 4
    for r in range(2):
        e(f"s_add_u32 s22, s3, {8*r}\ns_min_u32 s22, s22, 14")
        e("s_mul_i32 s23, s22, 86\ns_lshr_b32 s23, s23, 8")
        e("s_mul_i32 s40, s23, 3\ns_sub_u32 s40, s22, s40")
        e(f"s_mul_i32 s41, s40, 3072\nv_add_u32 v{6+r}, s41, v9")
        e("s_lshl_b32 s41, s23, 2")
        e("v_lshrrev_b32 v2, 2, v10\nv_and_b32 v3, 3, v10\nv_add_u32 v3, s41, v3")
        e("v_mov_b32 v18, v11\nv_mov_b32 v19, s41")
        e(f"s_cmp_lt_u32 s23, 4\ns_cbranch_scc1 {L('pb%d' % r)}")
        e("v_mov_b32 v2, 4\nv_mov_b32 v3, v10\nv_mov_b32 v18, 4\nv_lshlrev_b32 v19, 2, v11")
        e(f"{L('pb%d' % r)}:")
        e(f"v_mul_u32_u24 v2, {TJ}, v2\nv_mul_u32_u24 v3, {TE}, v3\nv_add_u32 v2, v2, v3")
        e(f"v_lshl_add_u32 v{RB+r}, v11, 4, v2")
        e(f"v_and_b32 v3, 1, v11\nv_lshl_add_u32 v{RBC+r}, v3, 4, v2")
        e(f"v_mul_u32_u24 v18, {YJ}, v18\nv_lshl_add_u32 v18, v19, 2, v18\nv_lshl_add_u32 v18, v10, 6, v18")
        e(f"s_lshl_b32 s41, s40, 10\nv_add_u32 v{YA+r}, s41, v18")
    M, MF = 128, 144
    e("v_lshrrev_b32 v2, 1, v10\nv_and_b32 v3, 1, v10")
    e("v_lshlrev_b32 v12, 6, v2\nv_add_u32 v12, s18, v12")
    e("v_cmp_eq_u32 vcc, 4, v2\nv_mov_b32 v13, 1024\nv_cndmask_b32 v12, v12, v13, vcc")
    e(f"v_cvt_f32_u32 v12, v12\nv_mul_f32 v12, {fhex(1/2048)}, v12")
    e(f"v_cvt_f32_u32 v3, v3\nv_mul_f32 v3, {fhex(0.25)}, v3")
    e("v_lshlrev_b32 v13, 2, v11\nv_cvt_f32_u32 v13, v13\nv_fma_f32 v13, v12, v13, v3")
    MT = 152
    for jj in range(8):
        c = (jj % 4) + 16 * (jj // 4)
        e(f"v_fmamk_f32 v{MT+jj}, v12, {fhex(c)}, v13")
        e(f"v_add_f32 v{MT+8+jj}, s21, v{MT+jj}")
    for i in range(16):
        e(f"v_cos_f32 v{MT+i}, v{MT+i}")
    for i in range(16):
        e(f"v_mul_f32 v{MT+i}, s{19 + i // 8}, v{MT+i}")
    for i in range(8):
        e(f"v_cvt_pk_bf16_f32 v{MF+i}, v{MT+2*i}, v{MT+2*i+1}")
    TR, HW = 128, 133
    e("v_lshrrev_b32 v2, 2, v1\nv_and_b32 v3, 3, v1")
    e("v_and_b32 v12, 7, v2\nv_lshlrev_b32 v12, 1, v12")
    e(f"v_mul_u32_u24 v2, 1280, v2\nv_and_b32 v13, 1, v3\nv_lshl_add_u32 v2, v13, 3, v2\nv_add_u32 v2, {VL}, v2")
    e("s_mul_i32 s22, s3, 10\nv_lshrrev_b32 v3, 1, v3\nv_add_u32 v3, s22, v3")
    for u in range(5):
        e(f"v_add_u32 v13, {2*u}, v3\nv_xor_b32 v13, v13, v12\nv_lshl_add_u32 v{TR+u}, v13, 4, v2")
    e(f"s_mul_i32 s22, s3, 80\nv_add_u32 v2, s22, v10\nv_mul_u32_u24 v3, {2*HJ}, v11")
    e(f"v_lshlrev_b32 v8, 2, v2\nv_add_u32 v8, {MODL}, v8\nv_add_u32 v124, {MODL}, v9\nv_add_u32 v15, {MODL}, v126")
    for u in range(5):
        e(f"v_add_u32 v12, {16*u}, v2\nv_mul_u32_u24 v13, 205, v12\nv_lshrrev_b32 v13, 13, v13")
        e(f"v_mul_u32_u24 v18, 40, v13\nv_sub_u32 v12, v12, v18\nv_mul_u32_u24 v12, 80, v12")
        e(f"v_lshl_add_u32 v12, v13, 2, v12\nv_add_u32 v{HW+u}, v12, v3")
    e(f"s_cmp_eq_u32 s2, 0\ns_cselect_b32 s22, {fhex(2048.0)}, 0")
    e("v_cmp_eq_u32 vcc, 0, v11\nv_mov_b32 v2, s22\nv_cndmask_b32 v127, 0, v2, vcc")
    e(f"s_mul_i32 s22, s44, {YJ}\ns_add_u32 s22, s22, {YB}")
    e(f"s_cmp_eq_u32 s43, 1\ns_cselect_b32 s40, {639*4}, 0\ns_cselect_b32 s41, -1, 1")
    e("s_add_u32 s22, s22, s40\nv_mov_b32 v2, s22\nv_mad_i32_i24 v16, s41, v9, v2\nv_mad_i32_i24 v14, s41, v126, v2")
    e("s_lshl_b32 s40, s41, 3\nv_add_u32 v17, s40, v16\ns_lshl_b32 s40, s41, 10\nv_add_u32 v18, s40, v16\nv_add_u32 v19, s40, v17")
    e("s_lshl_b32 s40, s41, 11\nv_add_u32 v14, s40, v14")
    ts(k, 3)
    e(f"s_waitcnt vmcnt(3)\ns_barrier")
    ts(k, 4)
    e("s_lshl_b32 s22, s15, 2\ns_and_b32 s23, s3, 3\ns_add_u32 s22, s22, s23\ns_lshl_b32 s22, s22, 13\nv_lshlrev_b32 v2, 7, v1")
    e(f"s_cmp_lt_u32 s3, 4\ns_cbranch_scc1 {L('pf1')}")
    srd(k, 48, 8, 0, S * 4096)
    e("s_and_b32 s40, s14, 3\ns_lshl_b32 s40, s40, 21\ns_add_u32 s40, s40, s22\ns_lshr_b32 s23, s14, 2\ns_lshl_b32 s23, s23, 20\ns_add_u32 s40, s40, s23")
    e("buffer_load_dword v207, v2, s[48:51], s40 offen")
    e(f"s_branch {L('pf2')}")
    e(f"{L('pf1')}:")
    srd(k, 48, 10, WS_WINP, SZ_WINP)
    e(f"s_lshr_b32 s40, s14, 2\ns_mul_i32 s40, s40, {SZ_WINP//4}\ns_add_u32 s40, s40, s22")
    e(f"s_cmp_ge_u32 s22, {64*8192}\ns_cselect_b32 s23, {SZ_WINP//2 - 64*8192}, 0\ns_add_u32 s40, s40, s23")
    e("buffer_load_dword v207, v2, s[48:51], s40 offen")
    e(f"{L('pf2')}:")
    DA = 152
    for u in range(5):
        for ks in range(2):
            for h in range(2):
                b = DA + 8 * u + 4 * ks + 2 * h
                e(f"ds_read_b64_tr_b16 v[{b}:{b+1}], v{TR+u} offset:{(32*ks+16*h)*1280}")
        e(f"ds_read2st64_b32 v[{CA+2*u}:{CA+2*u+1}], v8 offset0:0 offset1:10")
        if u < 4:
            e("v_add_u32 v8, 64, v8")
        if u >= 2:
            uu = u - 2
            e("s_waitcnt lgkmcnt(10)")
            step1(e, uu, DA, MF)
    for uu in (3, 4):
        e(f"s_waitcnt lgkmcnt({5*(4-uu)})")
        step1(e, uu, DA, MF)
    for a in range(2):
        e(f"ds_read_b128 v[{FA+4*a}:{FA+4*a+3}], v9 offset:{TABL + TAB_FA + 1024*a}")
    for r in range(2):
        for a in range(2):
            b = TW + 8 * r + 4 * a
            e(f"ds_read_b128 v[{b}:{b+3}], v{TWA+r} offset:{TABL + TAB_TW + 64*a}")
    for u in range(5):
        a = ACCR(u)
        sa, ca = CA + 2 * u, CA + 2 * u + 1
        e(f"v_mul_f32 v{sa}, v{sa}, v127")
        e(f"v_fma_f32 v{a}, v{a}, v{ca}, v{sa}")
        for i in range(1, 4):
            e(f"v_mul_f32 v{a+i}, v{a+i}, v{ca}")
        e(f"v_cvt_pk_bf16_f32 v{a}, v{a}, v{a+1}")
        e(f"v_cvt_pk_bf16_f32 v{a+2}, v{a+2}, v{a+3}")
        e(f"ds_write_b32 v{HW+u}, v{a} offset:{HB}")
        e(f"ds_write_b32 v{HW+u}, v{a+2} offset:{HB+HJ}")
    e("s_waitcnt lgkmcnt(0)\ns_barrier")
    ts(k, 5)
    for r in range(2):
        e(f"ds_read_b128 v[{152+4*r}:{155+4*r}], v{RA+r} offset:{HB}")
    for r in range(2):
        for ks in range(3):
            b = FB + 12 * r + 4 * ks
            e(f"ds_read_b128 v[{b}:{b+3}], v{6+r} offset:{TABL + TAB_FB + 1024*ks}")
    for r in range(2):
        e(f"s_waitcnt lgkmcnt({7-r})")
        for a in range(2):
            d = 160 + 8 * r + 4 * a
            e(f"v_mfma_f32_16x16x32_bf16 v[{d}:{d+3}], v[{FA+4*a}:{FA+4*a+3}], v[{152+4*r}:{155+4*r}], 0")
    for r in range(2):
        for a in range(2):
            for p in range(2):
                br, bi = 160 + 8 * r + 4 * a + 2 * p, 161 + 8 * r + 4 * a + 2 * p
                tc, tsn = TW + 8 * r + 4 * a + 2 * p, TW + 8 * r + 4 * a + 2 * p + 1
                t = 176 + 8 * r + 4 * a + 2 * p
                e(f"v_mul_f32 v{t}, v{br}, v{tc}")
                e(f"v_mul_f32 v{t+1}, v{bi}, v{tc}")
                e(f"v_fma_f32 v{t}, v{bi}, v{tsn}, v{t}")
                e(f"v_fma_f32 v{t+1}, -v{br}, v{tsn}, v{t+1}")
                e(f"v_cvt_pk_bf16_f32 v{t}, v{t}, v{t+1}")
                e(f"ds_write_b32 v{TA+r}, v{t} offset:{TB + (8*a+p)*TE}")
    e("s_waitcnt lgkmcnt(0)\ns_barrier")
    ts(k, 6)
    for r in range(2):
        for ks in range(3):
            b = 152 + 12 * r + 4 * ks
            e(f"ds_read_b128 v[{b}:{b+3}], v{(RB if ks < 2 else RBC)+r} offset:{TB + 64*ks}")
    for (reg, ch) in ((GA, 2), (CB, 4), (SB, 3)):
        e(f"ds_read_b128 v[{reg}:{reg+3}], v124 offset:{ch*2560}")
        e(f"ds_read_b128 v[{reg+4}:{reg+7}], v124 offset:{ch*2560+1024}")
        e(f"ds_read_b64 v[{reg+8}:{reg+9}], v15 offset:{ch*2560+2048}")
    for r in range(2):
        for ks in range(3):
            b = 152 + 12 * r + 4 * ks
            d = 176 + 4 * r
            e(f"s_waitcnt lgkmcnt({9 + 5 - 3*r - ks})")
            src = "0" if ks == 0 else f"v[{d}:{d+3}]"
            e(f"v_mfma_f32_16x16x32_bf16 v[{d}:{d+3}], v[{b}:{b+3}], v[{FB+12*r+4*ks}:{FB+12*r+4*ks+3}], {src}")
    XF = 186
    e("s_waitcnt vmcnt(1)")
    for u in range(5):
        e(f"v_lshlrev_b32 v{XF+2*u}, 16, v{X+u}")
        e(f"v_and_b32 v{XF+2*u+1}, 0xffff0000, v{X+u}")
    for r in range(2):
        e(f"ds_write_b128 v{YA+r}, v[{176+4*r}:{179+4*r}] offset:{YB}")
    e("s_waitcnt lgkmcnt(0)\ns_barrier")
    ts(k, 7)
    Y = 152
    for u, ad in enumerate((16, 17, 18, 19, 14)):
        e(f"ds_read2_b32 v[{Y+2*u}:{Y+2*u+1}], v{ad} offset0:0 offset1:1")
    e("s_waitcnt lgkmcnt(0)")
    e(f"s_cmp_eq_u32 s43, 0\ns_cbranch_scc1 {L('nosw')}")
    for u in range(5):
        e(f"v_swap_b32 v{Y+2*u}, v{Y+2*u+1}")
    e(f"{L('nosw')}:")
    for i in range(10):
        e(f"v_fma_f32 v{XF+i}, v{GA+i}, v{Y+i}, v{XF+i}")
    for u in range(5):
        e(f"v_cvt_pk_bf16_f32 v{X+u}, v{XF+2*u}, v{XF+2*u+1}")

    def store3(R, sd):
        e(f"buffer_store_dwordx2 v[{R}:{R+1}], v126, s[{sd}:{sd+3}], s45 offen")
        e(f"buffer_store_dwordx2 v[{R+2}:{R+3}], v126, s[{sd}:{sd+3}], s45 offen offset:512")
        e(f"buffer_store_dword v{R+4}, v125, s[{sd}:{sd+3}], s45 offen offset:1024")

    store3(X, 24)
    for u in range(5):
        e(f"v_lshlrev_b32 v{XF+2*u}, 16, v{X+u}")
        e(f"v_and_b32 v{XF+2*u+1}, 0xffff0000, v{X+u}")
    for i in range(5):
        e(f"v_add_f32 v{Y+i}, v{XF+2*i}, v{XF+2*i+1}")
    e(f"v_add_f32 v{Y}, v{Y}, v{Y+1}\nv_add_f32 v{Y+2}, v{Y+2}, v{Y+3}\nv_add_f32 v{Y}, v{Y}, v{Y+4}\nv_add_f32 v{Y}, v{Y}, v{Y+2}")
    wave_allsum(k, Y, Y + 1)
    e(f"v_mul_f32 v{Y}, {fhex(-1/640)}, v{Y}")
    for i in range(10):
        e(f"v_add_f32 v{XF+i}, v{XF+i}, v{Y}")
    e(f"v_mul_f32 v{Y}, v{XF}, v{XF}\nv_mul_f32 v{Y+1}, v{XF+1}, v{XF+1}")
    for i in range(2, 10):
        e(f"v_fmac_f32 v{Y + i % 2}, v{XF+i}, v{XF+i}")
    e(f"v_add_f32 v{Y}, v{Y}, v{Y+1}")
    wave_allsum(k, Y, Y + 1)
    e(f"v_mov_b32 v{Y+1}, {fhex(1e-5)}\nv_fmamk_f32 v{Y}, v{Y}, {fhex(1/640)}, v{Y+1}")
    e(f"v_rsq_f32 v{Y}, v{Y}")
    for i in range(10):
        e(f"v_mul_f32 v{XF+i}, v{XF+i}, v{Y}")
    for i in range(10):
        e(f"v_fma_f32 v{XF+i}, v{XF+i}, v{CB+i}, v{SB+i}")
    for u in range(5):
        e(f"v_cvt_pk_bf16_f32 v{Y+2+u}, v{XF+2*u}, v{XF+2*u+1}")
    store3(Y + 2, 36)
    ts(k, 9)
    ts_end(k, 1, 10, 200)
    e(f"{L('end')}:")
    e("s_endpgm")
    return k


def ACCR(u):
    return [192, 196, 200, 140, 28 + 0][u] if False else [192, 196, 200, 140, 112][u]


def step1(e, u, DA, MF):
    a = ACCR(u)
    for ks in range(2):
        d = DA + 8 * u + 4 * ks
        src = "0" if ks == 0 else f"v[{a}:{a+3}]"
        e(f"v_mfma_f32_16x16x32_bf16 v[{a}:{a+3}], v[{MF+4*ks}:{MF+4*ks+3}], v[{d}:{d+3}], {src}")
```

```python
from common import *

C1 = 2 * 0.7978845608028654 * 1.4426950408889634
C2 = C1 * 0.044715


def gelu(e, regs, tmp, vneg_c2):
    n = len(regs)
    for i, r in enumerate(regs):
        e(f"v_mul_f32 v{tmp+i}, v{r}, v{r}")
    for i in range(n):
        e(f"v_fmaak_f32 v{tmp+i}, v{tmp+i}, v{vneg_c2}, {fhex(-C1)}")
    for i, r in enumerate(regs):
        e(f"v_mul_f32 v{tmp+i}, v{tmp+i}, v{r}")
    for i in range(n):
        e(f"v_exp_f32 v{tmp+i}, v{tmp+i}")
    for i in range(n):
        e(f"v_add_f32 v{tmp+i}, 1.0, v{tmp+i}")
    for i in range(n):
        e(f"v_rcp_f32 v{tmp+i}, v{tmp+i}")
    for i, r in enumerate(regs):
        e(f"v_mul_f32 v{r}, v{r}, v{tmp+i}")


def build(diag=False):
    k = Kern("p3_kernel", 256, 768, 163840, vgpr=128, sgpr=96 if diag else 64)
    k.diag = diag
    e = k.e
    L = k.lab
    SL = 32768
    ts_begin(k)
    e(f"s_cmp_ge_u32 s2, 256\ns_cbranch_scc1 {L('end')}")
    e(f"s_load_dwordx2 s[10:11], s[0:1], {KA_WS}")
    e(f"s_load_dwordx2 s[8:9], s[0:1], {KA_WSP}")
    e("v_and_b32 v1, 63, v0\nv_lshrrev_b32 v2, 6, v0\nv_readfirstlane_b32 s3, v2")
    e("s_and_b32 s16, s2, 7\ns_lshr_b32 s17, s2, 3")
    e("s_and_b32 s18, s16, 3\ns_lshl_b32 s18, s18, 2\ns_and_b32 s19, s17, 3\ns_add_u32 s18, s18, s19")
    e("s_lshr_b32 s19, s16, 2\ns_lshl_b32 s19, s19, 3\ns_lshr_b32 s17, s17, 2\ns_add_u32 s19, s19, s17")
    e("v_lshlrev_b32 v5, 4, v1")
    e(f"s_cmp_lt_u32 s3, 4\ns_cbranch_scc1 {L('loader')}")
    e("s_sub_u32 s3, s3, 4")
    e("v_and_b32 v2, 15, v1\nv_lshrrev_b32 v3, 4, v1")
    e("v_lshrrev_b32 v15, 2, v2\nv_and_b32 v16, 3, v2")
    e("v_lshrrev_b32 v17, 1, v16\nv_lshlrev_b32 v17, 2, v17\nv_and_b32 v18, 2, v15\nv_or_b32 v17, v17, v18")
    e("v_xor_b32 v17, v17, v3\nv_lshlrev_b32 v17, 4, v17")
    e("v_lshl_add_u32 v16, v15, 3, v16\nv_lshl_add_u32 v6, v16, 7, v17")
    e("s_and_b32 s23, s3, 3\ns_lshl_b32 s23, s23, 12\nv_add_u32 v6, s23, v6\nv_xor_b32 v7, 64, v6")
    e("s_lshr_b32 s23, s3, 2\ns_lshl_b32 s23, s23, 12\nv_add_u32 v12, s23, v5")
    for b in (1, 2):
        e(f"v_add_u32 v{6+2*b}, {65536*b}, v6\nv_add_u32 v{7+2*b}, {65536*b}, v7\nv_add_u32 v{12+b}, {65536*b}, v12")
    e(f"v_mov_b32 v15, {fhex(-C2)}")
    e("s_lshl_b32 s20, s18, 2\ns_and_b32 s21, s3, 3\ns_add_u32 s20, s20, s21")
    e("s_and_b32 s21, s19, 7")
    e("s_waitcnt lgkmcnt(0)")
    ts(k, 1)
    AC, FRG = 32, 64

    def variant(z2, nt, tag):
        if z2:
            srd(k, 24, 10, WS_Z2P, SZ_Z2P)
            srd(k, 28, 10, WS_STATS, SZ_STATS)
            e("s_lshl_b32 s22, s21, 6\ns_add_u32 s22, s22, s20")
        else:
            srd(k, 24, 10, WS_Z1P, SZ_Z1P)
            e("s_lshl_b32 s22, s20, 3\ns_add_u32 s22, s22, s21")
        e(f"s_mul_i32 s22, s22, 7168")
        if nt == 3:
            e("s_add_u32 s22, s22, 4096")

        def reads(kap):
            st, ks = divmod(kap, 2)
            sl = st % 5
            base, off = sl // 2, (sl % 2) * SL
            b = FRG + 24 * (kap % 2)
            out = []
            for mt in range(2):
                out.append(f"ds_read_b128 v[{b+4*mt}:{b+4*mt+3}], v{6+2*base+ks} offset:{off + 512*mt}")
            for j in range(nt):
                out.append(f"ds_read_b128 v[{b+8+4*j}:{b+11+4*j}], v{12+base} offset:{off + 16384 + (7*ks+j)*1024}")
            return out

        ts(k, 2)
        e("s_barrier")
        ts(k, 3)
        for x in reads(0):
            e(x)
        for kap in range(20):
            nxt = kap + 1
            e("s_waitcnt lgkmcnt(0)")
            if nxt < 20 and nxt % 2 == 0:
                e("s_barrier")
                if nxt // 2 in (2, 4, 6, 8):
                    ts(k, 3 + nxt // 4)
            rd = reads(nxt) if nxt < 20 else []
            b = FRG + 24 * (kap % 2)
            for j in range(nt):
                for mt in range(2):
                    a = AC + 8 * j + 4 * mt
                    h, w = f"v[{b+4*mt}:{b+4*mt+3}]", f"v[{b+8+4*j}:{b+11+4*j}]"
                    src = "0" if kap == 0 else f"v[{a}:{a+3}]"
                    if rd:
                        e(rd.pop(0))
                    e(f"v_mfma_f32_16x16x32_bf16 v[{a}:{a+3}], {h if z2 else w}, {w if z2 else h}, {src}")
        ts(k, 8)
        ST = 96
        for j in range(nt):
            regs = [AC + 8 * j + i for i in range(8)]
            gelu(e, regs, FRG, 15)
            if z2 and nt == 3 and j == 2:
                e("s_and_b32 s23, s19, 1\ns_cmp_eq_u32 s23, 1\ns_cselect_b32 s40, 0x00ff00ff, -1\ns_mov_b32 s41, s40")
                for r in regs:
                    e(f"v_cndmask_b32 v{r}, 0, v{r}, s[40:41]")
            for i in range(4):
                e(f"v_cvt_pk_bf16_f32 v{FRG+8+4*j+i}, v{regs[2*i]}, v{regs[2*i+1]}")
            e(f"buffer_store_dwordx4 v[{FRG+8+4*j}:{FRG+11+4*j}], v5, s[24:27], s22 offen offset:{1024*j}")
            if z2:
                for i, r in enumerate(regs):
                    if j == 0:
                        e(f"v_mov_b32 v{ST+2*i}, v{r}\nv_mul_f32 v{ST+2*i+1}, v{r}, v{r}")
                    else:
                        e(f"v_add_f32 v{ST+2*i}, v{ST+2*i}, v{r}\nv_fmac_f32 v{ST+2*i+1}, v{r}, v{r}")
        if z2:
            m = 8
            for mask, dpp in ((0xff00ff00, "row_ror:8"), (0xf0f0f0f0, "row_half_mirror"),
                              (0xcccccccc, "quad_perm:[2,3,0,1]"), (0xaaaaaaaa, "quad_perm:[1,0,3,2]")):
                e(f"s_mov_b32 s40, 0x{mask:x}\ns_mov_b32 s41, s40")
                for i in range(m):
                    e(f"v_cndmask_b32 v{AC+i}, v{ST+i+m}, v{ST+i}, s[40:41]")
                for i in range(m):
                    e(f"v_cndmask_b32 v{ST+i}, v{ST+i}, v{ST+i+m}, s[40:41]")
                for i in range(m):
                    e(f"v_add_f32_dpp v{ST+i}, v{AC+i}, v{ST+i} {dpp} row_mask:0xf bank_mask:0xf")
                m //= 2
            e("v_lshlrev_b32 v2, 2, v1\ns_lshl_b32 s20, s20, 8")
            e(f"buffer_atomic_add_f32 v{ST}, v2, s[28:31], s20 offen")
        e(f"s_branch {L('fin')}")

    e(f"s_cmp_ge_u32 s19, 8\ns_cbranch_scc1 {L('z2')}")
    e(f"s_cmp_ge_u32 s3, 4\ns_cbranch_scc1 {L('z1b')}")
    variant(False, 4, "z1a")
    e(f"{L('z1b')}:")
    variant(False, 3, "z1b")
    e(f"{L('z2')}:")
    e(f"s_cmp_ge_u32 s3, 4\ns_cbranch_scc1 {L('z2b')}")
    variant(True, 4, "z2a")
    e(f"{L('z2b')}:")
    variant(True, 3, "z2b")
    e(f"{L('fin')}:")
    ts(k, 9)
    ts_end(k, 2, 10, 120)
    e("s_endpgm")

    e(f"{L('loader')}:")
    e("v_lshrrev_b32 v2, 3, v1\nv_and_b32 v3, 7, v1\nv_bfe_u32 v4, v2, 1, 1\nv_lshlrev_b32 v4, 2, v4")
    e("v_xor_b32 v3, v3, v4\nv_mul_u32_u24 v2, 1280, v2\nv_lshl_add_u32 v10, v3, 4, v2")
    e(f"v_add_u32 v11, {10240-1024}, v10\nv_xor_b32 v12, 32, v10\nv_add_u32 v12, {2*(10240-1024)}, v12\nv_add_u32 v13, {10240-1024}, v12")
    e("s_lshl_b32 s20, s18, 2\ns_add_u32 s20, s20, s3\ns_mul_i32 s20, s20, 40960")
    e("s_mul_i32 s21, s19, 35\ns_add_u32 s21, s21, s3\ns_lshl_b32 s21, s21, 12")
    e("s_lshl_b32 s22, s3, 12")
    e("s_cmp_eq_u32 s3, 3\ns_cselect_b32 s45, 0x40000000, 0")
    e("s_waitcnt lgkmcnt(0)")
    srd(k, 24, 10, WS_H2, SZ_H2)
    srd(k, 28, 10, WS_WINP, SZ_WINP)

    def dma(st):
        sl = (st % 5) * SL
        e(f"s_add_u32 s23, s20, {st*128}\ns_add_u32 m0, s22, {sl}")
        for i in range(4):
            e(f"buffer_load_dwordx4 v{10+i}, s[24:27], s23 offen offset:{1024*i} lds")
        e(f"s_add_u32 s23, s21, {st*14336}\ns_add_u32 m0, s22, {sl + 16384}\ns_add_u32 s44, s23, s45")
        for i in range(4):
            e(f"buffer_load_dwordx4 v5, s[28:31], s{23 if i < 2 else 44} offen offset:{1024*i} lds")

    dma(0)
    dma(1)
    last = 1
    extra = 0
    for st in range(10):
        e(f"s_waitcnt vmcnt({8*(last-st) + extra})\ns_barrier")
        hi = min(9, st + 4, last + 2)
        while last < hi:
            last += 1
            dma(last)
        if st == 6:
            srd(k, 32, 8, 0, S * 4096)
            e("s_lshr_b32 s23, s2, 3\ns_lshl_b32 s23, s23, 2\ns_add_u32 s23, s23, s3\ns_lshl_b32 s23, s23, 13\nv_lshlrev_b32 v2, 7, v1")
            e("s_and_b32 s44, s16, 3\ns_lshl_b32 s44, s44, 21\ns_add_u32 s44, s44, s23\ns_lshr_b32 s23, s16, 2\ns_xor_b32 s23, s23, 1\ns_lshl_b32 s23, s23, 20\ns_add_u32 s44, s44, s23")
            e("buffer_load_dword v20, v2, s[32:35], s44 offen")
            extra = 1
    e(f"{L('end')}:")
    e("s_endpgm")
    return k
```

```python
from common import *

WU, ZB0, ZU, TBL = 16384, 65536, 14336, 151552
OOB = 0x40000000


def build(diag=False):
    k = Kern("p4_kernel", 256, 512, TBL + 12288, vgpr=216, sgpr=96 if diag else 64)
    k.diag = diag
    e = k.e
    L = k.lab
    ts_begin(k)
    e(f"s_cmp_ge_u32 s2, 256\ns_cbranch_scc1 {L('end')}")
    e(f"s_load_dwordx4 s[4:7], s[0:1], {KA_WSP}")
    e(f"s_load_dwordx2 s[10:11], s[0:1], {KA_WS}")
    e("v_and_b32 v1, 63, v0\nv_lshrrev_b32 v2, 6, v0\nv_readfirstlane_b32 s3, v2")
    e("s_and_b32 s16, s2, 7\ns_lshr_b32 s17, s2, 3")
    e("s_and_b32 s18, s16, 3\ns_lshl_b32 s18, s18, 3\ns_and_b32 s19, s17, 7\ns_add_u32 s18, s18, s19")
    e("s_lshr_b32 s19, s16, 2\ns_lshl_b32 s19, s19, 2\ns_lshr_b32 s17, s17, 3\ns_add_u32 s19, s19, s17")
    e("v_lshlrev_b32 v5, 4, v1")
    e("s_and_b32 s16, s3, 1\ns_bfe_u32 s17, s3, 0x10001")
    e(f"s_cmp_ge_u32 s3, 4\ns_cbranch_scc1 {L('loader')}")

    e("s_lshl_b32 s23, s3, 12")
    e("s_waitcnt lgkmcnt(0)")
    ts(k, 1)
    srd(k, 32, 10, WS_STATS, SZ_STATS)
    STV = 96
    for a in range(4):
        e(f"buffer_load_dwordx4 v[{STV+4*a}:{STV+4*a+3}], v5, s[32:35], s23 offen offset:{1024*a}")
    srd(k, 36, 10, WS_Z1P, SZ_Z1P)
    srd(k, 40, 6, 0, 4096)
    e("v_and_b32 v2, 15, v1\nv_lshrrev_b32 v3, 4, v1")
    e("v_lshrrev_b32 v15, 2, v2\nv_and_b32 v16, 3, v2")
    e("v_lshl_add_u32 v18, v15, 3, v16")
    Z1, BS = 192, 206
    e("s_lshl_b32 s46, s18, 1\ns_add_u32 s46, s46, s16\ns_lshl_b32 s47, s46, 3\ns_add_u32 s47, s47, s19\ns_mul_i32 s47, s47, 7168")
    e("s_lshl_b32 s44, s17, 3\nv_add_u32 v17, s44, v5\ns_add_u32 s44, s47, 4096")
    for j in range(7):
        so, off = ("s47", 1024 * j) if j < 4 else ("s44", 1024 * (j - 4))
        e(f"buffer_load_dwordx2 v[{Z1+2*j}:{Z1+2*j+1}], v17, s[36:39], {so} offen offset:{off}")
    e("s_lshl_b32 s46, s46, 6\ns_lshl_b32 s45, s17, 3\ns_add_u32 s46, s46, s45\nv_lshlrev_b32 v17, 1, v18")
    e(f"buffer_load_ushort v{BS}, v17, s[40:43], s46 offen")
    e("v_lshrrev_b32 v17, 1, v16\nv_lshlrev_b32 v17, 2, v17\nv_and_b32 v19, 2, v15\nv_or_b32 v17, v17, v19")
    e("v_xor_b32 v17, v17, v3\nv_lshlrev_b32 v17, 4, v17\nv_lshl_add_u32 v8, v18, 7, v17")
    e("s_lshl_b32 s44, s17, 13\ns_lshl_b32 s45, s16, 12\ns_add_u32 s44, s44, s45\ns_lshl_b32 s45, s17, 9\ns_add_u32 s44, s44, s45")
    e("v_add_u32 v8, s44, v8\nv_xor_b32 v9, 64, v8\nv_xor_b32 v10, 512, v8\nv_xor_b32 v11, 512, v9")
    e(f"s_mul_i32 s44, s17, 7168\ns_add_u32 s44, s44, {ZB0}\nv_add_u32 v12, s44, v5")
    e(f"s_lshl_b32 s44, s17, 11\ns_add_u32 s44, s44, {TBL+8192}\nv_lshl_add_u32 v14, v3, 4, s44")
    e(f"s_lshl_b32 s44, s17, 12\ns_add_u32 s44, s44, {TBL}\nv_lshl_add_u32 v13, v18, 2, s44")
    e(f"s_lshl_b32 s44, s3, 11\ns_add_u32 s44, s44, {TBL}\nv_lshl_add_u32 v6, v1, 3, s44")
    e(f"s_lshl_b32 s44, s3, 10\ns_add_u32 s44, s44, {TBL+8192}\nv_lshl_add_u32 v7, v1, 2, s44")
    e("v_and_b32 v19, 1, v2\nv_mov_b32 v20, 0xffff\nv_lshlrev_b32 v19, 4, v19\nv_lshlrev_b32 v20, v19, v20")
    e("v_cmp_eq_u32 vcc, v15, v3\nv_cndmask_b32 v20, 0, v20, vcc")
    e("v_cmp_gt_u32 vcc, 2, v16\nv_cndmask_b32 v21, v20, 0, vcc\nv_cndmask_b32 v20, 0, v20, vcc")
    ACC = lambda s_, j: 32 + 32 * s_ + 4 * j
    ZB = [96, 128]
    RAW, RRV, DG, SO, WP = 160, 22, 24, 168, 184
    e(f"v_mov_b32 v16, {fhex(1e-5)}")
    for i in range(64):
        e(f"v_mov_b32 v{32+i}, 0")
    e("s_waitcnt vmcnt(8)")
    ts(k, 2)
    for a in range(4):
        for h in range(2):
            s1, s2 = STV + 4 * a + 2 * h, STV + 4 * a + 2 * h + 1
            e(f"v_mul_f32 v{s1}, {fhex(-1/864)}, v{s1}")
            e(f"v_fmamk_f32 v{s2}, v{s2}, {fhex(1/864)}, v16")
            e(f"v_fma_f32 v{s2}, -v{s1}, v{s1}, v{s2}")
            e(f"v_rsq_f32 v{s2}, v{s2}")
        b = STV + 4 * a
        e(f"v_cvt_pk_bf16_f32 v{b}, v{b}, v{b+2}")
        e(f"v_cvt_pk_bf16_f32 v{b+2}, v{b+1}, v{b+1}")
        e(f"v_cvt_pk_bf16_f32 v{b+3}, v{b+3}, v{b+3}")
        e(f"ds_write_b64 v6, v[{b+2}:{b+3}] offset:{512*a}")
        e(f"ds_write_b32 v7, v{b} offset:{256*a}")
    e(f"v_mov_b32 v{DG+2}, 0\nv_mov_b32 v{DG+3}, 0")
    e("s_waitcnt lgkmcnt(0)")
    ts(k, 3)
    WPB = [184, 208]

    def period(par, do_main=True, do_scale=True, do_z=True, tail=()):
        rd = []
        for s_ in range(2):
            rd.append(f"ds_read_b128 v[{RAW+4*s_}:{RAW+4*s_+3}], v{8+2*s_+par}")
        rd.append(f"ds_read2_b32 v[{RRV}:{RRV+1}], v13 offset0:{32*par} offset1:{32*par+4}")
        b = ZB[1 - par]
        if do_z:
            for j in range(7):
                rd.append(f"ds_read_b128 v[{b+4*j}:{b+4*j+3}], v12 offset:{par*ZU + j*1024}")
            rd.append(f"ds_read_b128 v[{b+28}:{b+31}], v14 offset:{par*64}")
        main = mains(par) if do_main else []
        cv = [f"v_cvt_pk_bf16_f32 v{WPB[1-par]+i}, v{SO+2*i}, v{SO+2*i+1}" for i in range(8)] if do_scale else []
        cv += list(tail)
        ands = [f"v_and_b32 v{DG}, v{RRV}, v20", f"v_and_b32 v{DG+1}, v{RRV}, v21",
                f"v_and_b32 v{DG+4}, v{RRV+1}, v20", f"v_and_b32 v{DG+5}, v{RRV+1}, v21"]
        zr = rd[3:]
        if do_scale:
            for s_ in range(2):
                for h in range(2):
                    o = SO + 8 * s_ + 4 * h
                    e(f"v_mfma_f32_16x16x32_bf16 v[{o}:{o+3}], v[{DG+2*h}:{DG+2*h+3}], v[{RAW+4*s_}:{RAW+4*s_+3}], 0")
                    if zr:
                        e(zr.pop(0))
        rest = rd[:3] + zr
        fill = cv + ["s_waitcnt lgkmcnt(0)"] + ands
        for n, m in enumerate(main):
            e(m)
            if rest:
                e(rest.pop(0))
            else:
                c = 0
                while fill and c < 2:
                    x = fill.pop(0)
                    e(x)
                    c += 0.5 if x.startswith("s_") else 1
        for x in rest + fill:
            e(x)

    def mains(par):
        b = ZB[par]
        out = []
        for j in range(8):
            for s_ in range(2):
                a = ACC(s_, j)
                out.append(f"v_mfma_f32_16x16x32_bf16 v[{a}:{a+3}], v[{b+4*j}:{b+4*j+3}], v[{WPB[par]+4*s_}:{WPB[par]+4*s_+3}], v[{a}:{a+3}]")
        return out

    def advance():
        t = [f"v_add_u32 v{r}, s50, v{r}" for r in (8, 9, 10, 11)]
        t += ["v_add_u32 v12, s51, v12", "v_add_u32 v13, 256, v13", "v_add_u32 v14, 128, v14"]
        return t

    def deltas():
        return (f"s_add_u32 s48, s48, 1\ns_and_b32 s44, s48, 3\ns_cmp_eq_u32 s44, 0\ns_cselect_b32 s50, {-3*WU}, s52\n"
                f"s_add_u32 s49, s49, 1\ns_cmp_eq_u32 s49, 3\ns_cselect_b32 s51, {-4*ZU}, s53\ns_cselect_b32 s49, 0, s49\n"
                "s_cmp_lt_u32 s48, 17").split("\n")

    e(f"s_mov_b32 s48, 0\ns_mov_b32 s49, 0\ns_mov_b32 s52, {WU}\ns_mov_b32 s53, {2*ZU}")
    e("v_subrev_u32 v14, 64, v14")
    e("s_barrier")
    period(0, do_main=False, do_scale=False, do_z=False, tail=deltas())
    e("s_barrier")
    period(1, do_main=False, tail=advance())
    ts(k, 4)
    e(f"{L('cloop')}:")
    e("s_barrier")
    period(0, tail=deltas())
    e("s_barrier")
    period(1, tail=advance())
    e(f"s_cbranch_scc1 {L('cloop')}")
    ts(k, 6)
    e("s_barrier")
    e("s_xor_b32 s44, s3, 2\ns_lshl_b32 s44, s44, 13\nv_add_u32 v8, s44, v5\nv_lshl_add_u32 v10, v1, 2, s44")
    for j in range(7):
        a = ACC(1, j)
        e(f"ds_write_b128 v8, v[{a}:{a+3}] offset:{1024*j}")
    e(f"ds_write_b32 v10, v{ACC(1, 7)} offset:7168")
    e("s_lshl_b32 s44, s3, 13\nv_add_u32 v8, s44, v5\nv_lshl_add_u32 v10, v1, 2, s44")
    srd(k, 24, 10, WS_A5P, SZ_A5P)
    e("s_lshl_b32 s20, s18, 2\ns_lshl_b32 s21, s16, 1\ns_add_u32 s20, s20, s21\ns_add_u32 s20, s20, s17\ns_mul_i32 s20, s20, 28")
    e("s_lshr_b32 s21, s19, 1\ns_mul_i32 s21, s21, 7\ns_add_u32 s20, s20, s21\ns_lshl_b32 s20, s20, 10")
    e("s_and_b32 s21, s19, 1\ns_mul_i32 s22, s21, 3072\ns_add_u32 s22, s22, s20\ns_add_u32 s20, s20, 6144")
    e("s_lshl_b32 s23, s21, 3\nv_add_u32 v6, s23, v5")
    e("s_cmp_eq_u32 s21, 1\ns_cselect_b32 s41, 0, -1\ns_mov_b32 s40, -1")
    U = 128
    e("s_waitcnt vmcnt(0)")
    e(f"v_lshlrev_b32 v{BS}, 16, v{BS}\nv_add_f32 v{BS}, v{BS}, v{ACC(0, 7)}")
    for j in range(7):
        for h in range(2):
            e(f"v_lshlrev_b32 v{U+4*j+2*h}, 16, v{Z1+2*j+h}\nv_and_b32 v{U+4*j+2*h+1}, 0xffff0000, v{Z1+2*j+h}")
    e("s_waitcnt lgkmcnt(0)\ns_barrier")
    ts(k, 7)
    P = 96
    e("ds_read_b32 v20, v10 offset:7168")
    for j in range(7):
        e(f"ds_read_b128 v[{P+4*j}:{P+4*j+3}], v8 offset:{1024*j}")
    e(f"s_waitcnt lgkmcnt(7)\nv_add_f32 v{BS}, v{BS}, v20")
    for j in range(7):
        for i in range(4):
            e(f"v_add_f32 v{ACC(0, j)+i}, v{ACC(0, j)+i}, v{BS}")
    O = 64
    for j in range(7):
        e(f"s_waitcnt lgkmcnt({6-j})")
        a = ACC(0, j)
        for i in range(4):
            e(f"v_add_f32 v{a+i}, v{a+i}, v{P+4*j+i}")
        for i in range(4):
            e(f"v_mul_f32 v{a+i}, v{a+i}, v{U+4*j+i}")
        for h in range(2):
            e(f"v_cvt_pk_bf16_f32 v{O+2*j+h}, v{a+2*h}, v{a+2*h+1}")
        if j % 2 == 1:
            e(f"buffer_store_dwordx4 v[{O+2*j-2}:{O+2*j+1}], v5, s[24:27], s22 offen offset:{1024*(j//2)}")
    for h in range(2):
        e(f"v_cndmask_b32 v{O+12+h}, 0, v{O+12+h}, s[40:41]")
    e(f"buffer_store_dwordx2 v[{O+12}:{O+13}], v6, s[24:27], s20 offen")
    ts(k, 9)
    ts_end(k, 3, 10, 20)
    e("s_endpgm")

    e(f"{L('loader')}:")
    e("v_lshrrev_b32 v2, 3, v1\nv_and_b32 v3, 7, v1\nv_bfe_u32 v4, v2, 1, 1\nv_lshlrev_b32 v4, 2, v4")
    e("v_xor_b32 v3, v3, v4\nv_lshlrev_b32 v2, 12, v2\nv_lshl_add_u32 v10, v3, 4, v2")
    e(f"v_add_u32 v11, {32768-1024}, v10\nv_xor_b32 v12, 32, v10\nv_add_u32 v12, {2*(32768-1024)}, v12\nv_add_u32 v13, {32768-1024}, v12")
    e("s_lshl_b32 s20, s18, 18\ns_lshl_b32 s21, s16, 17\ns_add_u32 s20, s20, s21\ns_lshl_b32 s21, s17, 11\ns_add_u32 s20, s20, s21")
    e("s_lshl_b32 s21, s19, 6\ns_lshl_b32 s22, s17, 5\ns_add_u32 s21, s21, s22\ns_add_u32 s21, s21, s16\ns_mul_i32 s21, s21, 7168")
    e("s_lshl_b32 s22, s17, 13\ns_lshl_b32 s23, s16, 12\ns_add_u32 s22, s22, s23")
    e(f"s_mul_i32 s23, s17, 7168\ns_add_u32 s44, s16, 1\ns_mul_i32 s44, s44, {ZU}\ns_add_u32 s23, s23, s44\ns_add_u32 s23, s23, {ZB0}")
    e(f"s_add_u32 s49, s23, {4*ZU}\ns_cmp_eq_u32 s16, 1\ns_cselect_b32 s44, {2*ZU}, 0\ns_sub_u32 s49, s49, s44")
    e(f"s_mov_b32 s53, {2*ZU}\ns_mov_b32 s45, 0\ns_mov_b32 s46, 0")
    e("s_mov_b32 s54, -1\ns_mov_b32 s56, 20")
    e("s_waitcnt lgkmcnt(0)")
    srd(k, 24, 4, 0, S * 4096)
    srd(k, 28, 10, WS_Z2P, SZ_Z2P)

    def wunit():
        e("s_mov_b32 m0, s22")
        for i in range(4):
            e(f"buffer_load_dwordx4 v{10+i}, s[24:27], s20 offen offset:{1024*i} lds")
        e(f"s_add_u32 s20, s20, 128\ns_add_u32 s22, s22, {WU}\ns_and_b32 s22, s22, 0xffff")
        e(f"s_add_u32 s45, s45, 1\ns_cmp_ge_u32 s45, 16\ns_cselect_b32 s20, {OOB}, s20")

    def zunit():
        e("s_mov_b32 m0, s23\ns_add_u32 s47, s21, 4096")
        for j in range(4):
            e(f"buffer_load_dwordx4 v5, s[28:31], s21 offen offset:{1024*j} lds")
        e("s_add_u32 m0, s23, 4096")
        for j in range(3):
            e(f"buffer_load_dwordx4 v5, s[28:31], s47 offen offset:{1024*j} lds")
        e(f"s_add_u32 s21, s21, 14336\ns_cmp_eq_u32 s23, s49\ns_cselect_b32 s44, {-4*ZU}, s53\ns_add_u32 s23, s23, s44")
        e(f"s_add_u32 s46, s46, 1\ns_cmp_ge_u32 s46, 16\ns_cselect_b32 s21, {OOB}, s21")

    e(f"s_cmp_eq_u32 s16, 1\ns_cbranch_scc1 {L('lh1')}")
    wunit(); zunit(); wunit(); zunit(); wunit()
    e("s_waitcnt vmcnt(22)")
    e(f"{L('lz')}:")
    e("s_barrier")
    zunit()
    e("s_waitcnt vmcnt(22)")
    e(f"s_cmp_eq_u32 s46, s54\ns_cbranch_scc1 {L('ldone')}")
    e(f"{L('lw')}:")
    e("s_barrier")
    wunit()
    e("s_waitcnt vmcnt(22)")
    e(f"s_cmp_lt_u32 s45, s56\ns_cbranch_scc1 {L('lz')}")
    e(f"{L('ldone')}:")
    e("s_waitcnt vmcnt(0)\ns_barrier\ns_barrier")
    e("s_endpgm")
    e(f"{L('lh1')}:")
    e("s_mov_b32 s54, 19\ns_mov_b32 s56, 64")
    wunit(); wunit(); zunit(); wunit(); zunit()
    e("s_waitcnt vmcnt(22)")
    e(f"s_branch {L('lw')}")
    e(f"{L('end')}:")
    e("s_endpgm")
    k.waits = None
    return k
```

```python
from common import *

SL, XT, GBO = 36864, 147456, 157696


def build(diag=False):
    k = Kern("p5_kernel", 256, 512, GBO + 1024, vgpr=128, sgpr=96 if diag else 64)
    k.diag = diag
    e = k.e
    L = k.lab
    ts_begin(k)
    e(f"s_cmp_ge_u32 s2, 256\ns_cbranch_scc1 {L('end')}")
    e(f"s_load_dwordx2 s[4:5], s[0:1], {KA_OUT}")
    e(f"s_load_dwordx2 s[10:11], s[0:1], {KA_WS}")
    e("v_and_b32 v1, 63, v0\nv_lshrrev_b32 v2, 6, v0\nv_readfirstlane_b32 s3, v2")
    e("s_and_b32 s16, s2, 7\ns_lshr_b32 s17, s2, 3")
    e("s_lshl_b32 s18, s16, 2\ns_lshr_b32 s19, s17, 3\ns_add_u32 s18, s18, s19")
    e("s_and_b32 s19, s17, 7")
    e("v_lshlrev_b32 v5, 4, v1")
    e(f"s_cmp_lt_u32 s3, 4\ns_cbranch_scc1 {L('loader')}")

    e("s_sub_u32 s3, s3, 4")
    e(f"v_add_u32 v6, {2*SL}, v5\ns_lshl_b32 s23, s3, 12\ns_add_u32 s23, s23, 20480\nv_add_u32 v7, s23, v5\nv_add_u32 v8, {2*SL}, v7")
    e("v_and_b32 v2, 15, v1\nv_lshrrev_b32 v3, 4, v1")
    e("v_lshrrev_b32 v10, 2, v2\nv_and_b32 v11, 3, v2\nv_lshl_add_u32 v10, v10, 3, v11")
    e("s_lshr_b32 s44, s3, 1\ns_lshl_b32 s44, s44, 5\ns_and_b32 s45, s3, 1\ns_lshl_b32 s45, s45, 2\ns_add_u32 s44, s44, s45")
    e(f"s_mul_i32 s44, s44, 160\ns_add_u32 s44, s44, {XT}")
    e("v_mul_u32_u24 v10, 160, v10\nv_lshl_add_u32 v10, v3, 3, v10\nv_add_u32 v10, s44, v10")
    e(f"v_lshlrev_b32 v9, 4, v3\nv_add_u32 v9, {GBO}, v9")
    ts(k, 1)
    BF, AC = 32, 80

    def reads(kap):
        c, i = divmod(kap, 4)
        sl = c % 4
        off = (sl % 2) * SL
        b = BF + 24 * (kap % 2)
        out = [f"ds_read_b128 v[{b+20}:{b+23}], v{7 + sl//2} offset:{off + 1024*i}"]
        for j in range(5):
            out.append(f"ds_read_b128 v[{b+4*j}:{b+4*j+3}], v{5 + sl//2} offset:{off + 5120*i + 1024*j}")
        return out

    ts(k, 2)
    e("s_barrier")
    ts(k, 3)
    for x in reads(0):
        e(x)
    for kap in range(28):
        nxt = kap + 1
        e("s_waitcnt lgkmcnt(0)")
        if nxt < 28 and nxt % 4 == 0:
            e("s_barrier")
            if nxt in (8, 16, 24):
                ts(k, 3 + nxt // 8)
        rd = reads(nxt) if nxt < 28 else []
        b = BF + 24 * (kap % 2)
        if rd:
            e(rd.pop(0))
        for j in range(5):
            a = AC + 4 * j
            src = "0" if kap == 0 else f"v[{a}:{a+3}]"
            if rd:
                e(rd.pop(0))
            e(f"v_mfma_f32_16x16x32_bf16 v[{a}:{a+3}], v[{b+4*j}:{b+4*j+3}], v[{b+20}:{b+23}], {src}")
    ts(k, 7)
    e("s_barrier")
    for j in range(5):
        e(f"ds_read_b128 v[{BF+4*j}:{BF+4*j+3}], v9 offset:{64*j}")
        e(f"ds_read_b64 v[{BF+20+2*j}:{BF+21+2*j}], v10 offset:{32*j}")
    for j in range(5):
        e(f"s_waitcnt lgkmcnt({2*(4-j) + j})")
        for h in range(2):
            e(f"v_lshlrev_b32 v{64+2*h}, 16, v{BF+20+2*j+h}\nv_and_b32 v{65+2*h}, 0xffff0000, v{BF+20+2*j+h}")
        for i in range(4):
            e(f"v_fma_f32 v{AC+4*j+i}, v{AC+4*j+i}, v{BF+4*j+i}, v{64+i}")
        for h in range(2):
            e(f"v_cvt_pk_bf16_f32 v{AC+4*j+h}, v{AC+4*j+2*h}, v{AC+4*j+2*h+1}")
        e(f"ds_write_b64 v10, v[{AC+4*j}:{AC+4*j+1}] offset:{32*j}")
    e("s_waitcnt lgkmcnt(0)\ns_barrier")
    ts(k, 9)
    ts_end(k, 4, 10, 120)
    e("s_endpgm")

    e(f"{L('loader')}:")
    e("s_mul_i32 s20, s19, 28\ns_add_u32 s20, s20, s3\ns_mul_i32 s20, s20, 5120")
    e("s_mul_i32 s22, s3, 5120")
    e("s_lshl_b32 s21, s18, 2\ns_add_u32 s21, s21, s3\ns_mul_i32 s21, s21, 28672")
    e("s_lshl_b32 s46, s3, 12\ns_add_u32 s46, s46, 20480")
    e("s_waitcnt lgkmcnt(0)")
    srd(k, 24, 10, WS_WOUTP, SZ_WOUTP)
    srd(k, 28, 10, WS_A5P, SZ_A5P)

    def chunk(c):
        sl = (c % 4) * SL
        e(f"s_add_u32 s23, s21, {c*4096}\ns_add_u32 m0, s46, {sl}")
        for i in range(4):
            e(f"buffer_load_dwordx4 v5, s[28:31], s23 offen offset:{1024*i} lds")
        e(f"s_add_u32 s23, s20, {c*20480}\ns_add_u32 m0, s22, {sl}")
        for j in range(4):
            e(f"buffer_load_dwordx4 v5, s[24:27], s23 offen offset:{1024*j} lds")
        e(f"s_add_u32 s23, s20, {c*20480+4096}\ns_add_u32 m0, s22, {sl+4096}")
        e("buffer_load_dwordx4 v5, s[24:27], s23 offen lds")

    chunk(0)
    chunk(1)
    srd(k, 32, 10, WS_X1, SZ_X1)
    srd(k, 36, 10, WS_MOD, SZ_MOD)
    srd(k, 40, 4, 0, S * 1280)
    e("s_lshl_b32 s23, s3, 6\nv_add_u32 v2, s23, v1")
    for i in range(3):
        e(f"v_add_u32 v3, {256*i}, v2\nv_mul_u32_u24 v4, 6554, v3\nv_lshrrev_b32 v4, 16, v4")
        e(f"v_mul_u32_u24 v6, 10, v4\nv_sub_u32 v3, v3, v6\nv_mul_u32_u24 v4, 1280, v4\nv_lshl_add_u32 v{10+i}, v3, 4, v4")
    e("s_mul_i32 s44, s18, 81920\ns_mul_i32 s45, s19, 160\ns_add_u32 s44, s44, s45")
    e(f"s_mul_i32 s45, s19, 320\ns_add_u32 s45, s45, {5*2560}")
    e(f"s_lshl_b32 s47, s3, 10\ns_add_u32 s47, s47, {XT}\nv_add_u32 v13, s47, v5")
    last = 1
    for c in range(7):
        e(f"s_waitcnt vmcnt({9*(last-c)})\ns_barrier")
        hi = min(6, c + 3, last + 2)
        while last < hi:
            last += 1
            chunk(last)
            if last == 6:
                for i in range(2):
                    e(f"s_add_u32 m0, s47, {4096*i}\nbuffer_load_dwordx4 v{10+i}, s[32:35], s44 offen lds")
                e(f"s_cmp_ge_u32 s3, 2\ns_cbranch_scc1 {L('nox')}")
                e("s_add_u32 m0, s47, 8192\nbuffer_load_dwordx4 v12, s[32:35], s44 offen lds")
                e(f"{L('nox')}:")
                e(f"s_cmp_lg_u32 s3, 3\ns_cbranch_scc1 {L('nogb')}")
                e(f"s_mov_b32 m0, {GBO}\ns_mov_b64 exec, 0xfffff\nbuffer_load_dwordx4 v5, s[36:39], s45 offen lds\ns_mov_b64 exec, -1")
                e(f"{L('nogb')}:")
    e("s_waitcnt vmcnt(0)\ns_barrier\ns_barrier")
    for i in range(3):
        e(f"ds_read_b128 v[{16+4*i}:{19+4*i}], v13 offset:{4096*i}")
    for i in range(2):
        e(f"s_waitcnt lgkmcnt({2-i})\nbuffer_store_dwordx4 v[{16+4*i}:{19+4*i}], v{10+i}, s[40:43], s44 offen")
    e(f"s_cmp_ge_u32 s3, 2\ns_cbranch_scc1 {L('end')}")
    e("s_waitcnt lgkmcnt(0)\nbuffer_store_dwordx4 v[24:27], v12, s[40:43], s44 offen")
    e(f"{L('end')}:")
    e("s_endpgm")
    return k
```

```python
from asmlib import *

S, D, F, FH = 2048, 640, 1728, 864
WS_MOD, SZ_MOD = 0x000000, 6 * 640 * 4
WS_STATS, SZ_STATS = 0x004000, 2048 * 8
WS_V, SZ_V = 0x100000, 2048 * 1280
WS_X1, SZ_X1 = 0x380000, 2048 * 1280
WS_H2, SZ_H2 = 0x600000, 2048 * 1280
WS_Z1P, SZ_Z1P = 0x880000, 64 * 8 * 7 * 1024
WS_Z2P, SZ_Z2P = 0xC00000, 64 * 8 * 7 * 1024
WS_A5P, SZ_A5P = 0xF80000, 128 * 28 * 1024
WS_WINP, SZ_WINP = 0x1300000, 16 * 20 * 7 * 1024
WS_WOUTP, SZ_WOUTP = 0x1530000, 8 * 28 * 5 * 1024
WS_TS = 0x1800000

KA_X, KA_WIN, KA_WSP, KA_BSP, KA_WOUT, KA_C, KA_WMOD, KA_OUT, KA_DBG, KA_WS = 0, 48, 56, 64, 72, 80, 88, 96, 104, 112


def srd(k, s, ptr, off, size):
    if off:
        k.e(f"s_add_u32 s{s}, s{ptr}, 0x{off:x}")
        k.e(f"s_addc_u32 s{s+1}, s{ptr+1}, 0")
    else:
        k.e(f"s_mov_b32 s{s}, s{ptr}")
        k.e(f"s_mov_b32 s{s+1}, s{ptr+1}")
    k.e(f"s_mov_b32 s{s+2}, 0x{size:x}")
    k.e(f"s_mov_b32 s{s+3}, 0x20000")


def fbase(kappa, h):
    p, q = divmod(kappa, 7)
    if q < 3:
        return 216 * p + 32 * q + 16 * h
    if q < 6:
        return 216 * p + 112 + 32 * (q - 3) + 16 * h
    return 216 * p + (96 if h == 0 else 208)


def colstart(nb):
    return 216 * (nb // 2) + 112 * (nb % 2)


def dma_rows1280_addr(k, vlane, vdst, tmp, rowstride):
    for n in range(5):
        C, row, ch = tmp, tmp + 1, tmp + 2
        k.e(f"v_add_u32 v{C}, {64*n}, v{vlane}")
        k.e(f"v_mul_u32_u24 v{row}, 205, v{C}")
        k.e(f"v_lshrrev_b32 v{row}, 14, v{row}")
        k.e(f"v_mul_u32_u24 v{ch}, 80, v{row}")
        k.e(f"v_sub_u32 v{ch}, v{C}, v{ch}")
        k.e(f"v_lshlrev_b32 v{C}, 1, v{row}")
        k.e(f"v_xor_b32 v{ch}, v{ch}, v{C}")
        k.e(f"v_lshlrev_b32 v{ch}, 4, v{ch}")
        k.e(f"v_mul_u32_u24 v{row}, {rowstride}, v{row}")
        k.e(f"v_add_u32 v{vdst+n}, v{row}, v{ch}")


def dma_rows1280_issue(k, vaddr, srd_s, s_goff, s_lds, s_tmp, rowstride):
    for half in range(2):
        if half == 1:
            for n in range(5):
                k.e(f"v_xor_b32 v{vaddr+n}, 128, v{vaddr+n}")
            k.e(f"s_add_u32 s{s_tmp}, s{s_goff}, {4*rowstride}")
        so = s_goff if half == 0 else s_tmp
        for n in range(5):
            k.e(f"s_add_u32 m0, s{s_lds}, {(half*5+n)*1024}")
            k.e(f"buffer_load_dwordx4 v{vaddr+n}, s[{srd_s}:{srd_s+3}], s{so} offen lds")


def code_srd(k, s, label, size_expr):
    k.e(f"s_getpc_b64 s[{s}:{s+1}]")
    k.e(f"s_add_u32 s{s}, s{s}, {label}@rel32@lo+4\ns_addc_u32 s{s+1}, s{s+1}, {label}@rel32@hi+12")
    k.e(f"s_mov_b32 s{s+2}, {size_expr}\ns_mov_b32 s{s+3}, 0x20000")


NTS = 12


def ts(k, i):
    if k.diag:
        k.e(f"s_memrealtime s[{64+2*i}:{65+2*i}]")


def ts_begin(k):
    if k.diag:
        for i in range(NTS):
            k.e(f"s_mov_b32 s{64+2*i}, 0")
        k.e("s_memtime s[88:89]")
        k.e("s_memrealtime s[64:65]")


def ts_end(k, kidx, ws_ptr_s, vtmp):
    if not k.diag:
        return
    lab = k.lab("tsend")
    k.e("s_waitcnt vmcnt(0)")
    k.e(f"s_memrealtime s[{64+2*(NTS-1)}:{65+2*(NTS-1)}]")
    k.e("s_memtime s[90:91]")
    k.e(f"s_cmp_lg_u32 s3, 0\ns_cbranch_scc1 {lab}")
    srd(k, 92, ws_ptr_s, WS_TS, 0x40000)
    k.e(f"s_lshl_b32 s63, s2, 6\ns_add_u32 s63, s63, {kidx*16384}")
    k.e("s_waitcnt lgkmcnt(0)")
    k.e("s_sub_u32 s90, s90, s88")
    k.e(f"v_mov_b32 v{vtmp+1}, 0")
    for i in range(NTS):
        k.e(f"v_mov_b32 v{vtmp}, s{64+2*i}")
        k.e(f"buffer_store_dword v{vtmp}, v{vtmp+1}, s[92:95], s63 offen offset:{4*i}")
    k.e(f"v_mov_b32 v{vtmp}, s90")
    k.e(f"buffer_store_dword v{vtmp}, v{vtmp+1}, s[92:95], s63 offen offset:{4*NTS}")
    k.e(f"{lab}:")
```

```python
from common import *


def build(diag=False):
    k = Kern("p1_kernel", 256, 512, 112 * 1024, vgpr=128, sgpr=96 if diag else 64)
    k.diag = diag
    e = k.e
    L = k.lab
    ts_begin(k)
    e(f"s_cmp_ge_u32 s2, 255\ns_cbranch_scc1 {L('end')}")
    e(f"s_load_dwordx2 s[4:5], s[0:1], {KA_X}")
    e(f"s_load_dwordx2 s[6:7], s[0:1], {KA_WIN}")
    e(f"s_load_dwordx2 s[8:9], s[0:1], {KA_WOUT}")
    e(f"s_load_dwordx4 s[12:15], s[0:1], {KA_C}")
    e(f"s_load_dwordx2 s[10:11], s[0:1], {KA_WS}")
    code_srd(k, 32, "p1_kernel", "p1_code_end-p1_kernel")
    e("v_lshlrev_b32 v1, 4, v0\nbuffer_load_dword v127, v1, s[32:35], 0 offen")
    e("v_and_b32 v1, 63, v0")
    e("v_lshrrev_b32 v2, 6, v0")
    e("v_readfirstlane_b32 s3, v2")
    e(f"s_cmp_ge_u32 s2, 160\ns_cbranch_scc1 {L('notfft')}")

    TB = 0
    OT = 512
    XL = 16896
    e("s_and_b32 s16, s2, 7\ns_lshr_b32 s17, s2, 3")
    e("s_mul_i32 s18, s17, 205\ns_lshr_b32 s18, s18, 10")
    e("s_mul_i32 s19, s18, 5\ns_sub_u32 s19, s17, s19")
    e("s_lshl_b32 s16, s16, 2\ns_add_u32 s18, s16, s18")
    dma_rows1280_addr(k, 1, 4, 10, 40960)
    e("s_mul_i32 s20, s18, 1280")
    e(f"s_mul_i32 s21, s3, {8*40960}\ns_add_u32 s20, s20, s21")
    e(f"s_mul_i32 s21, s3, 10240\ns_add_u32 s21, s21, {XL}")
    e("s_waitcnt lgkmcnt(0)")
    ts(k, 1)
    srd(k, 24, 4, 0, S * 1280)
    dma_rows1280_issue(k, 4, 24, 20, 21, 22, 40960)
    srd(k, 28, 10, WS_V, SZ_V)
    e("v_and_b32 v10, 15, v1\nv_lshrrev_b32 v11, 4, v1")
    e("s_lshr_b32 s23, s3, 2\ns_lshl_b32 s23, s23, 4")
    e("v_add_u32 v12, s23, v10")
    e("v_cmp_eq_u32 vcc, 0, v12")
    e("v_cvt_f32_u32 v13, v12")
    e(f"v_mul_f32 v13, {fhex(1/64)}, v13")
    e("v_mov_b32 v14, 0.5")
    e("v_cndmask_b32 v14, v13, v14, vcc")
    e(f"v_mov_b32 v15, {fhex(0.25)}")
    e("v_cndmask_b32 v15, v15, 0, vcc")
    e("v_lshlrev_b32 v16, 2, v11\nv_cvt_f32_u32 v16, v16")
    e("v_mul_f32 v17, v13, v16")
    e("v_fma_f32 v18, v14, v16, v15")
    RE, IM = 32, 48
    for ks in range(2):
        for jj in range(8):
            c = 32 * ks + (jj % 4) + 16 * (jj // 4)
            i = 8 * ks + jj
            e(f"v_fmamk_f32 v{RE+i}, v13, {fhex(c)}, v17")
            e(f"v_fmamk_f32 v{IM+i}, v14, {fhex(c)}, v18")
    for i in range(16):
        e(f"v_cos_f32 v{RE+i}, v{RE+i}")
        e(f"v_cos_f32 v{IM+i}, v{IM+i}")
    e("v_lshrrev_b32 v20, 3, v1\nv_and_b32 v21, 7, v1")
    e("v_bfe_u32 v22, v20, 1, 1\nv_lshlrev_b32 v22, 3, v22")
    e("v_add_u32 v22, v22, v21\nv_lshlrev_b32 v22, 4, v22")
    e("v_mul_u32_u24 v23, 1280, v20\nv_add_u32 v22, v22, v23")
    e("v_add_u32 v22, s21, v22")
    e("v_xor_b32 v23, 128, v22")
    e("v_mov_b32 v24, 0x3f803f80")
    for i in range(4):
        e(f"v_mov_b32 v{26+i}, 0")
    ts(k, 2)
    e("s_waitcnt vmcnt(0)")
    ts(k, 3)
    for i in range(10):
        e(f"ds_read_b128 v[{64+4*i}:{67+4*i}], v{22 + i % 2} offset:{256*(i//2)}")
    for i in range(10):
        e(f"s_waitcnt lgkmcnt({9-i})")
        for d in range(4):
            r = 64 + 4 * i + d
            e(f"v_dot2_f32_bf16 v{26 + d % 2}, v{r}, v24, v{26 + d % 2}")
            e(f"v_dot2_f32_bf16 v{28 + d % 2}, v{r}, v{r}, v{28 + d % 2}")
    e("s_nop 2")
    e("v_add_f32 v26, v26, v27\nv_add_f32 v28, v28, v29")
    for m in ("quad_perm:[1,0,3,2]", "quad_perm:[2,3,0,1]", "row_half_mirror"):
        e(f"v_add_f32_dpp v26, v26, v26 {m} row_mask:0xf bank_mask:0xf")
        e(f"v_add_f32_dpp v28, v28, v28 {m} row_mask:0xf bank_mask:0xf")
    e(f"v_mul_f32 v26, {fhex(1/640)}, v26")
    e(f"v_mul_f32 v28, {fhex(1/640)}, v28")
    e("v_fma_f32 v28, -v26, v26, v28")
    e(f"v_add_f32 v28, {fhex(1e-5)}, v28")
    e("v_rsq_f32 v28, v28")
    e("v_sub_f32 v26, 0, v26")
    e("v_cvt_pk_bf16_f32 v26, v26, v26")
    e("s_lshl_b32 s22, s3, 3")
    e("v_add_u32 v20, s22, v20")
    e("v_lshlrev_b32 v21, 2, v20\nv_lshlrev_b32 v20, 1, v20")
    e(f"ds_write_b32 v21, v28 offset:{TB}")
    e(f"ds_write_b16 v20, v26 offset:{TB+256}")
    e("v_bfe_u32 v20, v1, 2, 2\nv_and_b32 v21, 3, v1")
    e("v_lshl_add_u32 v20, v11, 2, v20")
    e("s_and_b32 s22, s3, 3\ns_lshl_b32 s22, s22, 2")
    e("s_lshl_b32 s23, s19, 4\ns_add_u32 s22, s22, s23")
    e("v_add_u32 v21, s22, v21")
    e("v_and_b32 v22, 7, v20\nv_lshlrev_b32 v22, 1, v22")
    e("v_xor_b32 v21, v21, v22\nv_lshlrev_b32 v21, 4, v21")
    e(f"v_mul_u32_u24 v20, 1280, v20\nv_add_u32 v21, {XL}, v21\nv_add_u32 v20, v20, v21")
    e("v_lshlrev_b32 v21, 4, v11\nv_lshlrev_b32 v22, 3, v11")
    e("s_waitcnt lgkmcnt(0)\ns_barrier")
    ts(k, 4)
    RT, MF, DA = 64, 80, 88
    for ks in range(2):
        for h in range(2):
            e(f"ds_read_b128 v[{RT+8*ks+4*h}:{RT+8*ks+4*h+3}], v21 offset:{TB + (32*ks+16*h)*4}")
    for ks in range(2):
        for h in range(2):
            e(f"ds_read_b64 v[{MF+4*ks+2*h}:{MF+4*ks+2*h+1}], v22 offset:{TB + 256 + (32*ks+16*h)*2}")
    for u in range(2):
        for ks in range(2):
            for h in range(2):
                b = DA + 8 * u + 4 * ks + 2 * h
                e(f"ds_read_b64_tr_b16 v[{b}:{b+1}], v20 offset:{8*u + (32*ks+16*h)*1280}")
    e("s_waitcnt lgkmcnt(12)")
    for i in range(16):
        e(f"v_mul_f32 v{RE+i}, v{RE+i}, v{RT+i}")
        e(f"v_mul_f32 v{IM+i}, v{IM+i}, v{RT+i}")
    FR, FI = 104, 112
    for i in range(8):
        e(f"v_cvt_pk_bf16_f32 v{FR+i}, v{RE+2*i}, v{RE+2*i+1}")
        e(f"v_cvt_pk_bf16_f32 v{FI+i}, v{IM+2*i}, v{IM+2*i+1}")
    e("s_waitcnt lgkmcnt(8)")
    KR, KI = 120, 124
    e(f"v_mfma_f32_16x16x32_bf16 v[{KR}:{KR+3}], v[{MF}:{MF+3}], v[{FR}:{FR+3}], 0")
    e(f"v_mfma_f32_16x16x32_bf16 v[{KI}:{KI+3}], v[{MF}:{MF+3}], v[{FI}:{FI+3}], 0")
    e(f"v_mfma_f32_16x16x32_bf16 v[{KR}:{KR+3}], v[{MF+4}:{MF+7}], v[{FR+4}:{FR+7}], v[{KR}:{KR+3}]")
    e(f"v_mfma_f32_16x16x32_bf16 v[{KI}:{KI+3}], v[{MF+4}:{MF+7}], v[{FI+4}:{FI+7}], v[{KI}:{KI+3}]")
    e("s_waitcnt lgkmcnt(0)")
    AC = 32
    for ks in range(2):
        for u in range(2):
            for c, (fm, kk) in enumerate(((FR, KR), (FI, KI))):
                a = AC + 8 * c + 4 * u
                src = f"v[{kk}:{kk+3}]" if ks == 0 else f"v[{a}:{a+3}]"
                d = DA + 8 * u + 4 * ks
                e(f"v_mfma_f32_16x16x32_bf16 v[{a}:{a+3}], v[{d}:{d+3}], v[{fm+4*ks}:{fm+4*ks+3}], {src}")
    e("v_and_b32 v20, 7, v12\nv_lshlrev_b32 v20, 1, v20")
    e("s_and_b32 s22, s3, 3\ns_lshl_b32 s22, s22, 2")
    e("v_add_u32 v21, s22, v11\nv_xor_b32 v21, v21, v20\nv_lshlrev_b32 v21, 4, v21")
    e("v_lshl_add_u32 v21, v12, 9, v21")
    for c in range(2):
        for i in range(4):
            e(f"v_cvt_pk_bf16_f32 v{48+4*c+i}, v{AC+8*c+2*i}, v{AC+8*c+2*i+1}")
    for c in range(2):
        e(f"ds_write_b128 v21, v[{48+4*c}:{51+4*c}] offset:{OT + 256*c}")
    e("s_lshl_b32 s22, s3, 3")
    e("v_add_u32 v22, s22, v11")
    for a in range(2):
        if a:
            e("v_add_u32 v22, 4, v22")
        e("v_bfe_u32 v23, v22, 1, 3\nv_lshlrev_b32 v23, 1, v23")
        e("v_xor_b32 v23, v23, v10\nv_lshlrev_b32 v23, 4, v23")
        e(f"v_lshl_add_u32 v{24+a}, v22, 8, v23")
        e(f"v_mul_u32_u24 v23, 40960, v22")
        e(f"v_lshl_add_u32 v{26+a}, v10, 4, v23")
    e("s_mul_i32 s22, s18, 1280\ns_lshl_b32 s23, s19, 8\ns_add_u32 s22, s22, s23")
    e("s_waitcnt lgkmcnt(0)\ns_barrier")
    ts(k, 5)
    for a in range(2):
        e(f"ds_read_b128 v[{56+4*a}:{59+4*a}], v{24+a} offset:{OT}")
    for a in range(2):
        e(f"s_waitcnt lgkmcnt({1-a})")
        e(f"buffer_store_dwordx4 v[{56+4*a}:{59+4*a}], v{26+a}, s[28:31], s22 offen")
    e(f"s_branch {L('fin')}")

    e(f"{L('notfft')}:")
    e(f"s_cmp_ge_u32 s2, 220\ns_cbranch_scc1 {L('notmod')}")
    e("s_sub_u32 s16, s2, 160")
    e("v_lshrrev_b32 v10, 3, v1\nv_and_b32 v11, 7, v1")
    e("s_mul_i32 s17, s3, 80")
    e("v_add_u32 v12, s17, v10")
    e("v_mul_u32_u24 v13, 7680, v12\nv_lshl_add_u32 v13, v11, 4, v13")
    e("v_lshlrev_b32 v12, 1, v12")
    e("s_lshl_b32 s17, s16, 7")
    e("s_waitcnt lgkmcnt(0)")
    srd(k, 24, 12, 0, 1280)
    srd(k, 28, 14, 0, 640 * 7680)
    for i in range(10):
        e(f"buffer_load_ushort v{20+i}, v12, s[24:27], 0 offen offset:{16*i}")
    for i in range(10):
        e(f"s_add_u32 s18, s17, {i*8*7680}")
        e(f"buffer_load_dwordx4 v[{64+4*i}:{67+4*i}], v13, s[28:31], s18 offen")
    srd(k, 32, 10, WS_MOD, SZ_MOD)
    for j in range(8):
        e(f"v_mov_b32 v{50+j}, 0")
    e("s_waitcnt vmcnt(10)")
    for i in range(10):
        e(f"v_lshlrev_b32 v{20+i}, 16, v{20+i}")
    for i in range(10):
        e(f"v_mul_f32 v{30+i}, {fhex(-1.4426950408889634)}, v{20+i}")
    for i in range(10):
        e(f"v_exp_f32 v{30+i}, v{30+i}")
    for i in range(10):
        e(f"v_add_f32 v{30+i}, 1.0, v{30+i}")
    for i in range(10):
        e(f"v_rcp_f32 v{30+i}, v{30+i}")
    for i in range(10):
        e(f"v_mul_f32 v{20+i}, v{20+i}, v{30+i}")
    for i in range(10):
        e(f"v_cvt_pk_bf16_f32 v{30+i}, v{20+i}, 0")
        e(f"v_cvt_pk_bf16_f32 v{40+i}, 0, v{20+i}")
    for i in range(10):
        e(f"s_waitcnt vmcnt({9-i})")
        for d in range(4):
            e(f"v_dot2_f32_bf16 v{50+2*d}, v{64+4*i+d}, v{30+i}, v{50+2*d}")
            e(f"v_dot2_f32_bf16 v{51+2*d}, v{64+4*i+d}, v{40+i}, v{51+2*d}")
    e("s_nop 2")
    for j in range(4):
        e(f"v_permlane32_swap_b32 v{50+j}, v{54+j}")
    for j in range(4):
        e(f"v_add_f32 v{50+j}, v{50+j}, v{54+j}")
    for j in range(2):
        e(f"v_permlane16_swap_b32 v{50+j}, v{52+j}")
    for j in range(2):
        e(f"v_add_f32 v{50+j}, v{50+j}, v{52+j}")
    e("v_bfe_u32 v14, v1, 3, 1\ns_lshl_b32 s18, s3, 1\nv_add_u32 v14, s18, v14\nv_lshlrev_b32 v14, 8, v14")
    e("v_lshrrev_b32 v15, 4, v1\nv_lshlrev_b32 v15, 3, v15\nv_lshl_add_u32 v15, v11, 5, v15\nv_add_u32 v14, v14, v15")
    e("ds_write_b64 v14, v[50:51]")
    e("s_waitcnt lgkmcnt(0)\ns_barrier")
    e(f"s_cmp_lg_u32 s3, 0\ns_cbranch_scc1 {L('fin')}")
    e("v_lshlrev_b32 v14, 2, v1")
    for p in range(16):
        e(f"ds_read_b32 v{64+p}, v14 offset:{256*p}")
    e("s_waitcnt lgkmcnt(0)")
    for st in (8, 4, 2, 1):
        for p in range(st):
            e(f"v_add_f32 v{64+p}, v{64+p}, v{64+p+st}")
    e("v_cvt_pk_bf16_f32 v64, 0, v64")
    e("s_mul_i32 s18, s16, 205\ns_lshr_b32 s18, s18, 11")
    e("s_cmp_eq_u32 s18, 1\ns_cselect_b32 s19, 1.0, 0")
    e("s_cmp_eq_u32 s18, 4\ns_cselect_b32 s19, 1.0, s19")
    e("v_add_f32 v64, s19, v64")
    e("v_cvt_pk_bf16_f32 v64, 0, v64")
    e("s_lshl_b32 s18, s16, 8")
    e("buffer_store_dword v64, v14, s[32:35], s18 offen")
    e(f"s_branch {L('fin')}")

    e(f"{L('notmod')}:")
    e(f"s_cmp_ge_u32 s2, 240\ns_cbranch_scc1 {L('notwin')}")
    PI = 3488
    e("s_sub_u32 s16, s2, 220")
    e("v_lshlrev_b32 v10, 4, v1")
    e("s_lshl_b32 s17, s16, 5\ns_lshl_b32 s18, s3, 2\ns_add_u32 s17, s17, s18")
    e("s_mul_i32 s17, s17, 3456")
    e("s_and_b32 s18, s3, 1\ns_lshl_b32 s18, s18, 4\ns_lshr_b32 s19, s3, 1\ns_lshl_b32 s19, s19, 2\ns_add_u32 s18, s18, s19")
    e(f"s_mul_i32 s18, s18, {PI}")
    e("s_waitcnt lgkmcnt(0)")
    srd(k, 24, 6, 0, 640 * 3456)
    for i in range(4):
        if i == 3:
            e("s_mov_b64 exec, 0xffffff")
        for r in range(4):
            e(f"s_add_u32 s19, s17, {r*3456 + i*1024}")
            e(f"s_add_u32 m0, s18, {r*PI + i*1024}")
            e("buffer_load_dwordx4 v10, s[24:27], s19 offen lds")
    e("s_mov_b64 exec, -1")
    srd(k, 28, 10, WS_WINP, SZ_WINP)
    e("v_lshrrev_b32 v11, 2, v1\nv_and_b32 v12, 3, v1")
    e(f"v_mul_u32_u24 v11, {PI}, v11\nv_lshl_add_u32 v11, v12, 3, v11")
    e("s_mul_i32 s19, s3, 432\nv_add_u32 v11, s19, v11")
    e("s_mul_i32 s19, s3, 40\ns_add_u32 s19, s19, s16\ns_mul_i32 s19, s19, 7168")
    e("s_waitcnt vmcnt(0)\ns_barrier")
    for i in range(14):
        for h in range(2):
            b = 16 + 4 * i + 2 * h
            e(f"ds_read_b64_tr_b16 v[{b}:{b+1}], v11 offset:{32*i + 16*PI*h}")
        if i >= 6:
            j = i - 6
            e(f"s_waitcnt lgkmcnt(12)")
            e(f"s_add_u32 s20, s19, {(j//7)*20*7168 + (j%7)*1024}")
            e(f"buffer_store_dwordx4 v[{16+4*j}:{19+4*j}], v10, s[28:31], s20 offen")
    for j in range(8, 14):
        e(f"s_waitcnt lgkmcnt({2*(13-j)})")
        e(f"s_add_u32 s20, s19, {(j//7)*20*7168 + (j%7)*1024}")
        e(f"buffer_store_dwordx4 v[{16+4*j}:{19+4*j}], v10, s[28:31], s20 offen")
    e(f"s_branch {L('fin')}")

    e(f"{L('notwin')}:")
    e(f"s_cmp_ge_u32 s2, 254\ns_cbranch_scc1 {L('zero')}")
    e("s_sub_u32 s16, s2, 240\ns_lshl_b32 s16, s16, 1\ns_lshr_b32 s17, s3, 2\ns_add_u32 s16, s16, s17")
    dma_rows1280_addr(k, 1, 4, 10, 1280)
    e("s_mul_i32 s17, s16, 37\ns_lshr_b32 s17, s17, 8")
    e("s_mul_i32 s18, s17, 7\ns_sub_u32 s18, s16, s18")
    e("s_bfe_u32 s19, s3, 0x10001")
    e("s_lshl_b32 s20, s18, 5\ns_lshl_b32 s21, s19, 4\ns_add_u32 s20, s20, s21")
    e("s_cmp_ge_u32 s18, 3\ns_cselect_b32 s21, 16, 0\ns_add_u32 s20, s20, s21")
    e("s_mul_i32 s21, s19, 112\ns_add_u32 s21, s21, 96")
    e("s_cmp_eq_u32 s18, 6\ns_cselect_b32 s20, s21, s20")
    e("s_mul_i32 s21, s17, 216\ns_add_u32 s20, s20, s21")
    e("s_and_b32 s21, s3, 1\ns_lshl_b32 s21, s21, 3\ns_add_u32 s20, s20, s21")
    e("s_mul_i32 s20, s20, 1280\ns_mul_i32 s21, s3, 10240")
    e("s_waitcnt lgkmcnt(0)")
    srd(k, 24, 8, 0, 864 * 1280)
    dma_rows1280_issue(k, 4, 24, 20, 21, 22, 1280)
    e(f"s_cmp_ge_u32 s2, 248\ns_cbranch_scc1 {L('nopf')}")
    code_srd(k, 32, "p2_kernel", "code_end-p2_kernel")
    e("s_lshl_b32 s22, s3, 13\nv_lshlrev_b32 v10, 7, v1\nbuffer_load_dword v126, v10, s[32:35], s22 offen")
    e(f"{L('nopf')}:")
    srd(k, 28, 10, WS_WOUTP, SZ_WOUTP)
    e("v_lshrrev_b32 v10, 2, v1\nv_and_b32 v11, 3, v1")
    e("v_and_b32 v12, 7, v10\nv_lshlrev_b32 v12, 1, v12")
    e("v_mul_u32_u24 v10, 1280, v10\nv_and_b32 v13, 1, v11\nv_lshl_add_u32 v10, v13, 3, v10")
    e("s_lshr_b32 s17, s3, 2\ns_mul_i32 s17, s17, 40960\nv_add_u32 v10, s17, v10")
    e("s_and_b32 s17, s3, 3\ns_mul_i32 s18, s17, 20\nv_lshrrev_b32 v11, 1, v11\nv_add_u32 v11, s18, v11")
    for i in range(10):
        e(f"v_add_u32 v13, {2*i}, v11\nv_xor_b32 v13, v13, v12\nv_lshl_add_u32 v{20+i}, v13, 4, v10")
    e("s_mul_i32 s17, s17, 56\ns_add_u32 s17, s17, s16\ns_mul_i32 s17, s17, 5120")
    e("v_lshlrev_b32 v10, 4, v1")
    e("s_waitcnt vmcnt(0)\ns_barrier")
    for i in range(10):
        for h in range(2):
            b = 32 + 4 * i + 2 * h
            e(f"ds_read_b64_tr_b16 v[{b}:{b+1}], v{20+i} offset:{16*1280*h}")
        if i >= 6:
            j = i - 6
            e("s_waitcnt lgkmcnt(12)")
            e(f"s_add_u32 s20, s17, {(j//5)*28*5120 + (j%5)*1024}")
            e(f"buffer_store_dwordx4 v[{32+4*j}:{35+4*j}], v10, s[28:31], s20 offen")
    for j in range(4, 10):
        e(f"s_waitcnt lgkmcnt({2*(9-j)})")
        e(f"s_add_u32 s20, s17, {(j//5)*28*5120 + (j%5)*1024}")
        e(f"buffer_store_dwordx4 v[{32+4*j}:{35+4*j}], v10, s[28:31], s20 offen")
    e(f"s_branch {L('fin')}")

    e(f"{L('zero')}:")
    e("s_waitcnt lgkmcnt(0)")
    srd(k, 24, 10, WS_STATS, SZ_STATS)
    e("v_lshlrev_b32 v10, 4, v0")
    for i in range(4):
        e(f"v_mov_b32 v{12+i}, 0")
    e("buffer_store_dwordx4 v[12:15], v10, s[24:27], 0 offen")
    e("s_mov_b32 s16, 8192")
    e("buffer_store_dwordx4 v[12:15], v10, s[24:27], s16 offen")
    e(f"{L('fin')}:")
    ts_end(k, 0, 10, 100)
    e(f"{L('end')}:")
    e("s_endpgm")
    e("p1_code_end:")
    return k
```

```python
from common import *

C1 = 2 * 0.7978845608028654 * 1.4426950408889634
C2 = C1 * 0.044715


def gelu(e, regs, tmp, vneg_c2):
    n = len(regs)
    for i, r in enumerate(regs):
        e(f"v_mul_f32 v{tmp+i}, v{r}, v{r}")
    for i in range(n):
        e(f"v_fmaak_f32 v{tmp+i}, v{tmp+i}, v{vneg_c2}, {fhex(-C1)}")
    for i, r in enumerate(regs):
        e(f"v_mul_f32 v{tmp+i}, v{tmp+i}, v{r}")
    for i in range(n):
        e(f"v_exp_f32 v{tmp+i}, v{tmp+i}")
    for i in range(n):
        e(f"v_add_f32 v{tmp+i}, 1.0, v{tmp+i}")
    for i in range(n):
        e(f"v_rcp_f32 v{tmp+i}, v{tmp+i}")
    for i, r in enumerate(regs):
        e(f"v_mul_f32 v{r}, v{r}, v{tmp+i}")


def build(diag=False):
    k = Kern("p3_kernel", 256, 768, 163840, vgpr=128, sgpr=96 if diag else 64)
    k.diag = diag
    e = k.e
    L = k.lab
    SL = 32768
    ts_begin(k)
    e(f"s_cmp_ge_u32 s2, 256\ns_cbranch_scc1 {L('end')}")
    e(f"s_load_dwordx2 s[10:11], s[0:1], {KA_WS}")
    e(f"s_load_dwordx2 s[8:9], s[0:1], {KA_WSP}")
    e("v_and_b32 v1, 63, v0\nv_lshrrev_b32 v2, 6, v0\nv_readfirstlane_b32 s3, v2")
    e("s_and_b32 s16, s2, 7\ns_lshr_b32 s17, s2, 3")
    e("s_and_b32 s18, s16, 3\ns_lshl_b32 s18, s18, 2\ns_and_b32 s19, s17, 3\ns_add_u32 s18, s18, s19")
    e("s_lshr_b32 s19, s16, 2\ns_lshl_b32 s19, s19, 2\ns_bfe_u32 s20, s17, 0x20002\ns_add_u32 s19, s19, s20")
    e("s_lshr_b32 s17, s17, 4\ns_lshl_b32 s17, s17, 3\ns_add_u32 s19, s19, s17")
    e("v_lshlrev_b32 v5, 4, v1")
    e(f"s_cmp_lt_u32 s3, 4\ns_cbranch_scc1 {L('loader')}")
    e("s_sub_u32 s3, s3, 4")
    e("v_and_b32 v2, 15, v1\nv_lshrrev_b32 v3, 4, v1")
    e("v_lshrrev_b32 v15, 2, v2\nv_and_b32 v16, 3, v2")
    e("v_lshrrev_b32 v17, 1, v16\nv_lshlrev_b32 v17, 2, v17\nv_and_b32 v18, 2, v15\nv_or_b32 v17, v17, v18")
    e("v_xor_b32 v17, v17, v3\nv_lshlrev_b32 v17, 4, v17")
    e("v_lshl_add_u32 v16, v15, 3, v16\nv_lshl_add_u32 v6, v16, 7, v17")
    e("s_and_b32 s23, s3, 3\ns_lshl_b32 s23, s23, 12\nv_add_u32 v6, s23, v6\nv_xor_b32 v7, 64, v6")
    e("s_lshr_b32 s23, s3, 2\ns_lshl_b32 s23, s23, 12\nv_add_u32 v12, s23, v5")
    for b in (1, 2):
        e(f"v_add_u32 v{6+2*b}, {65536*b}, v6\nv_add_u32 v{7+2*b}, {65536*b}, v7\nv_add_u32 v{12+b}, {65536*b}, v12")
    e(f"v_mov_b32 v15, {fhex(-C2)}")
    e("s_lshl_b32 s20, s18, 2\ns_and_b32 s21, s3, 3\ns_add_u32 s20, s20, s21")
    e("s_and_b32 s21, s19, 7")
    e("s_waitcnt lgkmcnt(0)")
    ts(k, 1)
    AC, FRG = 32, 64

    def variant(z2, nt, tag):
        if z2:
            srd(k, 24, 10, WS_Z2P, SZ_Z2P)
            srd(k, 28, 10, WS_STATS, SZ_STATS)
            e("s_lshl_b32 s22, s21, 6\ns_add_u32 s22, s22, s20")
        else:
            srd(k, 24, 10, WS_Z1P, SZ_Z1P)
            e("s_lshl_b32 s22, s20, 3\ns_add_u32 s22, s22, s21")
        e(f"s_mul_i32 s22, s22, 7168")
        if nt == 3:
            e("s_add_u32 s22, s22, 4096")

        def reads(kap):
            st, ks = divmod(kap, 2)
            sl = st % 5
            base, off = sl // 2, (sl % 2) * SL
            b = FRG + 24 * (kap % 2)
            out = []
            for mt in range(2):
                out.append(f"ds_read_b128 v[{b+4*mt}:{b+4*mt+3}], v{6+2*base+ks} offset:{off + 512*mt}")
            for j in range(nt):
                out.append(f"ds_read_b128 v[{b+8+4*j}:{b+11+4*j}], v{12+base} offset:{off + 16384 + (7*ks+j)*1024}")
            return out

        ts(k, 2)
        e("s_barrier")
        ts(k, 3)
        for x in reads(0):
            e(x)
        for kap in range(20):
            nxt = kap + 1
            e("s_waitcnt lgkmcnt(0)")
            if nxt < 20 and nxt % 2 == 0:
                e("s_barrier")
                if nxt // 2 in (2, 4, 6, 8):
                    ts(k, 3 + nxt // 4)
            rd = reads(nxt) if nxt < 20 else []
            b = FRG + 24 * (kap % 2)
            for j in range(nt):
                for mt in range(2):
                    a = AC + 8 * j + 4 * mt
                    h, w = f"v[{b+4*mt}:{b+4*mt+3}]", f"v[{b+8+4*j}:{b+11+4*j}]"
                    src = "0" if kap == 0 else f"v[{a}:{a+3}]"
                    for _ in range(2):
                        if rd:
                            e(rd.pop(0))
                    e(f"v_mfma_f32_16x16x32_bf16 v[{a}:{a+3}], {h if z2 else w}, {w if z2 else h}, {src}")
        ts(k, 8)
        ST = 96
        for j in range(nt):
            regs = [AC + 8 * j + i for i in range(8)]
            gelu(e, regs, FRG, 15)
            if z2 and nt == 3 and j == 2:
                e("s_and_b32 s23, s19, 1\ns_cmp_eq_u32 s23, 1\ns_cselect_b32 s40, 0x00ff00ff, -1\ns_mov_b32 s41, s40")
                for r in regs:
                    e(f"v_cndmask_b32 v{r}, 0, v{r}, s[40:41]")
            for i in range(4):
                e(f"v_cvt_pk_bf16_f32 v{FRG+8+4*j+i}, v{regs[2*i]}, v{regs[2*i+1]}")
            e(f"buffer_store_dwordx4 v[{FRG+8+4*j}:{FRG+11+4*j}], v5, s[24:27], s22 offen offset:{1024*j}")
            if z2:
                for i, r in enumerate(regs):
                    if j == 0:
                        e(f"v_mov_b32 v{ST+2*i}, v{r}\nv_mul_f32 v{ST+2*i+1}, v{r}, v{r}")
                    else:
                        e(f"v_add_f32 v{ST+2*i}, v{ST+2*i}, v{r}\nv_fmac_f32 v{ST+2*i+1}, v{r}, v{r}")
        if z2:
            m = 8
            for mask, dpp in ((0xff00ff00, "row_ror:8"), (0xf0f0f0f0, "row_half_mirror"),
                              (0xcccccccc, "quad_perm:[2,3,0,1]"), (0xaaaaaaaa, "quad_perm:[1,0,3,2]")):
                e(f"s_mov_b32 s40, 0x{mask:x}\ns_mov_b32 s41, s40")
                for i in range(m):
                    e(f"v_cndmask_b32 v{AC+i}, v{ST+i+m}, v{ST+i}, s[40:41]")
                for i in range(m):
                    e(f"v_cndmask_b32 v{ST+i}, v{ST+i}, v{ST+i+m}, s[40:41]")
                for i in range(m):
                    e(f"v_add_f32_dpp v{ST+i}, v{AC+i}, v{ST+i} {dpp} row_mask:0xf bank_mask:0xf")
                m //= 2
            e("v_lshlrev_b32 v2, 2, v1\ns_lshl_b32 s20, s20, 8")
            e(f"buffer_atomic_add_f32 v{ST}, v2, s[28:31], s20 offen")
        e(f"s_branch {L('fin')}")

    e(f"s_cmp_ge_u32 s19, 8\ns_cbranch_scc1 {L('z2')}")
    e(f"s_cmp_ge_u32 s3, 4\ns_cbranch_scc1 {L('z1b')}")
    variant(False, 4, "z1a")
    e(f"{L('z1b')}:")
    variant(False, 3, "z1b")
    e(f"{L('z2')}:")
    e(f"s_cmp_ge_u32 s3, 4\ns_cbranch_scc1 {L('z2b')}")
    variant(True, 4, "z2a")
    e(f"{L('z2b')}:")
    variant(True, 3, "z2b")
    e(f"{L('fin')}:")
    ts(k, 9)
    ts_end(k, 2, 10, 120)
    e("s_endpgm")

    e(f"{L('loader')}:")
    e("v_lshrrev_b32 v2, 3, v1\nv_and_b32 v3, 7, v1\nv_bfe_u32 v4, v2, 1, 1\nv_lshlrev_b32 v4, 2, v4")
    e("v_xor_b32 v3, v3, v4\nv_mul_u32_u24 v2, 1280, v2\nv_lshl_add_u32 v10, v3, 4, v2")
    e(f"v_add_u32 v11, {10240-1024}, v10\nv_xor_b32 v12, 32, v10\nv_add_u32 v12, {2*(10240-1024)}, v12\nv_add_u32 v13, {10240-1024}, v12")
    e("s_lshl_b32 s20, s18, 2\ns_add_u32 s20, s20, s3\ns_mul_i32 s20, s20, 40960")
    e("s_mul_i32 s21, s19, 35\ns_add_u32 s21, s21, s3\ns_lshl_b32 s21, s21, 12")
    e("s_lshl_b32 s22, s3, 12")
    e("s_cmp_eq_u32 s3, 3\ns_cselect_b32 s45, 0x40000000, 0")
    e("s_waitcnt lgkmcnt(0)")
    srd(k, 24, 10, WS_H2, SZ_H2)
    srd(k, 28, 10, WS_WINP, SZ_WINP)

    def dma(st):
        sl = (st % 5) * SL
        e(f"s_add_u32 s23, s20, {st*128}\ns_add_u32 m0, s22, {sl}")
        for i in range(4):
            e(f"buffer_load_dwordx4 v{10+i}, s[24:27], s23 offen offset:{1024*i} lds")
        e(f"s_add_u32 s23, s21, {st*14336}\ns_add_u32 m0, s22, {sl + 16384}\ns_add_u32 s44, s23, s45")
        for i in range(4):
            e(f"buffer_load_dwordx4 v5, s[28:31], s{23 if i < 2 else 44} offen offset:{1024*i} lds")

    dma(0)
    dma(1)
    last = 1
    extra = 0
    for st in range(10):
        e(f"s_waitcnt vmcnt({8*(last-st) + extra})\ns_barrier")
        hi = min(9, st + 4, last + 2)
        while last < hi:
            last += 1
            dma(last)
        if st == 6:
            srd(k, 32, 8, 0, S * 4096)
            e("s_lshr_b32 s23, s2, 3\ns_lshl_b32 s23, s23, 2\ns_add_u32 s23, s23, s3\ns_lshl_b32 s23, s23, 13\nv_lshlrev_b32 v2, 7, v1")
            e("s_and_b32 s44, s16, 3\ns_lshl_b32 s44, s44, 21\ns_add_u32 s44, s44, s23\ns_lshr_b32 s23, s16, 2\ns_xor_b32 s23, s23, 1\ns_lshl_b32 s23, s23, 20\ns_add_u32 s44, s44, s23")
            e("buffer_load_dword v20, v2, s[32:35], s44 offen")
            code_srd(k, 36, "p4_kernel", "p2_tab-p4_kernel")
            e("s_lshl_b32 s44, s3, 10\nbuffer_load_dword v21, v5, s[36:39], s44 offen\ns_add_u32 s44, s44, 4096\nbuffer_load_dword v22, v5, s[36:39], s44 offen")
            extra = 3
    e(f"{L('end')}:")
    e("s_endpgm")
    return k
```

```python
from common import *

WU, ZB0, ZU, TBL = 16384, 65536, 14336, 151552
OOB = 0x40000000
DZ = 4


def build(diag=False):
    k = Kern("p4_kernel", 256, 512, TBL + 12288, vgpr=216, sgpr=96 if diag else 64)
    k.diag = diag
    e = k.e
    L = k.lab
    ts_begin(k)
    e(f"s_cmp_ge_u32 s2, 256\ns_cbranch_scc1 {L('end')}")
    e(f"s_load_dwordx4 s[4:7], s[0:1], {KA_WSP}")
    e(f"s_load_dwordx2 s[10:11], s[0:1], {KA_WS}")
    e("v_and_b32 v1, 63, v0\nv_lshrrev_b32 v2, 6, v0\nv_readfirstlane_b32 s3, v2")
    e("s_and_b32 s16, s2, 7\ns_lshr_b32 s17, s2, 3")
    e("s_and_b32 s18, s16, 3\ns_lshl_b32 s18, s18, 3\ns_and_b32 s19, s17, 7\ns_add_u32 s18, s18, s19")
    e("s_lshr_b32 s19, s16, 2\ns_lshl_b32 s19, s19, 2\ns_lshr_b32 s17, s17, 3\ns_add_u32 s19, s19, s17")
    e("v_lshlrev_b32 v5, 4, v1")
    e("s_and_b32 s16, s3, 1\ns_bfe_u32 s17, s3, 0x10001")
    e(f"s_cmp_ge_u32 s3, 4\ns_cbranch_scc1 {L('loader')}")

    e("s_lshl_b32 s23, s3, 12")
    e("s_waitcnt lgkmcnt(0)")
    ts(k, 1)
    srd(k, 32, 10, WS_STATS, SZ_STATS)
    STV = 96
    for a in range(4):
        e(f"buffer_load_dwordx4 v[{STV+4*a}:{STV+4*a+3}], v5, s[32:35], s23 offen offset:{1024*a}")
    srd(k, 36, 10, WS_Z1P, SZ_Z1P)
    srd(k, 40, 6, 0, 4096)
    e("v_and_b32 v2, 15, v1\nv_lshrrev_b32 v3, 4, v1")
    e("v_lshrrev_b32 v15, 2, v2\nv_and_b32 v16, 3, v2")
    e("v_lshl_add_u32 v18, v15, 3, v16")
    Z1, BS = 192, 206
    e("s_lshl_b32 s46, s18, 1\ns_add_u32 s46, s46, s16\ns_lshl_b32 s47, s46, 3\ns_add_u32 s47, s47, s19\ns_mul_i32 s47, s47, 7168")
    e("s_lshl_b32 s44, s17, 3\nv_add_u32 v17, s44, v5\ns_add_u32 s44, s47, 4096")
    for j in range(7):
        so, off = ("s47", 1024 * j) if j < 4 else ("s44", 1024 * (j - 4))
        e(f"buffer_load_dwordx2 v[{Z1+2*j}:{Z1+2*j+1}], v17, s[36:39], {so} offen offset:{off}")
    e("s_lshl_b32 s46, s46, 6\ns_lshl_b32 s45, s17, 3\ns_add_u32 s46, s46, s45\nv_lshlrev_b32 v17, 1, v18")
    e(f"buffer_load_ushort v{BS}, v17, s[40:43], s46 offen")
    e("v_lshrrev_b32 v17, 1, v16\nv_lshlrev_b32 v17, 2, v17\nv_and_b32 v19, 2, v15\nv_or_b32 v17, v17, v19")
    e("v_xor_b32 v17, v17, v3\nv_lshlrev_b32 v17, 4, v17\nv_lshl_add_u32 v8, v18, 7, v17")
    e("s_lshl_b32 s44, s17, 13\ns_lshl_b32 s45, s16, 12\ns_add_u32 s44, s44, s45\ns_lshl_b32 s45, s17, 9\ns_add_u32 s44, s44, s45")
    e("v_add_u32 v8, s44, v8\nv_xor_b32 v9, 64, v8\nv_xor_b32 v10, 512, v8\nv_xor_b32 v11, 512, v9")
    e(f"s_mul_i32 s44, s17, 7168\ns_add_u32 s44, s44, {ZB0}\nv_add_u32 v12, s44, v5")
    e(f"s_lshl_b32 s44, s17, 11\ns_add_u32 s44, s44, {TBL+8192}\nv_lshl_add_u32 v14, v3, 4, s44")
    e(f"s_lshl_b32 s44, s17, 12\ns_add_u32 s44, s44, {TBL}\nv_lshl_add_u32 v13, v18, 2, s44")
    e(f"s_lshl_b32 s44, s3, 11\ns_add_u32 s44, s44, {TBL}\nv_lshl_add_u32 v6, v1, 3, s44")
    e(f"s_lshl_b32 s44, s3, 10\ns_add_u32 s44, s44, {TBL+8192}\nv_lshl_add_u32 v7, v1, 2, s44")
    e("v_and_b32 v19, 1, v2\nv_mov_b32 v20, 0xffff\nv_lshlrev_b32 v19, 4, v19\nv_lshlrev_b32 v20, v19, v20")
    e("v_cmp_eq_u32 vcc, v15, v3\nv_cndmask_b32 v20, 0, v20, vcc")
    e("v_cmp_gt_u32 vcc, 2, v16\nv_cndmask_b32 v21, v20, 0, vcc\nv_cndmask_b32 v20, 0, v20, vcc")
    ACC = lambda s_, j: 32 + 32 * s_ + 4 * j
    ZB = [96, 128]
    RAW, RRV, DG, SO, WP = 160, 22, 24, 168, 184
    e(f"v_mov_b32 v16, {fhex(1e-5)}")
    for i in range(64):
        e(f"v_mov_b32 v{32+i}, 0")
    e("s_waitcnt vmcnt(8)")
    ts(k, 2)
    for a in range(4):
        for h in range(2):
            s1, s2 = STV + 4 * a + 2 * h, STV + 4 * a + 2 * h + 1
            e(f"v_mul_f32 v{s1}, {fhex(-1/864)}, v{s1}")
            e(f"v_fmamk_f32 v{s2}, v{s2}, {fhex(1/864)}, v16")
            e(f"v_fma_f32 v{s2}, -v{s1}, v{s1}, v{s2}")
            e(f"v_rsq_f32 v{s2}, v{s2}")
        b = STV + 4 * a
        e(f"v_cvt_pk_bf16_f32 v{b}, v{b}, v{b+2}")
        e(f"v_cvt_pk_bf16_f32 v{b+2}, v{b+1}, v{b+1}")
        e(f"v_cvt_pk_bf16_f32 v{b+3}, v{b+3}, v{b+3}")
        e(f"ds_write_b64 v6, v[{b+2}:{b+3}] offset:{512*a}")
        e(f"ds_write_b32 v7, v{b} offset:{256*a}")
    e(f"v_mov_b32 v{DG+2}, 0\nv_mov_b32 v{DG+3}, 0")
    e("s_waitcnt lgkmcnt(0)")
    ts(k, 3)
    WPB = [184, 208]

    def period(par, do_main=True, do_scale=True, do_z=True, tail=()):
        rd = []
        for s_ in range(2):
            rd.append(f"ds_read_b128 v[{RAW+4*s_}:{RAW+4*s_+3}], v{8+2*s_+par}")
        rd.append(f"ds_read2_b32 v[{RRV}:{RRV+1}], v13 offset0:{32*par} offset1:{32*par+4}")
        b = ZB[1 - par]
        if do_z:
            for j in range(7):
                rd.append(f"ds_read_b128 v[{b+4*j}:{b+4*j+3}], v12 offset:{par*ZU + j*1024}")
            rd.append(f"ds_read_b128 v[{b+28}:{b+31}], v14 offset:{par*64}")
        main = mains(par) if do_main else []
        cv = [f"v_cvt_pk_bf16_f32 v{WPB[1-par]+i}, v{SO+2*i}, v{SO+2*i+1}" for i in range(8)] if do_scale else []
        cv += list(tail)
        ands = [f"v_and_b32 v{DG}, v{RRV}, v20", f"v_and_b32 v{DG+1}, v{RRV}, v21",
                f"v_and_b32 v{DG+4}, v{RRV+1}, v20", f"v_and_b32 v{DG+5}, v{RRV+1}, v21"]
        zr = rd[3:]
        if do_scale:
            for s_ in range(2):
                for h in range(2):
                    o = SO + 8 * s_ + 4 * h
                    e(f"v_mfma_f32_16x16x32_bf16 v[{o}:{o+3}], v[{DG+2*h}:{DG+2*h+3}], v[{RAW+4*s_}:{RAW+4*s_+3}], 0")
                    if zr:
                        e(zr.pop(0))
        rest = rd[:3] + zr
        fill = cv + ["s_waitcnt lgkmcnt(0)"] + ands
        for n, m in enumerate(main):
            e(m)
            if rest:
                e(rest.pop(0))
            else:
                c = 0
                while fill and c < 2:
                    x = fill.pop(0)
                    e(x)
                    c += 0.5 if x.startswith("s_") else 1
        for x in rest + fill:
            e(x)

    def mains(par):
        b = ZB[par]
        out = []
        for j in range(8):
            for s_ in range(2):
                a = ACC(s_, j)
                out.append(f"v_mfma_f32_16x16x32_bf16 v[{a}:{a+3}], v[{b+4*j}:{b+4*j+3}], v[{WPB[par]+4*s_}:{WPB[par]+4*s_+3}], v[{a}:{a+3}]")
        return out

    def advance():
        t = [f"v_add_u32 v{r}, s50, v{r}" for r in (8, 9, 10, 11)]
        t += ["v_add_u32 v12, s51, v12", "v_add_u32 v13, 256, v13", "v_add_u32 v14, 128, v14"]
        return t

    def deltas():
        return (f"s_add_u32 s48, s48, 1\ns_and_b32 s44, s48, 3\ns_cmp_eq_u32 s44, 0\ns_cselect_b32 s50, {-3*WU}, s52\n"
                f"s_add_u32 s49, s49, 1\ns_cmp_eq_u32 s49, 3\ns_cselect_b32 s51, {-4*ZU}, s53\ns_cselect_b32 s49, 0, s49\n"
                "s_cmp_lt_u32 s48, 17").split("\n")

    e(f"s_mov_b32 s48, 0\ns_mov_b32 s49, 0\ns_mov_b32 s52, {WU}\ns_mov_b32 s53, {2*ZU}")
    e("v_subrev_u32 v14, 64, v14")
    e("s_barrier")
    period(0, do_main=False, do_scale=False, do_z=False, tail=deltas())
    e("s_barrier")
    period(1, do_main=False, tail=advance())
    ts(k, 4)
    e(f"{L('cloop')}:")
    e("s_barrier")
    period(0, tail=deltas())
    e("s_barrier")
    period(1, tail=advance())
    e(f"s_cbranch_scc1 {L('cloop')}")
    ts(k, 6)
    e("s_xor_b32 s44, s3, 2\ns_lshl_b32 s44, s44, 13\nv_add_u32 v8, s44, v5\nv_lshl_add_u32 v10, v1, 2, s44")
    for j in range(7):
        a = ACC(1, j)
        e(f"ds_write_b128 v8, v[{a}:{a+3}] offset:{1024*j}")
    e(f"ds_write_b32 v10, v{ACC(1, 7)} offset:7168")
    e("s_lshl_b32 s44, s3, 13\nv_add_u32 v8, s44, v5\nv_lshl_add_u32 v10, v1, 2, s44")
    srd(k, 24, 10, WS_A5P, SZ_A5P)
    e("s_lshl_b32 s20, s18, 2\ns_lshl_b32 s21, s16, 1\ns_add_u32 s20, s20, s21\ns_add_u32 s20, s20, s17\ns_mul_i32 s20, s20, 28")
    e("s_lshr_b32 s21, s19, 1\ns_mul_i32 s21, s21, 7\ns_add_u32 s20, s20, s21\ns_lshl_b32 s20, s20, 10")
    e("s_and_b32 s21, s19, 1\ns_mul_i32 s22, s21, 3072\ns_add_u32 s22, s22, s20\ns_add_u32 s20, s20, 6144")
    e("s_lshl_b32 s23, s21, 3\nv_add_u32 v6, s23, v5")
    e("s_cmp_eq_u32 s21, 1\ns_cselect_b32 s41, 0, -1\ns_mov_b32 s40, -1")
    U = 128
    e("s_waitcnt vmcnt(0)")
    e(f"v_lshlrev_b32 v{BS}, 16, v{BS}\nv_add_f32 v{BS}, v{BS}, v{ACC(0, 7)}")
    for j in range(7):
        for h in range(2):
            e(f"v_lshlrev_b32 v{U+4*j+2*h}, 16, v{Z1+2*j+h}\nv_and_b32 v{U+4*j+2*h+1}, 0xffff0000, v{Z1+2*j+h}")
    e("s_waitcnt lgkmcnt(0)\ns_barrier")
    ts(k, 7)
    P = 96
    e("ds_read_b32 v20, v10 offset:7168")
    for j in range(7):
        e(f"ds_read_b128 v[{P+4*j}:{P+4*j+3}], v8 offset:{1024*j}")
    e(f"s_waitcnt lgkmcnt(7)\nv_add_f32 v{BS}, v{BS}, v20")
    for j in range(7):
        for i in range(4):
            e(f"v_add_f32 v{ACC(0, j)+i}, v{ACC(0, j)+i}, v{BS}")
    O = 64
    for j in range(7):
        e(f"s_waitcnt lgkmcnt({6-j})")
        a = ACC(0, j)
        for i in range(4):
            e(f"v_add_f32 v{a+i}, v{a+i}, v{P+4*j+i}")
        for i in range(4):
            e(f"v_mul_f32 v{a+i}, v{a+i}, v{U+4*j+i}")
        for h in range(2):
            e(f"v_cvt_pk_bf16_f32 v{O+2*j+h}, v{a+2*h}, v{a+2*h+1}")
        if j % 2 == 1:
            e(f"buffer_store_dwordx4 v[{O+2*j-2}:{O+2*j+1}], v5, s[24:27], s22 offen offset:{1024*(j//2)}")
    for h in range(2):
        e(f"v_cndmask_b32 v{O+12+h}, 0, v{O+12+h}, s[40:41]")
    e(f"buffer_store_dwordx2 v[{O+12}:{O+13}], v6, s[24:27], s20 offen")
    ts(k, 9)
    ts_end(k, 3, 10, 20)
    e("s_endpgm")

    e(f"{L('loader')}:")
    e("v_lshrrev_b32 v2, 3, v1\nv_and_b32 v3, 7, v1\nv_bfe_u32 v4, v2, 1, 1\nv_lshlrev_b32 v4, 2, v4")
    e("v_xor_b32 v3, v3, v4\nv_lshlrev_b32 v2, 12, v2\nv_lshl_add_u32 v10, v3, 4, v2")
    e(f"v_add_u32 v11, {32768-1024}, v10\nv_xor_b32 v12, 32, v10\nv_add_u32 v12, {2*(32768-1024)}, v12\nv_add_u32 v13, {32768-1024}, v12")
    e("s_lshl_b32 s20, s18, 18\ns_lshl_b32 s21, s16, 17\ns_add_u32 s20, s20, s21\ns_lshl_b32 s21, s17, 11\ns_add_u32 s20, s20, s21")
    e("s_lshl_b32 s21, s19, 6\ns_lshl_b32 s22, s17, 5\ns_add_u32 s21, s21, s22\ns_add_u32 s21, s21, s16\ns_mul_i32 s21, s21, 7168")
    e("s_lshl_b32 s22, s17, 13\ns_lshl_b32 s23, s16, 12\ns_add_u32 s22, s22, s23")
    e(f"s_mul_i32 s23, s17, 7168\ns_add_u32 s44, s16, 1\ns_mul_i32 s44, s44, {ZU}\ns_add_u32 s23, s23, s44\ns_add_u32 s23, s23, {ZB0}")
    e(f"s_add_u32 s49, s23, {4*ZU}\ns_cmp_eq_u32 s16, 1\ns_cselect_b32 s44, {2*ZU}, 0\ns_sub_u32 s49, s49, s44")
    e(f"s_mov_b32 s53, {2*ZU}\ns_mov_b32 s45, 0\ns_mov_b32 s46, 0")
    e("s_waitcnt lgkmcnt(0)")
    srd(k, 24, 4, 0, S * 4096)
    srd(k, 28, 10, WS_Z2P, SZ_Z2P)

    def wunit():
        e("s_mov_b32 m0, s22")
        for i in range(4):
            e(f"buffer_load_dwordx4 v{10+i}, s[24:27], s20 offen offset:{1024*i} lds")
        e(f"s_add_u32 s20, s20, 128\ns_add_u32 s22, s22, {WU}\ns_and_b32 s22, s22, 0xffff")

    def zunit():
        e("s_mov_b32 m0, s23\ns_add_u32 s47, s21, 4096")
        for j in range(4):
            e(f"buffer_load_dwordx4 v5, s[28:31], s21 offen offset:{1024*j} lds")
        e("s_add_u32 m0, s23, 4096")
        for j in range(3):
            e(f"buffer_load_dwordx4 v5, s[28:31], s47 offen offset:{1024*j} lds")
        e(f"s_add_u32 s21, s21, 14336\ns_cmp_eq_u32 s23, s49\ns_cselect_b32 s44, {-4*ZU}, s53\ns_add_u32 s23, s23, s44")

    def sched(h, p):
        if p % 2 == h:
            kap = p + DZ
            return ("z", kap) if 0 <= kap < 32 else None
        u = (p - (p % 2) + DZ + 2) // 2
        return ("w", u) if 0 <= u < 16 else None

    def loader(h):
        q = []

        def issue(p):
            un = sched(h, p)
            if un:
                (zunit if un[0] == "z" else wunit)()
                q.extend([p] * (7 if un[0] == "z" else 4))

        def wait(p):
            return sum(1 for t in q if t > p - DZ + 2)

        for p in range(-DZ - 3, -2):
            issue(p)
        e(f"s_waitcnt vmcnt({wait(-3)})")
        P1 = 32 - DZ - 2
        e("s_mov_b32 s45, 0")
        e(f"{L('ll%d' % h)}:")
        ws_ = set()
        for p in range(-2, P1):
            save = k.L
            if p >= 0:
                k.L = []
            e("s_barrier")
            issue(p)
            ws_.add((p % 2, wait(p)))
            if p % 2 == 1:
                e(f"s_add_u32 s45, s45, 1\ns_cmp_lt_u32 s45, {(P1+2)//2}")
            e(f"s_waitcnt vmcnt({wait(p)})")
            k.L = save
        assert len(ws_) == 2, ws_
        e(f"s_cbranch_scc1 {L('ll%d' % h)}")
        for p in range(P1, 32):
            e("s_barrier")
            issue(p)
            if p < 31:
                e(f"s_waitcnt vmcnt({wait(p)})")
        e("s_barrier\ns_endpgm")

    e(f"s_cmp_eq_u32 s16, 1\ns_cbranch_scc1 {L('lh1')}")
    loader(0)
    e(f"{L('lh1')}:")
    loader(1)
    e(f"{L('end')}:")
    e("s_endpgm")
    k.waits = None
    return k
```

```python
from common import *

SL, XT, GBO = 36864, 147456, 157696


def build(diag=False):
    k = Kern("p5_kernel", 256, 512, GBO + 1024, vgpr=128, sgpr=96 if diag else 64)
    k.diag = diag
    e = k.e
    L = k.lab
    ts_begin(k)
    e(f"s_cmp_ge_u32 s2, 256\ns_cbranch_scc1 {L('end')}")
    e(f"s_load_dwordx2 s[4:5], s[0:1], {KA_OUT}")
    e(f"s_load_dwordx2 s[10:11], s[0:1], {KA_WS}")
    e("v_and_b32 v1, 63, v0\nv_lshrrev_b32 v2, 6, v0\nv_readfirstlane_b32 s3, v2")
    e("s_and_b32 s16, s2, 7\ns_lshr_b32 s17, s2, 3")
    e("s_and_b32 s18, s16, 3\ns_lshl_b32 s18, s18, 3\ns_lshr_b32 s19, s16, 2\ns_lshl_b32 s19, s19, 2\ns_add_u32 s18, s18, s19")
    e("s_lshr_b32 s19, s17, 3\ns_add_u32 s18, s18, s19")
    e("s_and_b32 s19, s17, 7")
    e("v_lshlrev_b32 v5, 4, v1")
    e(f"s_cmp_lt_u32 s3, 4\ns_cbranch_scc1 {L('loader')}")

    e("s_sub_u32 s3, s3, 4")
    e(f"v_add_u32 v6, {2*SL}, v5\ns_lshl_b32 s23, s3, 12\ns_add_u32 s23, s23, 20480\nv_add_u32 v7, s23, v5\nv_add_u32 v8, {2*SL}, v7")
    e("v_and_b32 v2, 15, v1\nv_lshrrev_b32 v3, 4, v1")
    e("v_lshrrev_b32 v10, 2, v2\nv_and_b32 v11, 3, v2\nv_lshl_add_u32 v10, v10, 3, v11")
    e("s_lshr_b32 s44, s3, 1\ns_lshl_b32 s44, s44, 5\ns_and_b32 s45, s3, 1\ns_lshl_b32 s45, s45, 2\ns_add_u32 s44, s44, s45")
    e(f"s_mul_i32 s44, s44, 160\ns_add_u32 s44, s44, {XT}")
    e("v_mul_u32_u24 v10, 160, v10\nv_lshl_add_u32 v10, v3, 3, v10\nv_add_u32 v10, s44, v10")
    e(f"v_lshlrev_b32 v9, 4, v3\nv_add_u32 v9, {GBO}, v9")
    ts(k, 1)
    BF, AC = 32, 104

    def reads(kap):
        c, i = divmod(kap, 4)
        sl = c % 4
        off = (sl % 2) * SL
        b = BF + 24 * (kap % 3)
        out = [f"ds_read_b128 v[{b+20}:{b+23}], v{7 + sl//2} offset:{off + 1024*i}"]
        for j in range(5):
            out.append(f"ds_read_b128 v[{b+4*j}:{b+4*j+3}], v{5 + sl//2} offset:{off + 5120*i + 1024*j}")
        return out

    ts(k, 2)
    e("s_barrier")
    ts(k, 3)
    for x in reads(0) + reads(1):
        e(x)
    for kap in range(28):
        nxt = kap + 2
        if nxt < 28 and nxt % 4 == 0:
            e("s_waitcnt lgkmcnt(0)\ns_barrier")
            if nxt in (8, 16, 24):
                ts(k, 3 + nxt // 8)
        else:
            e(f"s_waitcnt lgkmcnt({6 if kap < 27 else 0})")
        rd = reads(nxt) if nxt < 28 else []
        b = BF + 24 * (kap % 3)
        for j in range(5):
            a = AC + 4 * j
            src = "0" if kap == 0 else f"v[{a}:{a+3}]"
            for _ in range(2):
                if rd:
                    e(rd.pop(0))
            e(f"v_mfma_f32_16x16x32_bf16 v[{a}:{a+3}], v[{b+4*j}:{b+4*j+3}], v[{b+20}:{b+23}], {src}")
    ts(k, 7)
    e("s_barrier")
    for j in range(5):
        e(f"ds_read_b128 v[{BF+4*j}:{BF+4*j+3}], v9 offset:{64*j}")
        e(f"ds_read_b64 v[{BF+20+2*j}:{BF+21+2*j}], v10 offset:{32*j}")
    for j in range(5):
        e(f"s_waitcnt lgkmcnt({2*(4-j) + j})")
        for h in range(2):
            e(f"v_lshlrev_b32 v{64+2*h}, 16, v{BF+20+2*j+h}\nv_and_b32 v{65+2*h}, 0xffff0000, v{BF+20+2*j+h}")
        for i in range(4):
            e(f"v_fma_f32 v{AC+4*j+i}, v{AC+4*j+i}, v{BF+4*j+i}, v{64+i}")
        for h in range(2):
            e(f"v_cvt_pk_bf16_f32 v{AC+4*j+h}, v{AC+4*j+2*h}, v{AC+4*j+2*h+1}")
        e(f"ds_write_b64 v10, v[{AC+4*j}:{AC+4*j+1}] offset:{32*j}")
    e("s_waitcnt lgkmcnt(0)\ns_barrier")
    ts(k, 9)
    ts_end(k, 4, 10, 124)
    e("s_endpgm")

    e(f"{L('loader')}:")
    e("s_mul_i32 s20, s19, 28\ns_add_u32 s20, s20, s3\ns_mul_i32 s20, s20, 5120")
    e("s_mul_i32 s22, s3, 5120")
    e("s_lshl_b32 s21, s18, 2\ns_add_u32 s21, s21, s3\ns_mul_i32 s21, s21, 28672")
    e("s_lshl_b32 s46, s3, 12\ns_add_u32 s46, s46, 20480")
    e("s_waitcnt lgkmcnt(0)")
    srd(k, 24, 10, WS_WOUTP, SZ_WOUTP)
    srd(k, 28, 10, WS_A5P, SZ_A5P)

    def chunk(c):
        sl = (c % 4) * SL
        e(f"s_add_u32 s23, s21, {c*4096}\ns_add_u32 m0, s46, {sl}")
        for i in range(4):
            e(f"buffer_load_dwordx4 v5, s[28:31], s23 offen offset:{1024*i} lds")
        e(f"s_add_u32 s23, s20, {c*20480}\ns_add_u32 m0, s22, {sl}")
        for j in range(4):
            e(f"buffer_load_dwordx4 v5, s[24:27], s23 offen offset:{1024*j} lds")
        e(f"s_add_u32 s23, s20, {c*20480+4096}\ns_add_u32 m0, s22, {sl+4096}")
        e("buffer_load_dwordx4 v5, s[24:27], s23 offen lds")

    chunk(0)
    chunk(1)
    srd(k, 32, 10, WS_X1, SZ_X1)
    srd(k, 36, 10, WS_MOD, SZ_MOD)
    srd(k, 40, 4, 0, S * 1280)
    e("s_lshl_b32 s23, s3, 6\nv_add_u32 v2, s23, v1")
    for i in range(3):
        e(f"v_add_u32 v3, {256*i}, v2\nv_mul_u32_u24 v4, 6554, v3\nv_lshrrev_b32 v4, 16, v4")
        e(f"v_mul_u32_u24 v6, 10, v4\nv_sub_u32 v3, v3, v6\nv_mul_u32_u24 v4, 1280, v4\nv_lshl_add_u32 v{10+i}, v3, 4, v4")
    e("s_mul_i32 s44, s18, 81920\ns_mul_i32 s45, s19, 160\ns_add_u32 s44, s44, s45")
    e(f"s_mul_i32 s45, s19, 320\ns_add_u32 s45, s45, {5*2560}")
    e(f"s_lshl_b32 s47, s3, 10\ns_add_u32 s47, s47, {XT}\nv_add_u32 v13, s47, v5")
    last = 1
    for c in range(7):
        e(f"s_waitcnt vmcnt({9*(last-c)})\ns_barrier")
        hi = min(6, c + 3, last + 2)
        while last < hi:
            last += 1
            chunk(last)
            if last == 6:
                for i in range(2):
                    e(f"s_add_u32 m0, s47, {4096*i}\nbuffer_load_dwordx4 v{10+i}, s[32:35], s44 offen lds")
                e(f"s_cmp_ge_u32 s3, 2\ns_cbranch_scc1 {L('nox')}")
                e("s_add_u32 m0, s47, 8192\nbuffer_load_dwordx4 v12, s[32:35], s44 offen lds")
                e(f"{L('nox')}:")
                e(f"s_cmp_lg_u32 s3, 3\ns_cbranch_scc1 {L('nogb')}")
                e(f"s_mov_b32 m0, {GBO}\ns_mov_b64 exec, 0xfffff\nbuffer_load_dwordx4 v5, s[36:39], s45 offen lds\ns_mov_b64 exec, -1")
                e(f"{L('nogb')}:")
    e("s_waitcnt vmcnt(0)\ns_barrier\ns_barrier")
    for i in range(3):
        e(f"ds_read_b128 v[{16+4*i}:{19+4*i}], v13 offset:{4096*i}")
    for i in range(2):
        e(f"s_waitcnt lgkmcnt({2-i})\nbuffer_store_dwordx4 v[{16+4*i}:{19+4*i}], v{10+i}, s[40:43], s44 offen")
    e(f"s_cmp_ge_u32 s3, 2\ns_cbranch_scc1 {L('end')}")
    e("s_waitcnt lgkmcnt(0)\nbuffer_store_dwordx4 v[24:27], v12, s[40:43], s44 offen")
    e(f"{L('end')}:")
    e("s_endpgm")
    return k
```

```python
from asmlib import *

S, D, F, FH = 2048, 640, 1728, 864
WS_MOD, SZ_MOD = 0x000000, 6 * 640 * 4
WS_STATS, SZ_STATS = 0x004000, 2048 * 8
WS_V, SZ_V = 0x100000, 2048 * 1280
WS_X1, SZ_X1 = 0x380000, 2048 * 1280
WS_H2, SZ_H2 = 0x600000, 2048 * 1280
WS_Z1P, SZ_Z1P = 0x880000, 64 * 8 * 7 * 1024
WS_Z2P, SZ_Z2P = 0xC00000, 64 * 8 * 7 * 1024
WS_A5P, SZ_A5P = 0xF80000, 128 * 28 * 1024
WS_WINP, SZ_WINP = 0x1300000, 16 * 20 * 7 * 1024
WS_WOUTP, SZ_WOUTP = 0x1530000, 8 * 28 * 5 * 1024
WS_TS = 0x1800000

KA_X, KA_WIN, KA_WSP, KA_BSP, KA_WOUT, KA_C, KA_WMOD, KA_OUT, KA_DBG, KA_WS = 0, 48, 56, 64, 72, 80, 88, 96, 104, 112


def srd(k, s, ptr, off, size):
    if off:
        k.e(f"s_add_u32 s{s}, s{ptr}, 0x{off:x}")
        k.e(f"s_addc_u32 s{s+1}, s{ptr+1}, 0")
    else:
        k.e(f"s_mov_b32 s{s}, s{ptr}")
        k.e(f"s_mov_b32 s{s+1}, s{ptr+1}")
    k.e(f"s_mov_b32 s{s+2}, 0x{size:x}")
    k.e(f"s_mov_b32 s{s+3}, 0x20000")


def fbase(kappa, h):
    p, q = divmod(kappa, 7)
    if q < 3:
        return 216 * p + 32 * q + 16 * h
    if q < 6:
        return 216 * p + 112 + 32 * (q - 3) + 16 * h
    return 216 * p + (96 if h == 0 else 208)


def colstart(nb):
    return 216 * (nb // 2) + 112 * (nb % 2)


def dma_rows1280_addr(k, vlane, vdst, tmp, rowstride):
    for n in range(5):
        C, row, ch = tmp, tmp + 1, tmp + 2
        k.e(f"v_add_u32 v{C}, {64*n}, v{vlane}")
        k.e(f"v_mul_u32_u24 v{row}, 205, v{C}")
        k.e(f"v_lshrrev_b32 v{row}, 14, v{row}")
        k.e(f"v_mul_u32_u24 v{ch}, 80, v{row}")
        k.e(f"v_sub_u32 v{ch}, v{C}, v{ch}")
        k.e(f"v_lshlrev_b32 v{C}, 1, v{row}")
        k.e(f"v_xor_b32 v{ch}, v{ch}, v{C}")
        k.e(f"v_lshlrev_b32 v{ch}, 4, v{ch}")
        k.e(f"v_mul_u32_u24 v{row}, {rowstride}, v{row}")
        k.e(f"v_add_u32 v{vdst+n}, v{row}, v{ch}")


def dma_rows1280_issue(k, vaddr, srd_s, s_goff, s_lds, s_tmp, rowstride):
    for half in range(2):
        if half == 1:
            for n in range(5):
                k.e(f"v_xor_b32 v{vaddr+n}, 128, v{vaddr+n}")
            k.e(f"s_add_u32 s{s_tmp}, s{s_goff}, {4*rowstride}")
        so = s_goff if half == 0 else s_tmp
        for n in range(5):
            k.e(f"s_add_u32 m0, s{s_lds}, {(half*5+n)*1024}")
            k.e(f"buffer_load_dwordx4 v{vaddr+n}, s[{srd_s}:{srd_s+3}], s{so} offen lds")


def code_srd(k, s, label, size_expr):
    k.e(f"s_getpc_b64 s[{s}:{s+1}]")
    k.e(f"s_add_u32 s{s}, s{s}, {label}@rel32@lo+4\ns_addc_u32 s{s+1}, s{s+1}, {label}@rel32@hi+12")
    k.e(f"s_mov_b32 s{s+2}, {size_expr}\ns_mov_b32 s{s+3}, 0x20000")


NTS = 12


def ts(k, i):
    if k.diag and k.diag != "dbg":
        k.e(f"s_memrealtime s[{64+2*i}:{65+2*i}]")


def ts_begin(k):
    if k.diag == "dbg":
        k.sgpr = 100
        k.e("s_memrealtime s[64:65]\ns_mov_b64 s[98:99], s[0:1]")
    elif k.diag:
        for i in range(NTS):
            k.e(f"s_mov_b32 s{64+2*i}, 0")
        k.e("s_memtime s[88:89]")
        k.e("s_memrealtime s[64:65]")


def ts_end(k, kidx, ws_ptr_s, vtmp):
    if not k.diag:
        return
    if k.diag == "dbg":
        lab = k.lab("tsend")
        k.e("s_waitcnt vmcnt(0)")
        k.e(f"s_memrealtime s[66:67]\ns_load_dwordx2 s[90:91], s[98:99], {KA_DBG}")
        k.e(f"s_cmp_lg_u32 s3, 0\ns_cbranch_scc1 {lab}")
        k.e("s_waitcnt lgkmcnt(0)")
        k.e(f"s_sub_u32 s92, s90, {512*kidx}\ns_subb_u32 s93, s91, 0\ns_mov_b32 s94, 256\ns_mov_b32 s95, 0x20000")
        k.e(f"s_not_b32 s64, s64\nv_mov_b32 v{vtmp+1}, 0\nv_mov_b32 v{vtmp}, s64\ns_mov_b64 exec, 1")
        k.e(f"buffer_atomic_umax v{vtmp}, v{vtmp+1}, s[92:95], 0 offen offset:{8*kidx}")
        k.e(f"v_mov_b32 v{vtmp}, s66")
        k.e(f"buffer_atomic_umax v{vtmp}, v{vtmp+1}, s[92:95], 0 offen offset:{8*kidx+4}")
        k.e(f"{lab}:")
        return
    lab = k.lab("tsend")
    k.e("s_waitcnt vmcnt(0)")
    k.e(f"s_memrealtime s[{64+2*(NTS-1)}:{65+2*(NTS-1)}]")
    k.e("s_memtime s[90:91]")
    k.e(f"s_cmp_lg_u32 s3, 0\ns_cbranch_scc1 {lab}")
    srd(k, 92, ws_ptr_s, WS_TS, 0x40000)
    k.e(f"s_lshl_b32 s63, s2, 6\ns_add_u32 s63, s63, {kidx*16384}")
    k.e("s_waitcnt lgkmcnt(0)")
    k.e("s_sub_u32 s90, s90, s88")
    k.e(f"v_mov_b32 v{vtmp+1}, 0")
    for i in range(NTS):
        k.e(f"v_mov_b32 v{vtmp}, s{64+2*i}")
        k.e(f"buffer_store_dword v{vtmp}, v{vtmp+1}, s[92:95], s63 offen offset:{4*i}")
    k.e(f"v_mov_b32 v{vtmp}, s90")
    k.e(f"buffer_store_dword v{vtmp}, v{vtmp+1}, s[92:95], s63 offen offset:{4*NTS}")
    k.e(f"{lab}:")
```

```python
from asmlib import *

S, D, F, FH = 2048, 640, 1728, 864
WS_MOD, SZ_MOD = 0x000000, 6 * 640 * 4
WS_STATS, SZ_STATS = 0x004000, 2048 * 8
WS_V, SZ_V = 0x100000, 2048 * 1280
WS_X1, SZ_X1 = 0x380000, 2048 * 1280
WS_H2, SZ_H2 = 0x600000, 2048 * 1280
WS_Z1P, SZ_Z1P = 0x880000, 64 * 8 * 7 * 1024
WS_Z2P, SZ_Z2P = 0xC00000, 64 * 8 * 7 * 1024
WS_A5P, SZ_A5P = 0xF80000, 128 * 28 * 1024
WS_WINP, SZ_WINP = 0x1300000, 16 * 20 * 7 * 1024
WS_WOUTP, SZ_WOUTP = 0x1530000, 8 * 28 * 5 * 1024
WS_TS = 0x1800000

KA_X, KA_WIN, KA_WSP, KA_BSP, KA_WOUT, KA_C, KA_WMOD, KA_OUT, KA_DBG, KA_WS = 0, 48, 56, 64, 72, 80, 88, 96, 104, 112


def srd(k, s, ptr, off, size):
    if off:
        k.e(f"s_add_u32 s{s}, s{ptr}, 0x{off:x}")
        k.e(f"s_addc_u32 s{s+1}, s{ptr+1}, 0")
    else:
        k.e(f"s_mov_b32 s{s}, s{ptr}")
        k.e(f"s_mov_b32 s{s+1}, s{ptr+1}")
    k.e(f"s_mov_b32 s{s+2}, 0x{size:x}")
    k.e(f"s_mov_b32 s{s+3}, 0x20000")


def fbase(kappa, h):
    p, q = divmod(kappa, 7)
    if q < 3:
        return 216 * p + 32 * q + 16 * h
    if q < 6:
        return 216 * p + 112 + 32 * (q - 3) + 16 * h
    return 216 * p + (96 if h == 0 else 208)


def colstart(nb):
    return 216 * (nb // 2) + 112 * (nb % 2)


def dma_rows1280_addr(k, vlane, vdst, tmp, rowstride):
    for n in range(5):
        C, row, ch = tmp, tmp + 1, tmp + 2
        k.e(f"v_add_u32 v{C}, {64*n}, v{vlane}")
        k.e(f"v_mul_u32_u24 v{row}, 205, v{C}")
        k.e(f"v_lshrrev_b32 v{row}, 14, v{row}")
        k.e(f"v_mul_u32_u24 v{ch}, 80, v{row}")
        k.e(f"v_sub_u32 v{ch}, v{C}, v{ch}")
        k.e(f"v_lshlrev_b32 v{C}, 1, v{row}")
        k.e(f"v_xor_b32 v{ch}, v{ch}, v{C}")
        k.e(f"v_lshlrev_b32 v{ch}, 4, v{ch}")
        k.e(f"v_mul_u32_u24 v{row}, {rowstride}, v{row}")
        k.e(f"v_add_u32 v{vdst+n}, v{row}, v{ch}")


def dma_rows1280_issue(k, vaddr, srd_s, s_goff, s_lds, s_tmp, rowstride):
    for half in range(2):
        if half == 1:
            for n in range(5):
                k.e(f"v_xor_b32 v{vaddr+n}, 128, v{vaddr+n}")
            k.e(f"s_add_u32 s{s_tmp}, s{s_goff}, {4*rowstride}")
        so = s_goff if half == 0 else s_tmp
        for n in range(5):
            k.e(f"s_add_u32 m0, s{s_lds}, {(half*5+n)*1024}")
            k.e(f"buffer_load_dwordx4 v{vaddr+n}, s[{srd_s}:{srd_s+3}], s{so} offen lds")


def code_srd(k, s, label, size_expr):
    k.e(f"s_getpc_b64 s[{s}:{s+1}]")
    k.e(f"s_add_u32 s{s}, s{s}, {label}@rel32@lo+4\ns_addc_u32 s{s+1}, s{s+1}, {label}@rel32@hi+12")
    k.e(f"s_mov_b32 s{s+2}, {size_expr}\ns_mov_b32 s{s+3}, 0x20000")


NTS = 12


def ts(k, i):
    if k.diag and k.diag != "dbg":
        k.e(f"s_memrealtime s[{64+2*i}:{65+2*i}]")


def ts_begin(k):
    if k.diag == "dbg":
        k.sgpr = 100
        k.e("s_memrealtime s[64:65]\ns_mov_b64 s[98:99], s[0:1]")
    elif k.diag:
        for i in range(NTS):
            k.e(f"s_mov_b32 s{64+2*i}, 0")
        k.e("s_memtime s[88:89]")
        k.e("s_memrealtime s[64:65]")


def ts_end(k, kidx, ws_ptr_s, vtmp):
    if not k.diag:
        return
    if k.diag == "dbg":
        lab = k.lab("tsend")
        k.e("s_waitcnt vmcnt(0)")
        k.e(f"s_memrealtime s[66:67]\ns_load_dwordx2 s[90:91], s[98:99], {KA_DBG}")
        k.e(f"s_cmp_lg_u32 s3, 0\ns_cbranch_scc1 {lab}\ns_cmp_lg_u32 s2, 8\ns_cbranch_scc1 {lab}")
        k.e("s_waitcnt lgkmcnt(0)")
        k.e(f"s_sub_u32 s92, s90, {512*kidx}\ns_subb_u32 s93, s91, 0\ns_mov_b32 s94, 4096\ns_mov_b32 s95, 0x20000")
        k.e(f"v_lshlrev_b32 v{vtmp+1}, 9, v1\nv_mov_b32 v{vtmp}, s64\ns_mov_b64 exec, 31")
        k.e(f"buffer_store_dword v{vtmp}, v{vtmp+1}, s[92:95], 0 offen offset:{8*kidx}")
        k.e(f"v_mov_b32 v{vtmp}, s66")
        k.e(f"buffer_store_dword v{vtmp}, v{vtmp+1}, s[92:95], 0 offen offset:{8*kidx+4}")
        k.e(f"{lab}:")
        return
    lab = k.lab("tsend")
    k.e("s_waitcnt vmcnt(0)")
    k.e(f"s_memrealtime s[{64+2*(NTS-1)}:{65+2*(NTS-1)}]")
    k.e("s_memtime s[90:91]")
    k.e(f"s_cmp_lg_u32 s3, 0\ns_cbranch_scc1 {lab}")
    srd(k, 92, ws_ptr_s, WS_TS, 0x40000)
    k.e(f"s_lshl_b32 s63, s2, 6\ns_add_u32 s63, s63, {kidx*16384}")
    k.e("s_waitcnt lgkmcnt(0)")
    k.e("s_sub_u32 s90, s90, s88")
    k.e(f"v_mov_b32 v{vtmp+1}, 0")
    for i in range(NTS):
        k.e(f"v_mov_b32 v{vtmp}, s{64+2*i}")
        k.e(f"buffer_store_dword v{vtmp}, v{vtmp+1}, s[92:95], s63 offen offset:{4*i}")
    k.e(f"v_mov_b32 v{vtmp}, s90")
    k.e(f"buffer_store_dword v{vtmp}, v{vtmp+1}, s[92:95], s63 offen offset:{4*NTS}")
    k.e(f"{lab}:")
```

```python
from asmlib import *

S, D, F, FH = 2048, 640, 1728, 864
WS_MOD, SZ_MOD = 0x000000, 6 * 640 * 4
WS_STATS, SZ_STATS = 0x004000, 2048 * 8
WS_FLAG, SZ_FLAG = 0x008000, 40960
WS_V, SZ_V = 0x100000, 2048 * 1280
WS_X1, SZ_X1 = 0x380000, 2048 * 1280
WS_H2, SZ_H2 = 0x600000, 2048 * 1280
WS_Z1P, SZ_Z1P = 0x880000, 64 * 8 * 7 * 1024
WS_Z2P, SZ_Z2P = 0xC00000, 64 * 8 * 7 * 1024
WS_A5P, SZ_A5P = 0xF80000, 128 * 28 * 1024
WS_WINP, SZ_WINP = 0x1300000, 16 * 20 * 7 * 1024
WS_WOUTP, SZ_WOUTP = 0x1530000, 8 * 28 * 5 * 1024
WS_TS = 0x1800000

KA_X, KA_WIN, KA_WSP, KA_BSP, KA_WOUT, KA_C, KA_WMOD, KA_OUT, KA_DBG, KA_WS = 0, 48, 56, 64, 72, 80, 88, 96, 104, 112


def srd(k, s, ptr, off, size):
    if off:
        k.e(f"s_add_u32 s{s}, s{ptr}, 0x{off:x}")
        k.e(f"s_addc_u32 s{s+1}, s{ptr+1}, 0")
    else:
        k.e(f"s_mov_b32 s{s}, s{ptr}")
        k.e(f"s_mov_b32 s{s+1}, s{ptr+1}")
    k.e(f"s_mov_b32 s{s+2}, 0x{size:x}")
    k.e(f"s_mov_b32 s{s+3}, 0x20000")


def fbase(kappa, h):
    p, q = divmod(kappa, 7)
    if q < 3:
        return 216 * p + 32 * q + 16 * h
    if q < 6:
        return 216 * p + 112 + 32 * (q - 3) + 16 * h
    return 216 * p + (96 if h == 0 else 208)


def colstart(nb):
    return 216 * (nb // 2) + 112 * (nb % 2)


def dma_rows1280_addr(k, vlane, vdst, tmp, rowstride):
    for n in range(5):
        C, row, ch = tmp, tmp + 1, tmp + 2
        k.e(f"v_add_u32 v{C}, {64*n}, v{vlane}")
        k.e(f"v_mul_u32_u24 v{row}, 205, v{C}")
        k.e(f"v_lshrrev_b32 v{row}, 14, v{row}")
        k.e(f"v_mul_u32_u24 v{ch}, 80, v{row}")
        k.e(f"v_sub_u32 v{ch}, v{C}, v{ch}")
        k.e(f"v_lshlrev_b32 v{C}, 1, v{row}")
        k.e(f"v_xor_b32 v{ch}, v{ch}, v{C}")
        k.e(f"v_lshlrev_b32 v{ch}, 4, v{ch}")
        k.e(f"v_mul_u32_u24 v{row}, {rowstride}, v{row}")
        k.e(f"v_add_u32 v{vdst+n}, v{row}, v{ch}")


def dma_rows1280_issue(k, vaddr, srd_s, s_goff, s_lds, s_tmp, rowstride):
    for half in range(2):
        if half == 1:
            for n in range(5):
                k.e(f"v_xor_b32 v{vaddr+n}, 128, v{vaddr+n}")
            k.e(f"s_add_u32 s{s_tmp}, s{s_goff}, {4*rowstride}")
        so = s_goff if half == 0 else s_tmp
        for n in range(5):
            k.e(f"s_add_u32 m0, s{s_lds}, {(half*5+n)*1024}")
            k.e(f"buffer_load_dwordx4 v{vaddr+n}, s[{srd_s}:{srd_s+3}], s{so} offen lds")


def code_srd(k, s, label, size_expr):
    k.e(f"s_getpc_b64 s[{s}:{s+1}]")
    k.e(f"s_add_u32 s{s}, s{s}, {label}@rel32@lo+4\ns_addc_u32 s{s+1}, s{s+1}, {label}@rel32@hi+12")
    k.e(f"s_mov_b32 s{s+2}, {size_expr}\ns_mov_b32 s{s+3}, 0x20000")


NTS = 12


def ts(k, i):
    if k.diag and k.diag != "dbg":
        k.e(f"s_memrealtime s[{64+2*i}:{65+2*i}]")


def ts_begin(k):
    if k.diag == "dbg":
        k.sgpr = 100
        k.e("s_memrealtime s[64:65]\ns_mov_b64 s[98:99], s[0:1]")
    elif k.diag:
        for i in range(NTS):
            k.e(f"s_mov_b32 s{64+2*i}, 0")
        k.e("s_memtime s[88:89]")
        k.e("s_memrealtime s[64:65]")


def ts_end(k, kidx, ws_ptr_s, vtmp):
    if not k.diag:
        return
    if k.diag == "dbg":
        lab = k.lab("tsend")
        k.e("s_waitcnt vmcnt(0)")
        k.e("s_memrealtime s[66:67]")
        k.e(f"s_cmp_lg_u32 s3, 0\ns_cbranch_scc1 {lab}\ns_cmp_lg_u32 s2, 8\ns_cbranch_scc1 {lab}")
        k.e("s_waitcnt lgkmcnt(0)")
        srd(k, 92, ws_ptr_s, WS_TS, 4096)
        k.e(f"v_mov_b32 v{vtmp+1}, 0\nv_mov_b32 v{vtmp}, s64\ns_mov_b64 exec, 1")
        k.e(f"buffer_store_dword v{vtmp}, v{vtmp+1}, s[92:95], 0 offen offset:{8*kidx}")
        k.e(f"v_mov_b32 v{vtmp}, s66")
        k.e(f"buffer_store_dword v{vtmp}, v{vtmp+1}, s[92:95], 0 offen offset:{8*kidx+4}")
        k.e(f"{lab}:")
        return
    lab = k.lab("tsend")
    k.e("s_waitcnt vmcnt(0)")
    k.e(f"s_memrealtime s[{64+2*(NTS-1)}:{65+2*(NTS-1)}]")
    k.e("s_memtime s[90:91]")
    k.e(f"s_cmp_lg_u32 s3, 0\ns_cbranch_scc1 {lab}")
    srd(k, 92, ws_ptr_s, WS_TS, 0x40000)
    k.e(f"s_lshl_b32 s59, s2, 6\ns_add_u32 s59, s59, {kidx*16384}")
    k.e("s_waitcnt lgkmcnt(0)")
    k.e("s_sub_u32 s90, s90, s88")
    k.e(f"v_mov_b32 v{vtmp+1}, 0")
    for i in range(NTS):
        k.e(f"v_mov_b32 v{vtmp}, s{64+2*i}")
        k.e(f"buffer_store_dword v{vtmp}, v{vtmp+1}, s[92:95], s59 offen offset:{4*i}")
    k.e(f"v_mov_b32 v{vtmp}, s90")
    k.e(f"buffer_store_dword v{vtmp}, v{vtmp+1}, s[92:95], s59 offen offset:{4*NTS}")
    k.e(f"{lab}:")
```

```python
from common import *


def build(diag=False):
    k = Kern("p1_kernel", 232, 512, 98816, vgpr=128, sgpr=96 if diag else 64)
    k.diag = diag
    e = k.e
    L = k.lab
    ts_begin(k)
    e(f"s_cmp_ge_u32 s2, 228\ns_cbranch_scc1 {L('end')}")
    e(f"s_load_dwordx2 s[4:5], s[0:1], {KA_X}")
    e(f"s_load_dwordx4 s[12:15], s[0:1], {KA_C}")
    e(f"s_load_dwordx2 s[10:11], s[0:1], {KA_WS}")
    code_srd(k, 32, "p1_kernel", "p1_code_end-p1_kernel")
    e("v_lshlrev_b32 v1, 4, v0\nbuffer_load_dword v127, v1, s[32:35], 0 offen")
    e("v_and_b32 v1, 63, v0")
    e("v_lshrrev_b32 v2, 6, v0")
    e("v_readfirstlane_b32 s3, v2")
    e(f"s_cmp_ge_u32 s2, 160\ns_cbranch_scc1 {L('notfft')}")

    TB = 0
    OT = 512
    XL = 16896
    e("s_and_b32 s16, s2, 7\ns_lshr_b32 s17, s2, 3")
    e("s_mul_i32 s18, s17, 205\ns_lshr_b32 s18, s18, 10")
    e("s_mul_i32 s19, s18, 5\ns_sub_u32 s19, s17, s19")
    e("s_lshl_b32 s16, s16, 2\ns_add_u32 s18, s16, s18")
    dma_rows1280_addr(k, 1, 4, 10, 40960)
    e("s_mul_i32 s20, s18, 1280")
    e(f"s_mul_i32 s21, s3, {8*40960}\ns_add_u32 s20, s20, s21")
    e(f"s_mul_i32 s21, s3, 10240\ns_add_u32 s21, s21, {XL}")
    e("s_waitcnt lgkmcnt(0)")
    ts(k, 1)
    srd(k, 24, 4, 0, S * 1280)
    dma_rows1280_issue(k, 4, 24, 20, 21, 22, 40960)
    srd(k, 28, 10, WS_V, SZ_V)
    e("v_and_b32 v10, 15, v1\nv_lshrrev_b32 v11, 4, v1")
    e("s_lshr_b32 s23, s3, 2\ns_lshl_b32 s23, s23, 4")
    e("v_add_u32 v12, s23, v10")
    e("v_cmp_eq_u32 vcc, 0, v12")
    e("v_cvt_f32_u32 v13, v12")
    e(f"v_mul_f32 v13, {fhex(1/64)}, v13")
    e("v_mov_b32 v14, 0.5")
    e("v_cndmask_b32 v14, v13, v14, vcc")
    e(f"v_mov_b32 v15, {fhex(0.25)}")
    e("v_cndmask_b32 v15, v15, 0, vcc")
    e("v_lshlrev_b32 v16, 2, v11\nv_cvt_f32_u32 v16, v16")
    e("v_mul_f32 v17, v13, v16")
    e("v_fma_f32 v18, v14, v16, v15")
    RE, IM = 32, 48
    for ks in range(2):
        for jj in range(8):
            c = 32 * ks + (jj % 4) + 16 * (jj // 4)
            i = 8 * ks + jj
            e(f"v_fmamk_f32 v{RE+i}, v13, {fhex(c)}, v17")
            e(f"v_fmamk_f32 v{IM+i}, v14, {fhex(c)}, v18")
    for i in range(16):
        e(f"v_cos_f32 v{RE+i}, v{RE+i}")
        e(f"v_cos_f32 v{IM+i}, v{IM+i}")
    e("v_lshrrev_b32 v20, 3, v1\nv_and_b32 v21, 7, v1")
    e("v_bfe_u32 v22, v20, 1, 1\nv_lshlrev_b32 v22, 3, v22")
    e("v_add_u32 v22, v22, v21\nv_lshlrev_b32 v22, 4, v22")
    e("v_mul_u32_u24 v23, 1280, v20\nv_add_u32 v22, v22, v23")
    e("v_add_u32 v22, s21, v22")
    e("v_xor_b32 v23, 128, v22")
    e("v_mov_b32 v24, 0x3f803f80")
    for i in range(4):
        e(f"v_mov_b32 v{26+i}, 0")
    ts(k, 2)
    e("s_waitcnt vmcnt(0)")
    ts(k, 3)
    for i in range(10):
        e(f"ds_read_b128 v[{64+4*i}:{67+4*i}], v{22 + i % 2} offset:{256*(i//2)}")
    for i in range(10):
        e(f"s_waitcnt lgkmcnt({9-i})")
        for d in range(4):
            r = 64 + 4 * i + d
            e(f"v_dot2_f32_bf16 v{26 + d % 2}, v{r}, v24, v{26 + d % 2}")
            e(f"v_dot2_f32_bf16 v{28 + d % 2}, v{r}, v{r}, v{28 + d % 2}")
    e("s_nop 2")
    e("v_add_f32 v26, v26, v27\nv_add_f32 v28, v28, v29")
    for m in ("quad_perm:[1,0,3,2]", "quad_perm:[2,3,0,1]", "row_half_mirror"):
        e(f"v_add_f32_dpp v26, v26, v26 {m} row_mask:0xf bank_mask:0xf")
        e(f"v_add_f32_dpp v28, v28, v28 {m} row_mask:0xf bank_mask:0xf")
    e(f"v_mul_f32 v26, {fhex(1/640)}, v26")
    e(f"v_mul_f32 v28, {fhex(1/640)}, v28")
    e("v_fma_f32 v28, -v26, v26, v28")
    e(f"v_add_f32 v28, {fhex(1e-5)}, v28")
    e("v_rsq_f32 v28, v28")
    e("v_sub_f32 v26, 0, v26")
    e("v_cvt_pk_bf16_f32 v26, v26, v26")
    e("s_lshl_b32 s22, s3, 3")
    e("v_add_u32 v20, s22, v20")
    e("v_lshlrev_b32 v21, 2, v20\nv_lshlrev_b32 v20, 1, v20")
    e(f"ds_write_b32 v21, v28 offset:{TB}")
    e(f"ds_write_b16 v20, v26 offset:{TB+256}")
    e("v_bfe_u32 v20, v1, 2, 2\nv_and_b32 v21, 3, v1")
    e("v_lshl_add_u32 v20, v11, 2, v20")
    e("s_and_b32 s22, s3, 3\ns_lshl_b32 s22, s22, 2")
    e("s_lshl_b32 s23, s19, 4\ns_add_u32 s22, s22, s23")
    e("v_add_u32 v21, s22, v21")
    e("v_and_b32 v22, 7, v20\nv_lshlrev_b32 v22, 1, v22")
    e("v_xor_b32 v21, v21, v22\nv_lshlrev_b32 v21, 4, v21")
    e(f"v_mul_u32_u24 v20, 1280, v20\nv_add_u32 v21, {XL}, v21\nv_add_u32 v20, v20, v21")
    e("v_lshlrev_b32 v21, 4, v11\nv_lshlrev_b32 v22, 3, v11")
    e("s_waitcnt lgkmcnt(0)\ns_barrier")
    ts(k, 4)
    RT, MF, DA = 64, 80, 88
    for ks in range(2):
        for h in range(2):
            e(f"ds_read_b128 v[{RT+8*ks+4*h}:{RT+8*ks+4*h+3}], v21 offset:{TB + (32*ks+16*h)*4}")
    for ks in range(2):
        for h in range(2):
            e(f"ds_read_b64 v[{MF+4*ks+2*h}:{MF+4*ks+2*h+1}], v22 offset:{TB + 256 + (32*ks+16*h)*2}")
    for u in range(2):
        for ks in range(2):
            for h in range(2):
                b = DA + 8 * u + 4 * ks + 2 * h
                e(f"ds_read_b64_tr_b16 v[{b}:{b+1}], v20 offset:{8*u + (32*ks+16*h)*1280}")
    e("s_waitcnt lgkmcnt(12)")
    for i in range(16):
        e(f"v_mul_f32 v{RE+i}, v{RE+i}, v{RT+i}")
        e(f"v_mul_f32 v{IM+i}, v{IM+i}, v{RT+i}")
    FR, FI = 104, 112
    for i in range(8):
        e(f"v_cvt_pk_bf16_f32 v{FR+i}, v{RE+2*i}, v{RE+2*i+1}")
        e(f"v_cvt_pk_bf16_f32 v{FI+i}, v{IM+2*i}, v{IM+2*i+1}")
    e("s_waitcnt lgkmcnt(8)")
    KR, KI = 120, 124
    e(f"v_mfma_f32_16x16x32_bf16 v[{KR}:{KR+3}], v[{MF}:{MF+3}], v[{FR}:{FR+3}], 0")
    e(f"v_mfma_f32_16x16x32_bf16 v[{KI}:{KI+3}], v[{MF}:{MF+3}], v[{FI}:{FI+3}], 0")
    e(f"v_mfma_f32_16x16x32_bf16 v[{KR}:{KR+3}], v[{MF+4}:{MF+7}], v[{FR+4}:{FR+7}], v[{KR}:{KR+3}]")
    e(f"v_mfma_f32_16x16x32_bf16 v[{KI}:{KI+3}], v[{MF+4}:{MF+7}], v[{FI+4}:{FI+7}], v[{KI}:{KI+3}]")
    e("s_waitcnt lgkmcnt(0)")
    AC = 32
    for ks in range(2):
        for u in range(2):
            for c, (fm, kk) in enumerate(((FR, KR), (FI, KI))):
                a = AC + 8 * c + 4 * u
                src = f"v[{kk}:{kk+3}]" if ks == 0 else f"v[{a}:{a+3}]"
                d = DA + 8 * u + 4 * ks
                e(f"v_mfma_f32_16x16x32_bf16 v[{a}:{a+3}], v[{d}:{d+3}], v[{fm+4*ks}:{fm+4*ks+3}], {src}")
    e("v_and_b32 v20, 7, v12\nv_lshlrev_b32 v20, 1, v20")
    e("s_and_b32 s22, s3, 3\ns_lshl_b32 s22, s22, 2")
    e("v_add_u32 v21, s22, v11\nv_xor_b32 v21, v21, v20\nv_lshlrev_b32 v21, 4, v21")
    e("v_lshl_add_u32 v21, v12, 9, v21")
    for c in range(2):
        for i in range(4):
            e(f"v_cvt_pk_bf16_f32 v{48+4*c+i}, v{AC+8*c+2*i}, v{AC+8*c+2*i+1}")
    for c in range(2):
        e(f"ds_write_b128 v21, v[{48+4*c}:{51+4*c}] offset:{OT + 256*c}")
    e("s_lshl_b32 s22, s3, 3")
    e("v_add_u32 v22, s22, v11")
    e("s_and_b32 s23, s18, 7\ns_lshl_b32 s23, s23, 1\nv_xor_b32 v28, s23, v10")
    for a in range(2):
        if a:
            e("v_add_u32 v22, 4, v22")
        e("v_bfe_u32 v23, v22, 1, 3\nv_lshlrev_b32 v23, 1, v23")
        e("v_xor_b32 v23, v23, v10\nv_lshlrev_b32 v23, 4, v23")
        e(f"v_lshl_add_u32 v{24+a}, v22, 8, v23")
        e(f"v_mul_u32_u24 v23, 40960, v22")
        e(f"v_lshl_add_u32 v{26+a}, v28, 4, v23")
    e("s_mul_i32 s22, s18, 1280\ns_lshl_b32 s23, s19, 8\ns_add_u32 s22, s22, s23")
    e("s_waitcnt lgkmcnt(0)\ns_barrier")
    ts(k, 5)
    for a in range(2):
        e(f"ds_read_b128 v[{56+4*a}:{59+4*a}], v{24+a} offset:{OT}")
    for a in range(2):
        e(f"s_waitcnt lgkmcnt({1-a})")
        e(f"buffer_store_dwordx4 v[{56+4*a}:{59+4*a}], v{26+a}, s[28:31], s22 offen")
    e(f"s_branch {L('fin')}")

    e(f"{L('notfft')}:")
    e(f"s_cmp_ge_u32 s2, 220\ns_cbranch_scc1 {L('notmod')}")
    e("s_sub_u32 s16, s2, 160")
    e("v_lshrrev_b32 v10, 3, v1\nv_and_b32 v11, 7, v1")
    e("s_mul_i32 s17, s3, 80")
    e("v_add_u32 v12, s17, v10")
    e("v_mul_u32_u24 v13, 7680, v12\nv_lshl_add_u32 v13, v11, 4, v13")
    e("v_lshlrev_b32 v12, 1, v12")
    e("s_lshl_b32 s17, s16, 7")
    e("s_waitcnt lgkmcnt(0)")
    srd(k, 24, 12, 0, 1280)
    srd(k, 28, 14, 0, 640 * 7680)
    for i in range(10):
        e(f"buffer_load_ushort v{20+i}, v12, s[24:27], 0 offen offset:{16*i}")
    for i in range(10):
        e(f"s_add_u32 s18, s17, {i*8*7680}")
        e(f"buffer_load_dwordx4 v[{64+4*i}:{67+4*i}], v13, s[28:31], s18 offen")
    srd(k, 32, 10, WS_MOD, SZ_MOD)
    for j in range(8):
        e(f"v_mov_b32 v{50+j}, 0")
    e("s_waitcnt vmcnt(10)")
    for i in range(10):
        e(f"v_lshlrev_b32 v{20+i}, 16, v{20+i}")
    for i in range(10):
        e(f"v_mul_f32 v{30+i}, {fhex(-1.4426950408889634)}, v{20+i}")
    for i in range(10):
        e(f"v_exp_f32 v{30+i}, v{30+i}")
    for i in range(10):
        e(f"v_add_f32 v{30+i}, 1.0, v{30+i}")
    for i in range(10):
        e(f"v_rcp_f32 v{30+i}, v{30+i}")
    for i in range(10):
        e(f"v_mul_f32 v{20+i}, v{20+i}, v{30+i}")
    for i in range(10):
        e(f"v_cvt_pk_bf16_f32 v{30+i}, v{20+i}, 0")
        e(f"v_cvt_pk_bf16_f32 v{40+i}, 0, v{20+i}")
    for i in range(10):
        e(f"s_waitcnt vmcnt({9-i})")
        for d in range(4):
            e(f"v_dot2_f32_bf16 v{50+2*d}, v{64+4*i+d}, v{30+i}, v{50+2*d}")
            e(f"v_dot2_f32_bf16 v{51+2*d}, v{64+4*i+d}, v{40+i}, v{51+2*d}")
    e("s_nop 2")
    for j in range(4):
        e(f"v_permlane32_swap_b32 v{50+j}, v{54+j}")
    for j in range(4):
        e(f"v_add_f32 v{50+j}, v{50+j}, v{54+j}")
    for j in range(2):
        e(f"v_permlane16_swap_b32 v{50+j}, v{52+j}")
    for j in range(2):
        e(f"v_add_f32 v{50+j}, v{50+j}, v{52+j}")
    e("v_bfe_u32 v14, v1, 3, 1\ns_lshl_b32 s18, s3, 1\nv_add_u32 v14, s18, v14\nv_lshlrev_b32 v14, 8, v14")
    e("v_lshrrev_b32 v15, 4, v1\nv_lshlrev_b32 v15, 3, v15\nv_lshl_add_u32 v15, v11, 5, v15\nv_add_u32 v14, v14, v15")
    e("ds_write_b64 v14, v[50:51]")
    e("s_waitcnt lgkmcnt(0)\ns_barrier")
    e(f"s_cmp_lg_u32 s3, 0\ns_cbranch_scc1 {L('fin')}")
    e("v_lshlrev_b32 v14, 2, v1")
    for p in range(16):
        e(f"ds_read_b32 v{64+p}, v14 offset:{256*p}")
    e("s_waitcnt lgkmcnt(0)")
    for st in (8, 4, 2, 1):
        for p in range(st):
            e(f"v_add_f32 v{64+p}, v{64+p}, v{64+p+st}")
    e("v_cvt_pk_bf16_f32 v64, 0, v64")
    e("s_mul_i32 s18, s16, 205\ns_lshr_b32 s18, s18, 11")
    e("s_cmp_eq_u32 s18, 1\ns_cselect_b32 s19, 1.0, 0")
    e("s_cmp_eq_u32 s18, 4\ns_cselect_b32 s19, 1.0, s19")
    e("v_add_f32 v64, s19, v64")
    e("v_cvt_pk_bf16_f32 v64, 0, v64")
    e("s_lshl_b32 s18, s16, 8")
    e("buffer_store_dword v64, v14, s[32:35], s18 offen")
    e(f"s_branch {L('fin')}")

    e(f"{L('notmod')}:")
    code_srd(k, 32, "p2_kernel", "code_end-p2_kernel")
    e("s_lshl_b32 s22, s3, 13\nv_lshlrev_b32 v10, 7, v1\nbuffer_load_dword v126, v10, s[32:35], s22 offen")
    e("s_sub_u32 s16, s2, 220\ns_mul_i32 s16, s16, 7168\nv_lshlrev_b32 v10, 4, v0")
    for i in range(4):
        e(f"v_mov_b32 v{12+i}, 0")
    e("v_cmp_gt_u32 vcc, 0x1c0, v0\nv_cndmask_b32 v10, 0x40000000, v10, vcc")
    e("s_waitcnt lgkmcnt(0)")
    srd(k, 24, 10, WS_STATS, SZ_STATS + SZ_FLAG)
    e("buffer_store_dwordx4 v[12:15], v10, s[24:27], s16 offen")
    e(f"{L('fin')}:")
    ts_end(k, 0, 10, 100)
    e(f"{L('end')}:")
    e("s_endpgm")
    e("p1_code_end:")
    return k
```

```python
from common import *
import numpy as np

TAB_FA, TAB_TW, TAB_FB, TAB_SZ = 0, 2048, 2048 + 5120, 2048 + 5120 + 9216


def bf16_bits(x):
    u = np.asarray(x, dtype=np.float32).view(np.uint32).astype(np.uint64)
    return ((u + 0x7FFF + ((u >> 16) & 1)) >> 16).astype(np.uint16)


def tables():
    fa = np.zeros((2, 64, 8))
    fb = np.zeros((3, 3, 64, 8))
    for l in range(64):
        m, g = l % 16, l // 16
        for jj in range(8):
            c = jj % 2
            for a in range(2):
                e1, cp, d1 = 8 * a + 2 * (m // 4) + (m % 4) // 2, m % 2, 4 * g + jj // 2
                th = 2 * np.pi * ((e1 * d1) % 16) / 16
                fa[a, l, jj] = [[np.cos(th), np.sin(th)], [-np.sin(th), np.cos(th)]][cp][c]
            for b in range(3):
                for ks in range(3):
                    e2, d2 = 16 * b + m, 16 * ks + 4 * g + jj // 2
                    ps = 2 * np.pi * ((e2 * d2) % 40) / 40
                    fb[b, ks, l, jj] = 0.0 if d2 >= 40 else (np.cos(ps) if c == 0 else np.sin(ps))
    tw = np.zeros((40, 16, 2), dtype=np.float32)
    for d2 in range(40):
        for e1 in range(16):
            th = 2 * np.pi * e1 * d2 / 640
            tw[d2, e1] = (np.cos(th), np.sin(th))
    raw = bf16_bits(fa).tobytes() + tw.tobytes() + bf16_bits(fb).tobytes()
    assert len(raw) == TAB_SZ
    w = np.frombuffer(raw, dtype=np.uint32)
    out = [".p2align 8", ".type p2_tab,@object", "p2_tab:"]
    for i in range(0, len(w), 8):
        out.append("  .long " + ",".join(f"0x{x:x}" for x in w[i:i + 8]))
    out.append(f".size p2_tab, {TAB_SZ}")
    return "\n".join(out)


def sprinkle(k, start, items, every):
    body, out, skip, n = k.L[start:], [], None, 0
    items = list(items)
    for line in body:
        t = line.strip()
        out.append(line)
        if t.startswith("s_cbranch"):
            skip = t.split()[1] + ":"
        elif skip and t == skip:
            skip = None
        n += 1
        if items and n >= every and skip is None:
            out += ["  " + x for x in items.pop(0).split("\n")]
            n = 0
    for it in items:
        out += ["  " + x for x in it.split("\n")]
    k.L[start:] = out


def wave_allsum(k, r, t):
    for m in ("quad_perm:[1,0,3,2]", "quad_perm:[2,3,0,1]", "row_half_mirror", "row_mirror"):
        k.e(f"v_add_f32_dpp v{r}, v{r}, v{r} {m} row_mask:0xf bank_mask:0xf")
    for sw in ("v_permlane16_swap_b32", "v_permlane32_swap_b32"):
        k.e(f"v_mov_b32 v{t}, v{r}")
        k.e(f"{sw} v{r}, v{t}")
        k.e(f"v_add_f32 v{r}, v{r}, v{t}")


def build(diag=False):
    HB, HJ = 0, 800 * 4
    TB, TJ, TE = HB + 8 * HJ, 3104, 192
    YB, YJ = 0, 772 * 4
    TABL = (TB + 5 * TJ + 255) // 256 * 256
    MODL = TABL + TAB_SZ
    VL = MODL + 16384
    assert VL % 256 == 0
    YM = VL + 24576
    PK = [VL, VL + 8192]
    k = Kern("p2_kernel", 256, 512, VL + 81920, vgpr=212, sgpr=96 if diag else 64)
    k.diag = diag
    e = k.e
    L = k.lab
    ts_begin(k)
    e(f"s_cmp_ge_u32 s2, 256\ns_cbranch_scc1 {L('end')}")
    e(f"s_load_dwordx2 s[4:5], s[0:1], {KA_X}")
    e(f"s_load_dwordx2 s[10:11], s[0:1], {KA_WS}")
    e(f"s_load_dwordx2 s[56:57], s[0:1], {KA_WOUT}")
    e(f"s_load_dwordx4 s[52:55], s[0:1], {KA_WIN}")
    e("s_getpc_b64 s[6:7]")
    e("s_add_u32 s6, s6, p2_tab@rel32@lo+4\ns_addc_u32 s7, s7, p2_tab@rel32@hi+12")
    e("v_and_b32 v1, 63, v0\nv_lshrrev_b32 v2, 6, v0\nv_readfirstlane_b32 s3, v2")
    e("s_and_b32 s14, s2, 7\ns_lshr_b32 s15, s2, 3")
    e("s_lshl_b32 s16, s14, 2\ns_lshr_b32 s18, s15, 3\ns_add_u32 s16, s16, s18")
    e("s_and_b32 s17, s15, 7")
    e("v_lshlrev_b32 v9, 4, v1")
    e("s_and_b32 s58, s14, 3\ns_mul_i32 s58, s58, 40\ns_lshr_b32 s22, s14, 2\ns_mul_i32 s22, s22, 80")
    e("s_add_u32 s59, s58, s15\ns_add_u32 s58, s59, 32")
    for r in (59, 58):
        e(f"s_cmp_ge_u32 s{r}, 80\ns_cselect_b32 s23, 80, 0\ns_add_u32 s{r}, s{r}, s23\ns_add_u32 s{r}, s{r}, s22")
    e(f"s_mul_i32 s60, s3, 10240\ns_mul_i32 s20, s16, 81920\ns_add_u32 s32, s20, s60\ns_add_u32 s60, s60, {VL}")
    e("s_add_u32 s33, s32, 4096\ns_add_u32 s34, s32, 8192\ns_add_u32 s61, s60, 4096\ns_add_u32 s62, s60, 8192")
    e(f"s_lshl_b32 s63, s3, 12\ns_and_b32 s35, s63, 0x3000\ns_add_u32 s63, s63, {TABL}")
    e("s_waitcnt lgkmcnt(0)")
    ts(k, 1)
    srd(k, 24, 10, WS_V, SZ_V)
    e("s_mov_b32 m0, s60\nbuffer_load_dwordx4 v9, s[24:27], s32 offen lds")
    e(f"s_cmp_lt_u32 s3, 4\ns_cselect_b32 s28, s6, s10\ns_cselect_b32 s29, s7, s11\ns_movk_i32 s30, {SZ_MOD}\ns_cselect_b32 s30, {TAB_SZ}, s30\ns_mov_b32 s31, 0x20000")
    dma = []
    for i in range(1, 10):
        dma.append((f"s_mov_b32 m0, s{60 + i//4}\n" if i % 4 == 0 else "") + f"buffer_load_dwordx4 v9, s[24:27], s{32 + i//4} offen offset:{1024*(i % 4)} lds")
    for i in range(4):
        dma.append(("s_mov_b32 m0, s63\n" if i == 0 else "") + f"buffer_load_dwordx4 v9, s[28:31], s35 offen offset:{1024*i} lds")
    mark0 = len(k.L)
    srd(k, 36, 4, 0, S * 1280)
    e("s_lshl_b32 s18, s17, 8\ns_add_u32 s18, s18, s16")
    e("s_mov_b32 s19, 1.0\ns_mov_b32 s20, 1.0")
    e(f"s_mov_b32 s21, {fhex(-0.25)}")
    e(f"s_cmp_lg_u32 s16, 0\ns_cbranch_scc1 {L('par')}")
    e("s_cmp_ge_u32 s17, 4")
    e("s_cselect_b32 s19, 0, 1.0\ns_cselect_b32 s20, 1.0, 0\ns_cselect_b32 s22, 992, 0")
    e("s_sub_u32 s18, s18, s22\ns_mov_b32 s21, 0")
    e(f"{L('par')}:")
    e("s_and_b32 s44, s3, 3\ns_lshl_b32 s42, s44, 6\ns_add_u32 s42, s42, s18")
    e("s_lshr_b32 s43, s3, 2\ns_sub_u32 s45, 2048, s42")
    e("s_cmp_eq_u32 s43, 1\ns_cselect_b32 s42, s45, s42")
    e("s_cmp_eq_u32 s42, 2048")
    e("s_cselect_b32 s42, 1024, s42\ns_cselect_b32 s43, 0, s43\ns_cselect_b32 s44, 4, s44")
    e("s_mul_i32 s45, s42, 1280")
    CA, SA, FA, TW, FB, X, GA, CB, SB = 20, 25, 32, 40, 56, 80, 86, 96, 106
    e("v_lshlrev_b32 v126, 3, v1\nv_lshlrev_b32 v125, 2, v1")
    dma.append(f"buffer_load_dwordx2 v[{X}:{X+1}], v126, s[36:39], s45 offen")
    dma.append(f"buffer_load_dwordx2 v[{X+2}:{X+3}], v126, s[36:39], s45 offen offset:512")
    dma.append(f"buffer_load_dword v{X+4}, v125, s[36:39], s45 offen offset:1024")
    e("v_and_b32 v10, 15, v1\nv_lshrrev_b32 v11, 4, v1")
    e("v_lshrrev_b32 v14, 2, v10\nv_and_b32 v15, 3, v10")
    e("s_lshl_b32 s22, s3, 3\nv_add_u32 v16, s22, v15\nv_add_u32 v17, 4, v16")
    e(f"s_cmp_lt_u32 s3, 5\ns_cbranch_scc1 {L('pa')}")
    e("s_sub_u32 s22, s3, 5\ns_lshl_b32 s22, s22, 4")
    e("v_mov_b32 v14, 4\nv_add_u32 v16, s22, v10\nv_min_u32 v16, 39, v16\nv_mov_b32 v17, v16")
    e(f"{L('pa')}:")
    RA, TA, TWA, FBA = 116, 118, 138, 204
    for r in range(2):
        e(f"v_lshlrev_b32 v18, 7, v{16+r}\nv_lshl_add_u32 v{TWA+r}, v11, 4, v18")
        e(f"v_mul_u32_u24 v18, {HJ}, v14\nv_mul_u32_u24 v19, 80, v{16+r}\nv_add_u32 v18, v18, v19")
        e(f"v_lshl_add_u32 v{RA+r}, v11, 4, v18")
        e(f"v_mul_u32_u24 v18, {TJ}, v14\nv_mul_u32_u24 v19, {2*TE}, v11\nv_add_u32 v18, v18, v19")
        e(f"v_lshl_add_u32 v{TA+r}, v{16+r}, 2, v18")
    RB, RBC, YA, YMA = 120, 122, 4, 208
    for r in range(2):
        e(f"s_add_u32 s22, s3, {8*r}\ns_min_u32 s22, s22, 14")
        e("s_mul_i32 s23, s22, 86\ns_lshr_b32 s23, s23, 8")
        e("s_mul_i32 s40, s23, 3\ns_sub_u32 s40, s22, s40")
        e(f"s_mul_i32 s41, s40, 3072\nv_add_u32 v{6+r}, s41, v9")
        e("s_lshl_b32 s41, s23, 2")
        e("v_lshrrev_b32 v2, 2, v10\nv_and_b32 v3, 3, v10\nv_add_u32 v3, s41, v3")
        e(f"s_cmp_lt_u32 s23, 4\ns_cbranch_scc1 {L('pb%d' % r)}")
        e("v_mov_b32 v2, 4\nv_mov_b32 v3, v10")
        e(f"{L('pb%d' % r)}:")
        e(f"v_lshlrev_b32 v19, 8, v11\nv_lshl_add_u32 v19, v3, 2, v19\ns_lshl_b32 s41, s40, 10\nv_add_u32 v19, s41, v19\nv_mul_u32_u24 v18, {YJ}, v2")
        e(f"v_add_u32 v{YA+r}, v18, v19\nv_sub_u32 v18, v18, v19\nv_add_u32 v{YMA+r}, {YM + 3072 - 192}, v18")
        e(f"v_mul_u32_u24 v2, {TJ}, v2\nv_mul_u32_u24 v3, {TE}, v3\nv_add_u32 v2, v2, v3")
        e(f"v_lshl_add_u32 v{RB+r}, v11, 4, v2")
        e(f"v_and_b32 v3, 1, v11\nv_lshl_add_u32 v{RBC+r}, v3, 4, v2")
    M, MF = 128, 144
    e("v_lshrrev_b32 v2, 1, v10\nv_and_b32 v3, 1, v10")
    e("v_lshlrev_b32 v12, 6, v2\nv_add_u32 v12, s18, v12")
    e("v_cmp_eq_u32 vcc, 4, v2\nv_mov_b32 v13, 1024\nv_cndmask_b32 v12, v12, v13, vcc")
    e(f"v_cvt_f32_u32 v12, v12\nv_mul_f32 v12, {fhex(1/2048)}, v12")
    e(f"v_cvt_f32_u32 v3, v3\nv_mul_f32 v3, {fhex(0.25)}, v3")
    e("v_lshlrev_b32 v13, 2, v11\nv_cvt_f32_u32 v13, v13\nv_fma_f32 v13, v12, v13, v3")
    MT = 152
    for jj in range(8):
        c = (jj % 4) + 16 * (jj // 4)
        e(f"v_fmamk_f32 v{MT+jj}, v12, {fhex(c)}, v13")
        e(f"v_add_f32 v{MT+8+jj}, s21, v{MT+jj}")
    for i in range(16):
        e(f"v_cos_f32 v{MT+i}, v{MT+i}")
    for i in range(16):
        e(f"v_mul_f32 v{MT+i}, s{19 + i // 8}, v{MT+i}")
    for i in range(8):
        e(f"v_cvt_pk_bf16_f32 v{MF+i}, v{MT+2*i}, v{MT+2*i+1}")
    TR, HW = 128, 133
    e("v_lshrrev_b32 v2, 2, v1\nv_and_b32 v3, 3, v1")
    e("v_and_b32 v12, 7, v2\nv_lshlrev_b32 v12, 1, v12")
    e(f"v_mul_u32_u24 v2, 1280, v2\nv_and_b32 v13, 1, v3\nv_lshl_add_u32 v2, v13, 3, v2\nv_add_u32 v2, {VL}, v2")
    e("s_mul_i32 s22, s3, 10\nv_lshrrev_b32 v3, 1, v3\nv_add_u32 v3, s22, v3")
    for u in range(5):
        e(f"v_add_u32 v13, {2*u}, v3\nv_xor_b32 v13, v13, v12\nv_lshl_add_u32 v{TR+u}, v13, 4, v2")
    e(f"s_mul_i32 s22, s3, 80\nv_add_u32 v2, s22, v10\nv_mul_u32_u24 v3, {2*HJ}, v11")
    e(f"v_lshlrev_b32 v8, 2, v2\nv_add_u32 v8, {MODL}, v8\nv_add_u32 v124, {MODL}, v9\nv_add_u32 v15, {MODL}, v126")
    for u in range(5):
        e(f"v_add_u32 v12, {16*u}, v2\nv_mul_u32_u24 v13, 205, v12\nv_lshrrev_b32 v13, 13, v13")
        e(f"v_mul_u32_u24 v18, 40, v13\nv_sub_u32 v12, v12, v18\nv_mul_u32_u24 v12, 80, v12")
        e(f"v_lshl_add_u32 v12, v13, 2, v12\nv_add_u32 v{HW+u}, v12, v3")
    e(f"s_cmp_eq_u32 s2, 0\ns_cselect_b32 s22, {fhex(2048.0)}, 0")
    e("v_cmp_eq_u32 vcc, 0, v11\nv_mov_b32 v2, s22\nv_cndmask_b32 v127, 0, v2, vcc")
    e(f"s_mul_i32 s22, s44, {YJ}\ns_cmp_eq_u32 s43, 1\ns_cselect_b32 s40, {YM + 512}, {YB}\ns_add_u32 s22, s22, s40")
    e("v_add_u32 v16, s22, v9\nv_add_u32 v17, s22, v126")
    sprinkle(k, mark0, dma, 13)
    ts(k, 2)
    srd(k, 24, 10, WS_X1, SZ_X1)
    srd(k, 36, 10, WS_H2, SZ_H2)
    srd(k, 28, 52, 0, 640 * 3456)
    srd(k, 32, 56, 0, 864 * 1280)
    srd(k, 4, 10, WS_WINP, SZ_WINP)
    srd(k, 60, 10, WS_WOUTP, SZ_WOUTP)
    srd(k, 48, 54, 0, S * 4096)
    e("s_lshl_b32 s22, s15, 2\ns_and_b32 s23, s3, 3\ns_add_u32 s22, s22, s23\ns_lshl_b32 s22, s22, 13")
    e("s_and_b32 s46, s14, 3\ns_lshl_b32 s46, s46, 21\ns_add_u32 s46, s46, s22\ns_lshr_b32 s23, s14, 2\ns_lshl_b32 s23, s23, 20\ns_add_u32 s46, s46, s23")
    e("v_lshrrev_b32 v2, 4, v1\nv_and_b32 v3, 15, v1\nv_lshlrev_b32 v12, 1, v2\nv_xor_b32 v3, v3, v12")
    e("v_mul_u32_u24 v2, 3456, v2\nv_lshl_add_u32 v204, v3, 4, v2\nv_xor_b32 v3, 8, v3\nv_lshl_add_u32 v205, v3, 4, v2")
    e(f"v_add_u32 v205, {8*3456-1024}, v205\nv_cmp_gt_u32 vcc, 14, v3\nv_cndmask_b32 v205, 0x40000000, v205, vcc\nv_xor_b32 v3, 8, v3")
    e("v_cmp_gt_u32 vcc, 14, v3\nv_cndmask_b32 v204, 0x40000000, v204, vcc")
    e("s_and_b32 s21, s3, 1\ns_lshl_b32 s21, s21, 4\ns_bfe_u32 s22, s3, 0x10001\ns_lshl_b32 s22, s22, 2\ns_add_u32 s21, s21, s22\ns_mul_i32 s21, s21, 3456")
    for u in range(2):
        e(f"s_mul_i32 s23, s{59-u}, 205\ns_lshr_b32 s23, s23, 12\ns_mul_i32 s40, s23, 20\ns_sub_u32 s22, s{59-u}, s40")
        e("s_lshr_b32 s40, s23, 1\ns_mul_i32 s40, s40, 432\ns_and_b32 s23, s23, 1\ns_mul_i32 s23, s23, 224\ns_add_u32 s40, s40, s23")
        e(f"s_mul_i32 s22, s22, {32*3456}\ns_add_u32 s40, s40, s22\ns_add_u32 s{12+u}, s40, s21")
    e("s_mul_i32 s40, s2, 2341\ns_lshr_b32 s40, s40, 16\ns_mul_i32 s41, s40, 28\ns_sub_u32 s41, s2, s41")
    e("s_mul_i32 s22, s41, 37\ns_lshr_b32 s22, s22, 8\ns_mul_i32 s23, s22, 7\ns_sub_u32 s41, s41, s23")
    e("s_lshl_b32 s23, s41, 5\ns_cmp_ge_u32 s41, 3\ns_cselect_b32 s47, 16, 0\ns_add_u32 s23, s23, s47")
    e("s_cmp_eq_u32 s41, 6\ns_cselect_b32 s23, 96, s23\ns_cselect_b32 s47, 96, 0")
    e("s_mul_i32 s22, s22, 216\ns_add_u32 s23, s23, s22\ns_mul_i32 s23, s23, 1280\ns_mul_i32 s40, s40, 160\ns_add_u32 s8, s23, s40")
    e("s_and_b32 s9, s3, 3\ns_lshl_b32 s41, s9, 6")
    for n in range(2):
        e(("v_add_u32 v3, s41, v1" if n == 0 else "v_add_u32 v3, 256, v1") + "\nv_mul_u32_u24 v2, 6554, v3\nv_lshrrev_b32 v2, 16, v2\nv_mul_u32_u24 v12, 10, v2\nv_sub_u32 v3, v3, v12")
        e(f"v_lshrrev_b32 v12, 4, v2\nv_mul_u32_u24 v12, s47, v12\nv_add_u32 v2, v2, v12\nv_mul_u32_u24 v2, 1280, v2\nv_lshl_add_u32 v{206+n}, v3, 4, v2")
    e(f"s_lshl_b32 s22, s3, 5\ns_add_u32 s22, s22, {VL+16384-96}")
    e("v_lshrrev_b32 v2, 2, v1\nv_mul_u32_u24 v12, 160, v2\nv_and_b32 v3, 3, v1\nv_lshl_add_u32 v12, v3, 3, v12\nv_add_u32 v30, s22, v12")
    e("v_and_b32 v12, 7, v2\nv_lshlrev_b32 v12, 1, v12\nv_bfe_u32 v13, v1, 1, 1\ns_lshl_b32 s22, s3, 1")
    e("v_add_u32 v13, s22, v13\nv_xor_b32 v13, v13, v12\nv_lshlrev_b32 v13, 4, v13\nv_lshl_add_u32 v13, v2, 8, v13")
    e(f"v_and_b32 v12, 1, v1\nv_lshl_add_u32 v31, v12, 3, v13\nv_add_u32 v31, {PK[0]}, v31\nv_lshlrev_b32 v2, 7, v1")
    ts(k, 3)
    e(f"s_waitcnt vmcnt(3)\ns_barrier")
    ts(k, 4)
    e(f"s_cmp_lt_u32 s3, 4\ns_cbranch_scc1 {L('pf2')}")
    e("buffer_load_dword v85, v2, s[48:51], s46 offen")
    e(f"{L('pf2')}:")
    DA = 152
    for u in range(5):
        for ks in range(2):
            for h in range(2):
                b = DA + 8 * u + 4 * ks + 2 * h
                e(f"ds_read_b64_tr_b16 v[{b}:{b+1}], v{TR+u} offset:{(32*ks+16*h)*1280}")
        e(f"ds_read2st64_b32 v[{CA+2*u}:{CA+2*u+1}], v8 offset0:0 offset1:10")
        if u < 4:
            e("v_add_u32 v8, 64, v8")
        if u >= 2:
            uu = u - 2
            e("s_waitcnt lgkmcnt(10)")
            step1(e, uu, DA, MF)
    for uu in (3, 4):
        e(f"s_waitcnt lgkmcnt({5*(4-uu)})")
        step1(e, uu, DA, MF)
    for a in range(2):
        e(f"ds_read_b128 v[{FA+4*a}:{FA+4*a+3}], v9 offset:{TABL + TAB_FA + 1024*a}")
    for r in range(2):
        for a in range(2):
            b = TW + 8 * r + 4 * a
            e(f"ds_read_b128 v[{b}:{b+3}], v{TWA+r} offset:{TABL + TAB_TW + 64*a}")
    for u in range(5):
        a = ACCR(u)
        sa, ca = CA + 2 * u, CA + 2 * u + 1
        e(f"v_mul_f32 v{sa}, v{sa}, v127")
        e(f"v_fma_f32 v{a}, v{a}, v{ca}, v{sa}")
        for i in range(1, 4):
            e(f"v_mul_f32 v{a+i}, v{a+i}, v{ca}")
        e(f"v_cvt_pk_bf16_f32 v{a}, v{a}, v{a+1}")
        e(f"v_cvt_pk_bf16_f32 v{a+2}, v{a+2}, v{a+3}")
    e("s_mov_b32 exec_hi, 0xffff")
    for u in range(5):
        e(f"ds_write_b32 v{HW+u}, v{ACCR(u)} offset:{HB}")
    e("s_mov_b32 exec_hi, 0")
    for u in range(5):
        e(f"ds_write_b32 v{HW+u}, v{ACCR(u)+2} offset:{HB+HJ}")
    e("s_mov_b32 exec_hi, -1")
    e("s_waitcnt lgkmcnt(0)\ns_barrier")
    ts(k, 5)
    e(f"s_cmp_lt_u32 s3, 4\ns_cbranch_scc1 {L('rw2')}")
    e(f"s_lshl_b32 s22, s9, 11\ns_add_u32 m0, s22, {PK[0]}")
    e("buffer_load_dwordx4 v204, s[28:31], s12 offen lds\nbuffer_load_dwordx4 v205, s[28:31], s12 offen offset:1024 lds")
    e(f"s_lshl_b32 s23, s9, 10\ns_add_u32 m0, s23, {VL+16384}\nbuffer_load_dwordx4 v206, s[32:35], s8 offen lds")
    e(f"s_mov_b32 m0, {VL+16384+4096}\ns_cmp_lg_u32 s3, 7\ns_cbranch_scc1 {L('rw1')}\nbuffer_load_dwordx4 v207, s[32:35], s8 offen lds")
    e(f"{L('rw1')}:")
    e(f"s_cmp_ge_u32 s15, 8\ns_cbranch_scc1 {L('rw2')}\ns_add_u32 m0, s22, {PK[1]}")
    e("buffer_load_dwordx4 v204, s[28:31], s13 offen lds\nbuffer_load_dwordx4 v205, s[28:31], s13 offen offset:1024 lds")
    e(f"{L('rw2')}:")
    for r in range(2):
        e(f"ds_read_b128 v[{152+4*r}:{155+4*r}], v{RA+r} offset:{HB}")
    for r in range(2):
        for ks in range(3):
            b = FB + 12 * r + 4 * ks
            e(f"ds_read_b128 v[{b}:{b+3}], v{6+r} offset:{TABL + TAB_FB + 1024*ks}")
    for r in range(2):
        e(f"s_waitcnt lgkmcnt({7-r})")
        for a in range(2):
            d = 160 + 8 * r + 4 * a
            e(f"v_mfma_f32_16x16x32_bf16 v[{d}:{d+3}], v[{FA+4*a}:{FA+4*a+3}], v[{152+4*r}:{155+4*r}], 0")
    for r in range(2):
        for a in range(2):
            for p in range(2):
                br, bi = 160 + 8 * r + 4 * a + 2 * p, 161 + 8 * r + 4 * a + 2 * p
                tc, tsn = TW + 8 * r + 4 * a + 2 * p, TW + 8 * r + 4 * a + 2 * p + 1
                t = 176 + 8 * r + 4 * a + 2 * p
                e(f"v_mul_f32 v{t}, v{br}, v{tc}")
                e(f"v_mul_f32 v{t+1}, v{bi}, v{tc}")
                e(f"v_fma_f32 v{t}, v{bi}, v{tsn}, v{t}")
                e(f"v_fma_f32 v{t+1}, -v{br}, v{tsn}, v{t+1}")
                e(f"v_cvt_pk_bf16_f32 v{t}, v{t}, v{t+1}")
                e(f"ds_write_b32 v{TA+r}, v{t} offset:{TB + (8*a+p)*TE}")
    e("s_waitcnt lgkmcnt(0)\ns_barrier")
    ts(k, 6)
    for r in range(2):
        for ks in range(3):
            b = 152 + 12 * r + 4 * ks
            e(f"ds_read_b128 v[{b}:{b+3}], v{(RB if ks < 2 else RBC)+r} offset:{TB + 64*ks}")
    for (reg, ch) in ((GA, 2), (CB, 4), (SB, 3)):
        e(f"ds_read_b128 v[{reg}:{reg+3}], v124 offset:{ch*2560}")
        e(f"ds_read_b128 v[{reg+4}:{reg+7}], v124 offset:{ch*2560+1024}")
        e(f"ds_read_b64 v[{reg+8}:{reg+9}], v15 offset:{ch*2560+2048}")
    for r in range(2):
        for ks in range(3):
            b = 152 + 12 * r + 4 * ks
            d = 176 + 4 * r
            e(f"s_waitcnt lgkmcnt({9 + 5 - 3*r - ks})")
            src = "0" if ks == 0 else f"v[{d}:{d+3}]"
            e(f"v_mfma_f32_16x16x32_bf16 v[{d}:{d+3}], v[{FB+12*r+4*ks}:{FB+12*r+4*ks+3}], v[{b}:{b+3}], {src}")
    XF = 186
    e(f"s_waitcnt vmcnt(4)\ns_cmp_ge_u32 s3, 4\ns_cbranch_scc1 {L('xok')}\ns_waitcnt vmcnt(0)")
    e(f"{L('xok')}:")
    for u in range(5):
        e(f"v_lshlrev_b32 v{XF+2*u}, 16, v{X+u}")
        e(f"v_and_b32 v{XF+2*u+1}, 0xffff0000, v{X+u}")
    for r in range(2):
        for i in range(4):
            e(f"ds_write_b32 v{YA+r}, v{176+4*r+i} offset:{YB + 64*i}")
            e(f"ds_write_b32 v{YMA+r}, v{176+4*r+i} offset:{64*(3-i)}")
    e("s_waitcnt lgkmcnt(0)\ns_barrier")
    ts(k, 7)
    Y = 152
    e(f"ds_read_b128 v[{Y}:{Y+3}], v16\nds_read_b128 v[{Y+4}:{Y+7}], v16 offset:1024\nds_read_b64 v[{Y+8}:{Y+9}], v17 offset:2048")
    e("s_waitcnt lgkmcnt(0)")
    for i in range(10):
        e(f"v_fma_f32 v{XF+i}, v{GA+i}, v{Y+i}, v{XF+i}")
    for u in range(5):
        e(f"v_cvt_pk_bf16_f32 v{X+u}, v{XF+2*u}, v{XF+2*u+1}")

    def store3(R, sd):
        e(f"buffer_store_dwordx2 v[{R}:{R+1}], v126, s[{sd}:{sd+3}], s45 offen sc1")
        e(f"buffer_store_dwordx2 v[{R+2}:{R+3}], v126, s[{sd}:{sd+3}], s45 offen offset:512 sc1")
        e(f"buffer_store_dword v{R+4}, v125, s[{sd}:{sd+3}], s45 offen offset:1024 sc1")

    store3(X, 24)
    for u in range(5):
        e(f"v_lshlrev_b32 v{XF+2*u}, 16, v{X+u}")
        e(f"v_and_b32 v{XF+2*u+1}, 0xffff0000, v{X+u}")
    for i in range(5):
        e(f"v_add_f32 v{Y+i}, v{XF+2*i}, v{XF+2*i+1}")
    e(f"v_add_f32 v{Y}, v{Y}, v{Y+1}\nv_add_f32 v{Y+2}, v{Y+2}, v{Y+3}\nv_add_f32 v{Y}, v{Y}, v{Y+4}\nv_add_f32 v{Y}, v{Y}, v{Y+2}")
    wave_allsum(k, Y, Y + 1)
    e(f"v_mul_f32 v{Y}, {fhex(-1/640)}, v{Y}")
    for i in range(10):
        e(f"v_add_f32 v{XF+i}, v{XF+i}, v{Y}")
    e(f"v_mul_f32 v{Y}, v{XF}, v{XF}\nv_mul_f32 v{Y+1}, v{XF+1}, v{XF+1}")
    for i in range(2, 10):
        e(f"v_fmac_f32 v{Y + i % 2}, v{XF+i}, v{XF+i}")
    e(f"v_add_f32 v{Y}, v{Y}, v{Y+1}")
    wave_allsum(k, Y, Y + 1)
    e(f"v_mov_b32 v{Y+1}, {fhex(1e-5)}\nv_fmamk_f32 v{Y}, v{Y}, {fhex(1/640)}, v{Y+1}")
    e(f"v_rsq_f32 v{Y}, v{Y}")
    for i in range(10):
        e(f"v_mul_f32 v{XF+i}, v{XF+i}, v{Y}")
    for i in range(10):
        e(f"v_fma_f32 v{XF+i}, v{XF+i}, v{CB+i}, v{SB+i}")
    for u in range(5):
        e(f"v_cvt_pk_bf16_f32 v{Y+2+u}, v{XF+2*u}, v{XF+2*u+1}")
    store3(Y + 2, 36)
    ts(k, 8)
    e("s_waitcnt vmcnt(6)\ns_barrier")
    e(f"s_cmp_eq_u32 s3, 7\ns_cbranch_scc1 {L('pk2')}")
    e("ds_read_b64_tr_b16 v[204:205], v31\nds_read_b64_tr_b16 v[206:207], v31 offset:4096")
    e("s_mul_i32 s47, s59, 7\ns_add_u32 s47, s47, s3\ns_lshl_b32 s47, s47, 10")
    e(f"s_cmp_ge_u32 s15, 8\ns_cbranch_scc1 {L('pk1')}")
    e("ds_read_b64_tr_b16 v[200:201], v31 offset:8192\nds_read_b64_tr_b16 v[202:203], v31 offset:12288")
    e("s_mul_i32 s23, s58, 7\ns_add_u32 s23, s23, s3\ns_lshl_b32 s23, s23, 10\ns_waitcnt lgkmcnt(0)\nbuffer_store_dwordx4 v[200:203], v9, s[4:7], s23 offen sc1")
    e(f"{L('pk1')}:")
    e("s_waitcnt lgkmcnt(0)\nbuffer_store_dwordx4 v[204:207], v9, s[4:7], s47 offen sc1")
    e(f"{L('pk2')}:")
    e(f"s_cmp_lt_u32 s3, 3\ns_cbranch_scc1 {L('pk3')}\ns_cmp_ge_u32 s2, 224\ns_cbranch_scc1 {L('pk3')}")
    e("ds_read_b64_tr_b16 v[196:197], v30\nds_read_b64_tr_b16 v[198:199], v30 offset:2560")
    e("s_mul_i32 s41, s2, 5\ns_add_u32 s41, s41, s3\ns_sub_u32 s41, s41, 3\ns_lshl_b32 s41, s41, 10")
    e("s_waitcnt lgkmcnt(0)\nbuffer_store_dwordx4 v[196:199], v9, s[60:63], s41 offen sc1")
    e(f"{L('pk3')}:")
    ts(k, 9)
    ts_end(k, 1, 10, 200)
    e(f"{L('end')}:")
    e("s_endpgm")
    return k


def ACCR(u):
    return [192, 196, 200, 140, 28 + 0][u] if False else [192, 196, 200, 140, 112][u]


def step1(e, u, DA, MF):
    a = ACCR(u)
    for ks in range(2):
        d = DA + 8 * u + 4 * ks
        src = "0" if ks == 0 else f"v[{a}:{a+3}]"
        e(f"v_mfma_f32_16x16x32_bf16 v[{a}:{a+3}], v[{MF+4*ks}:{MF+4*ks+3}], v[{d}:{d+3}], {src}")
```

```python
from common import *

C1 = 2 * 0.7978845608028654 * 1.4426950408889634
C2 = C1 * 0.044715
import os
DIST = int(os.environ.get('P3D', 2))


def gelu(e, regs, tmp, vneg_c2):
    n = len(regs)
    for i, r in enumerate(regs):
        e(f"v_mul_f32 v{tmp+i}, v{r}, v{r}")
    for i in range(n):
        e(f"v_fmaak_f32 v{tmp+i}, v{tmp+i}, v{vneg_c2}, {fhex(-C1)}")
    for i, r in enumerate(regs):
        e(f"v_mul_f32 v{tmp+i}, v{tmp+i}, v{r}")
    for i in range(n):
        e(f"v_exp_f32 v{tmp+i}, v{tmp+i}")
    for i in range(n):
        e(f"v_add_f32 v{tmp+i}, 1.0, v{tmp+i}")
    for i in range(n):
        e(f"v_rcp_f32 v{tmp+i}, v{tmp+i}")
    for i, r in enumerate(regs):
        e(f"v_mul_f32 v{r}, v{r}, v{tmp+i}")


def build(diag=False):
    k = Kern("p3_kernel", 256, 768, 163840, vgpr=128, sgpr=96 if diag else 64)
    k.diag = diag
    e = k.e
    L = k.lab
    SL = 32768
    ts_begin(k)
    e(f"s_cmp_ge_u32 s2, 256\ns_cbranch_scc1 {L('end')}")
    e(f"s_load_dwordx2 s[10:11], s[0:1], {KA_WS}")
    e(f"s_load_dwordx2 s[8:9], s[0:1], {KA_WSP}")
    e("v_and_b32 v1, 63, v0\nv_lshrrev_b32 v2, 6, v0\nv_readfirstlane_b32 s3, v2")
    e("s_and_b32 s16, s2, 7\ns_lshr_b32 s17, s2, 3")
    e("s_and_b32 s18, s16, 3\ns_lshl_b32 s18, s18, 2\ns_and_b32 s19, s17, 3\ns_add_u32 s18, s18, s19")
    e("s_lshr_b32 s19, s16, 2\ns_lshl_b32 s19, s19, 2\ns_bfe_u32 s20, s17, 0x20002\ns_add_u32 s19, s19, s20")
    e("s_lshr_b32 s17, s17, 4\ns_lshl_b32 s17, s17, 3\ns_add_u32 s19, s19, s17")
    e("v_lshlrev_b32 v5, 4, v1")
    e(f"s_cmp_lt_u32 s3, 4\ns_cbranch_scc1 {L('loader')}")
    e("s_sub_u32 s3, s3, 4")
    e("v_and_b32 v2, 15, v1\nv_lshrrev_b32 v3, 4, v1")
    e("v_lshrrev_b32 v15, 2, v2\nv_and_b32 v16, 3, v2")
    e("v_lshrrev_b32 v17, 1, v16\nv_lshlrev_b32 v17, 2, v17\nv_and_b32 v18, 2, v15\nv_or_b32 v17, v17, v18")
    e("v_xor_b32 v17, v17, v3\nv_lshlrev_b32 v17, 4, v17")
    e("v_lshl_add_u32 v16, v15, 3, v16\nv_lshl_add_u32 v6, v16, 7, v17")
    e("s_and_b32 s23, s3, 3\ns_lshl_b32 s23, s23, 12\nv_add_u32 v6, s23, v6\nv_xor_b32 v7, 64, v6")
    e("s_lshr_b32 s23, s3, 2\ns_lshl_b32 s23, s23, 12\nv_add_u32 v12, s23, v5")
    for b in (1, 2):
        e(f"v_add_u32 v{6+2*b}, {65536*b}, v6\nv_add_u32 v{7+2*b}, {65536*b}, v7\nv_add_u32 v{12+b}, {65536*b}, v12")
    e(f"v_mov_b32 v15, {fhex(-C2)}")
    e("s_lshl_b32 s20, s18, 2\ns_and_b32 s21, s3, 3\ns_add_u32 s20, s20, s21")
    e("s_and_b32 s21, s19, 7")
    e("s_waitcnt lgkmcnt(0)")
    ts(k, 1)
    AC, FRG = 32, 64

    def variant(z2, nt, tag):
        if z2:
            srd(k, 24, 10, WS_Z2P, SZ_Z2P)
            srd(k, 28, 10, WS_STATS, SZ_STATS)
            e("s_lshl_b32 s22, s21, 6\ns_add_u32 s22, s22, s20")
        else:
            srd(k, 24, 10, WS_Z1P, SZ_Z1P)
            e("s_lshl_b32 s22, s20, 3\ns_add_u32 s22, s22, s21")
        e(f"s_mul_i32 s22, s22, 7168")
        if nt == 3:
            e("s_add_u32 s22, s22, 4096")

        def reads(kap):
            st, ks = divmod(kap, 2)
            sl = st % 5
            base, off = sl // 2, (sl % 2) * SL
            b = FRG + 24 * (kap % 2)
            out = []
            for mt in range(2):
                out.append(f"ds_read_b128 v[{b+4*mt}:{b+4*mt+3}], v{6+2*base+ks} offset:{off + 512*mt}")
            for j in range(nt):
                out.append(f"ds_read_b128 v[{b+8+4*j}:{b+11+4*j}], v{12+base} offset:{off + 16384 + (7*ks+j)*1024}")
            return out

        ts(k, 2)
        e("s_barrier")
        ts(k, 3)
        for x in reads(0):
            e(x)
        for kap in range(20):
            nxt = kap + 1
            e("s_waitcnt lgkmcnt(0)")
            if nxt < 20 and nxt % 2 == 0:
                e("s_barrier")
                if nxt // 2 in (2, 4, 6, 8):
                    ts(k, 3 + nxt // 4)
            rd = reads(nxt) if nxt < 20 else []
            b = FRG + 24 * (kap % 2)
            for j in range(nt):
                for mt in range(2):
                    a = AC + 8 * j + 4 * mt
                    h, w = f"v[{b+4*mt}:{b+4*mt+3}]", f"v[{b+8+4*j}:{b+11+4*j}]"
                    src = "0" if kap == 0 else f"v[{a}:{a+3}]"
                    for _ in range(2):
                        if rd:
                            e(rd.pop(0))
                    e(f"v_mfma_f32_16x16x32_bf16 v[{a}:{a+3}], {h if z2 else w}, {w if z2 else h}, {src}")
        ts(k, 8)
        ST = 96
        for j in range(nt):
            regs = [AC + 8 * j + i for i in range(8)]
            gelu(e, regs, FRG, 15)
            if z2 and nt == 3 and j == 2:
                e("s_and_b32 s23, s19, 1\ns_cmp_eq_u32 s23, 1\ns_cselect_b32 s40, 0x00ff00ff, -1\ns_mov_b32 s41, s40")
                for r in regs:
                    e(f"v_cndmask_b32 v{r}, 0, v{r}, s[40:41]")
            for i in range(4):
                e(f"v_cvt_pk_bf16_f32 v{FRG+8+4*j+i}, v{regs[2*i]}, v{regs[2*i+1]}")
            e(f"buffer_store_dwordx4 v[{FRG+8+4*j}:{FRG+11+4*j}], v5, s[24:27], s22 offen offset:{1024*j} sc1")
            if z2:
                for i, r in enumerate(regs):
                    if j == 0:
                        e(f"v_mov_b32 v{ST+2*i}, v{r}\nv_mul_f32 v{ST+2*i+1}, v{r}, v{r}")
                    else:
                        e(f"v_add_f32 v{ST+2*i}, v{ST+2*i}, v{r}\nv_fmac_f32 v{ST+2*i+1}, v{r}, v{r}")
        if z2:
            m = 8
            for mask, dpp in ((0xff00ff00, "row_ror:8"), (0xf0f0f0f0, "row_half_mirror"),
                              (0xcccccccc, "quad_perm:[2,3,0,1]"), (0xaaaaaaaa, "quad_perm:[1,0,3,2]")):
                e(f"s_mov_b32 s40, 0x{mask:x}\ns_mov_b32 s41, s40")
                for i in range(m):
                    e(f"v_cndmask_b32 v{AC+i}, v{ST+i+m}, v{ST+i}, s[40:41]")
                for i in range(m):
                    e(f"v_cndmask_b32 v{ST+i}, v{ST+i}, v{ST+i+m}, s[40:41]")
                for i in range(m):
                    e(f"v_add_f32_dpp v{ST+i}, v{AC+i}, v{ST+i} {dpp} row_mask:0xf bank_mask:0xf")
                m //= 2
            e("v_lshlrev_b32 v2, 2, v1\ns_lshl_b32 s20, s20, 8")
            e(f"buffer_atomic_add_f32 v{ST}, v2, s[28:31], s20 offen")
        e(f"s_branch {L('fin')}")

    e(f"s_cmp_ge_u32 s19, 8\ns_cbranch_scc1 {L('z2')}")
    e(f"s_cmp_ge_u32 s3, 4\ns_cbranch_scc1 {L('z1b')}")
    variant(False, 4, "z1a")
    e(f"{L('z1b')}:")
    variant(False, 3, "z1b")
    e(f"{L('z2')}:")
    e(f"s_cmp_ge_u32 s3, 4\ns_cbranch_scc1 {L('z2b')}")
    variant(True, 4, "z2a")
    e(f"{L('z2b')}:")
    variant(True, 3, "z2b")
    e(f"{L('fin')}:")
    ts(k, 9)
    ts_end(k, 2, 10, 120)
    e("s_endpgm")

    e(f"{L('loader')}:")
    e("v_lshrrev_b32 v2, 3, v1\nv_and_b32 v3, 7, v1\nv_bfe_u32 v4, v2, 1, 1\nv_lshlrev_b32 v4, 2, v4")
    e("v_xor_b32 v3, v3, v4\nv_mul_u32_u24 v2, 1280, v2\nv_lshl_add_u32 v10, v3, 4, v2")
    e(f"v_add_u32 v11, {10240-1024}, v10\nv_xor_b32 v12, 32, v10\nv_add_u32 v12, {2*(10240-1024)}, v12\nv_add_u32 v13, {10240-1024}, v12")
    e("s_lshl_b32 s20, s18, 2\ns_add_u32 s20, s20, s3\ns_mul_i32 s20, s20, 40960")
    e("s_mul_i32 s21, s19, 35\ns_add_u32 s21, s21, s3\ns_lshl_b32 s21, s21, 12")
    e("s_lshl_b32 s22, s3, 12")
    e("s_cmp_eq_u32 s3, 3\ns_cselect_b32 s45, 0x40000000, 0")
    e("s_waitcnt lgkmcnt(0)")
    srd(k, 24, 10, WS_H2, SZ_H2)
    srd(k, 28, 10, WS_WINP, SZ_WINP)

    def dma(st):
        sl = (st % 5) * SL
        e(f"s_add_u32 s23, s20, {st*128}\ns_add_u32 m0, s22, {sl}")
        for i in range(4):
            e(f"buffer_load_dwordx4 v{10+i}, s[24:27], s23 offen offset:{1024*i} lds")
        e(f"s_add_u32 s23, s21, {st*14336}\ns_add_u32 m0, s22, {sl + 16384}\ns_add_u32 s44, s23, s45")
        for i in range(4):
            e(f"buffer_load_dwordx4 v5, s[28:31], s{23 if i < 2 else 44} offen offset:{1024*i} lds")

    for st in range(DIST):
        dma(st)
    last = DIST - 1
    extra = 0
    for st in range(10):
        e(f"s_waitcnt vmcnt({8*(last-st) + extra})\ns_barrier")
        hi = min(9, st + DIST)
        while last < hi:
            last += 1
            dma(last)
        if st == 10 - DIST:
            srd(k, 32, 8, 0, S * 4096)
            e("s_lshr_b32 s23, s2, 3\ns_lshl_b32 s23, s23, 2\ns_add_u32 s23, s23, s3\ns_lshl_b32 s23, s23, 13\nv_lshlrev_b32 v2, 7, v1")
            e("s_and_b32 s44, s16, 3\ns_lshl_b32 s44, s44, 21\ns_add_u32 s44, s44, s23\ns_lshr_b32 s23, s16, 2\ns_xor_b32 s23, s23, 1\ns_lshl_b32 s23, s23, 20\ns_add_u32 s44, s44, s23")
            e("buffer_load_dword v20, v2, s[32:35], s44 offen")
            code_srd(k, 36, "p4_kernel", "p2_tab-p4_kernel")
            e("s_lshl_b32 s44, s3, 10\nbuffer_load_dword v21, v5, s[36:39], s44 offen\ns_add_u32 s44, s44, 4096\nbuffer_load_dword v22, v5, s[36:39], s44 offen")
            extra = 3
    e(f"{L('end')}:")
    e("s_endpgm")
    return k
```

```python
from common import *

WU, ZB0, ZU, TBL = 16384, 65536, 14336, 151552
OOB = 0x40000000
DZ = 4
import os
NG1 = int(os.environ.get('NG1', 5))
WO, WO2, XT, GBO = 32768, 0, 15360, 160768


def build(diag=False):
    k = Kern("p4_kernel", 256, 512, TBL + 12288, vgpr=216, sgpr=96 if diag else 64)
    k.diag = diag
    e = k.e
    L = k.lab
    ts_begin(k)
    e(f"s_cmp_ge_u32 s2, 256\ns_cbranch_scc1 {L('end')}")
    e(f"s_load_dwordx4 s[4:7], s[0:1], {KA_WSP}")
    e(f"s_load_dwordx2 s[10:11], s[0:1], {KA_WS}")
    e(f"s_load_dwordx2 s[8:9], s[0:1], {KA_OUT}")
    e("v_and_b32 v1, 63, v0\nv_lshrrev_b32 v2, 6, v0\nv_readfirstlane_b32 s3, v2")
    e("s_and_b32 s16, s2, 7\ns_lshr_b32 s17, s2, 3")
    e("s_and_b32 s18, s16, 3\ns_lshl_b32 s18, s18, 3\ns_and_b32 s19, s17, 7\ns_add_u32 s18, s18, s19")
    e("s_lshr_b32 s19, s16, 2\ns_lshl_b32 s19, s19, 2\ns_lshr_b32 s17, s17, 3\ns_add_u32 s19, s19, s17")
    e("v_lshlrev_b32 v5, 4, v1")
    e("s_and_b32 s16, s3, 1\ns_bfe_u32 s17, s3, 0x10001")
    e(f"s_cmp_ge_u32 s3, 4\ns_cbranch_scc1 {L('loader')}")

    e("s_lshl_b32 s23, s3, 12")
    e("s_waitcnt lgkmcnt(0)")
    ts(k, 1)
    srd(k, 32, 10, WS_STATS, SZ_STATS)
    STV = 96
    for a in range(4):
        e(f"buffer_load_dwordx4 v[{STV+4*a}:{STV+4*a+3}], v5, s[32:35], s23 offen offset:{1024*a}")
    srd(k, 36, 10, WS_Z1P, SZ_Z1P)
    srd(k, 40, 6, 0, 4096)
    e("v_and_b32 v2, 15, v1\nv_lshrrev_b32 v3, 4, v1")
    e("v_lshrrev_b32 v15, 2, v2\nv_and_b32 v16, 3, v2")
    e("v_lshl_add_u32 v18, v15, 3, v16")
    Z1, BS = 192, 206
    e("s_lshl_b32 s46, s18, 1\ns_add_u32 s46, s46, s16\ns_lshl_b32 s47, s46, 3\ns_add_u32 s47, s47, s19\ns_mul_i32 s47, s47, 7168")
    e("s_lshl_b32 s44, s17, 3\nv_add_u32 v17, s44, v5\ns_add_u32 s44, s47, 4096")
    for j in range(7):
        so, off = ("s47", 1024 * j) if j < 4 else ("s44", 1024 * (j - 4))
        e(f"buffer_load_dwordx2 v[{Z1+2*j}:{Z1+2*j+1}], v17, s[36:39], {so} offen offset:{off}")
    e("s_lshl_b32 s46, s46, 6\ns_lshl_b32 s45, s17, 3\ns_add_u32 s46, s46, s45\nv_lshlrev_b32 v17, 1, v18")
    e(f"buffer_load_ushort v{BS}, v17, s[40:43], s46 offen")
    e("v_lshrrev_b32 v17, 1, v16\nv_lshlrev_b32 v17, 2, v17\nv_and_b32 v19, 2, v15\nv_or_b32 v17, v17, v19")
    e("v_xor_b32 v17, v17, v3\nv_lshlrev_b32 v17, 4, v17\nv_lshl_add_u32 v8, v18, 7, v17")
    e("s_lshl_b32 s44, s17, 13\ns_lshl_b32 s45, s16, 12\ns_add_u32 s44, s44, s45\ns_lshl_b32 s45, s17, 9\ns_add_u32 s44, s44, s45")
    e("v_add_u32 v8, s44, v8\nv_xor_b32 v9, 64, v8\nv_xor_b32 v10, 512, v8\nv_xor_b32 v11, 512, v9")
    e(f"s_mul_i32 s44, s17, 7168\ns_add_u32 s44, s44, {ZB0}\nv_add_u32 v12, s44, v5")
    e(f"s_lshl_b32 s44, s17, 11\ns_add_u32 s44, s44, {TBL+8192}\nv_lshl_add_u32 v14, v3, 4, s44")
    e(f"s_lshl_b32 s44, s17, 12\ns_add_u32 s44, s44, {TBL}\nv_lshl_add_u32 v13, v18, 2, s44")
    e(f"s_lshl_b32 s44, s3, 11\ns_add_u32 s44, s44, {TBL}\nv_lshl_add_u32 v6, v1, 3, s44")
    e(f"s_lshl_b32 s44, s3, 10\ns_add_u32 s44, s44, {TBL+8192}\nv_lshl_add_u32 v7, v1, 2, s44")
    e("v_and_b32 v19, 1, v2\nv_mov_b32 v20, 0xffff\nv_lshlrev_b32 v19, 4, v19\nv_lshlrev_b32 v20, v19, v20")
    e("v_cmp_eq_u32 vcc, v15, v3\nv_cndmask_b32 v20, 0, v20, vcc")
    e("v_cmp_gt_u32 vcc, 2, v16\nv_cndmask_b32 v21, v20, 0, vcc\nv_cndmask_b32 v20, 0, v20, vcc")
    ACC = lambda s_, j: 32 + 32 * s_ + 4 * j
    ZB = [96, 128]
    RAW, RRV, DG, SO, WP = 160, 22, 24, 168, 184
    e(f"v_mov_b32 v16, {fhex(1e-5)}")
    for i in range(64):
        e(f"v_mov_b32 v{32+i}, 0")
    e("s_waitcnt vmcnt(8)")
    ts(k, 2)
    for a in range(4):
        for h in range(2):
            s1, s2 = STV + 4 * a + 2 * h, STV + 4 * a + 2 * h + 1
            e(f"v_mul_f32 v{s1}, {fhex(-1/864)}, v{s1}")
            e(f"v_fmamk_f32 v{s2}, v{s2}, {fhex(1/864)}, v16")
            e(f"v_fma_f32 v{s2}, -v{s1}, v{s1}, v{s2}")
            e(f"v_rsq_f32 v{s2}, v{s2}")
        b = STV + 4 * a
        e(f"v_cvt_pk_bf16_f32 v{b}, v{b}, v{b+2}")
        e(f"v_cvt_pk_bf16_f32 v{b+2}, v{b+1}, v{b+1}")
        e(f"v_cvt_pk_bf16_f32 v{b+3}, v{b+3}, v{b+3}")
        e(f"ds_write_b64 v6, v[{b+2}:{b+3}] offset:{512*a}")
        e(f"ds_write_b32 v7, v{b} offset:{256*a}")
    e(f"v_mov_b32 v{DG+2}, 0\nv_mov_b32 v{DG+3}, 0")
    e("s_waitcnt lgkmcnt(0)")
    ts(k, 3)
    WPB = [184, 208]

    def period(par, do_main=True, do_scale=True, do_z=True, tail=()):
        rd = []
        for s_ in range(2):
            rd.append(f"ds_read_b128 v[{RAW+4*s_}:{RAW+4*s_+3}], v{8+2*s_+par}")
        rd.append(f"ds_read2_b32 v[{RRV}:{RRV+1}], v13 offset0:{32*par} offset1:{32*par+4}")
        b = ZB[1 - par]
        if do_z:
            for j in range(7):
                rd.append(f"ds_read_b128 v[{b+4*j}:{b+4*j+3}], v12 offset:{par*ZU + j*1024}")
            rd.append(f"ds_read_b128 v[{b+28}:{b+31}], v14 offset:{par*64}")
        main = mains(par) if do_main else []
        cv = [f"v_cvt_pk_bf16_f32 v{WPB[1-par]+i}, v{SO+2*i}, v{SO+2*i+1}" for i in range(8)] if do_scale else []
        cv += list(tail)
        ands = [f"v_and_b32 v{DG}, v{RRV}, v20", f"v_and_b32 v{DG+1}, v{RRV}, v21",
                f"v_and_b32 v{DG+4}, v{RRV+1}, v20", f"v_and_b32 v{DG+5}, v{RRV+1}, v21"]
        zr = rd[3:]
        if do_scale:
            for s_ in range(2):
                for h in range(2):
                    o = SO + 8 * s_ + 4 * h
                    e(f"v_mfma_f32_16x16x32_bf16 v[{o}:{o+3}], v[{DG+2*h}:{DG+2*h+3}], v[{RAW+4*s_}:{RAW+4*s_+3}], 0")
                    if zr:
                        e(zr.pop(0))
        rest = rd[:3] + zr
        fill = cv + ["s_waitcnt lgkmcnt(0)"] + ands
        for n, m in enumerate(main):
            e(m)
            if rest:
                e(rest.pop(0))
            else:
                c = 0
                while fill and c < 2:
                    x = fill.pop(0)
                    e(x)
                    c += 0.5 if x.startswith("s_") else 1
        for x in rest + fill:
            e(x)

    def mains(par):
        b = ZB[par]
        out = []
        for j in range(8):
            for s_ in range(2):
                a = ACC(s_, j)
                out.append(f"v_mfma_f32_16x16x32_bf16 v[{a}:{a+3}], v[{b+4*j}:{b+4*j+3}], v[{WPB[par]+4*s_}:{WPB[par]+4*s_+3}], v[{a}:{a+3}]")
        return out

    def advance():
        t = [f"v_add_u32 v{r}, s50, v{r}" for r in (8, 9, 10, 11)]
        t += ["v_add_u32 v12, s51, v12", "v_add_u32 v13, 256, v13", "v_add_u32 v14, 128, v14"]
        return t

    def deltas():
        return (f"s_add_u32 s48, s48, 1\ns_and_b32 s44, s48, 3\ns_cmp_eq_u32 s44, 0\ns_cselect_b32 s50, {-3*WU}, s52\n"
                f"s_add_u32 s49, s49, 1\ns_cmp_eq_u32 s49, 3\ns_cselect_b32 s51, {-4*ZU}, s53\ns_cselect_b32 s49, 0, s49\n"
                "s_cmp_lt_u32 s48, 17").split("\n")

    e(f"s_mov_b32 s48, 0\ns_mov_b32 s49, 0\ns_mov_b32 s52, {WU}\ns_mov_b32 s53, {2*ZU}")
    e("v_subrev_u32 v14, 64, v14")
    e("s_barrier")
    period(0, do_main=False, do_scale=False, do_z=False, tail=deltas())
    e("s_barrier")
    period(1, do_main=False, tail=advance())
    ts(k, 4)
    e(f"{L('cloop')}:")
    e("s_barrier")
    period(0, tail=deltas())
    e("s_barrier")
    period(1, tail=advance())
    e(f"s_cbranch_scc1 {L('cloop')}")
    ts(k, 6)
    e("s_xor_b32 s44, s3, 2\ns_lshl_b32 s44, s44, 13\nv_add_u32 v8, s44, v5\nv_lshl_add_u32 v10, v1, 2, s44")
    for j in range(7):
        a = ACC(1, j)
        e(f"ds_write_b128 v8, v[{a}:{a+3}] offset:{1024*j}")
    e(f"ds_write_b32 v10, v{ACC(1, 7)} offset:7168")
    e("s_lshl_b32 s44, s3, 13\nv_add_u32 v8, s44, v5\nv_lshl_add_u32 v10, v1, 2, s44")
    srd(k, 24, 10, WS_A5P, SZ_A5P)
    e("s_lshl_b32 s20, s18, 2\ns_lshl_b32 s21, s16, 1\ns_add_u32 s20, s20, s21\ns_add_u32 s20, s20, s17\ns_mul_i32 s20, s20, 28")
    e("s_lshr_b32 s21, s19, 1\ns_mul_i32 s21, s21, 7\ns_add_u32 s20, s20, s21\ns_lshl_b32 s20, s20, 10")
    e("s_and_b32 s21, s19, 1\ns_mul_i32 s22, s21, 3072\ns_add_u32 s22, s22, s20\ns_add_u32 s20, s20, 6144")
    e("s_lshl_b32 s23, s21, 3\nv_add_u32 v6, s23, v5")
    e("s_cmp_eq_u32 s21, 1\ns_cselect_b32 s41, 0, -1\ns_mov_b32 s40, -1")
    U = 128
    e("s_waitcnt vmcnt(0)")
    e(f"v_lshlrev_b32 v{BS}, 16, v{BS}\nv_add_f32 v{BS}, v{BS}, v{ACC(0, 7)}")
    for j in range(7):
        for h in range(2):
            e(f"v_lshlrev_b32 v{U+4*j+2*h}, 16, v{Z1+2*j+h}\nv_and_b32 v{U+4*j+2*h+1}, 0xffff0000, v{Z1+2*j+h}")
    e("s_waitcnt lgkmcnt(0)\ns_barrier")
    ts(k, 7)
    P = 96
    e("ds_read_b32 v20, v10 offset:7168")
    for j in range(7):
        e(f"ds_read_b128 v[{P+4*j}:{P+4*j+3}], v8 offset:{1024*j}")
    e(f"s_waitcnt lgkmcnt(7)\nv_add_f32 v{BS}, v{BS}, v20")
    for j in range(7):
        for i in range(4):
            e(f"v_add_f32 v{ACC(0, j)+i}, v{ACC(0, j)+i}, v{BS}")
    O = 64
    for j in range(7):
        e(f"s_waitcnt lgkmcnt({6-j})" if j < 2 else ("s_waitcnt lgkmcnt(0)\ns_barrier" if j == 2 else ""))
        a = ACC(0, j)
        for i in range(4):
            e(f"v_add_f32 v{a+i}, v{a+i}, v{P+4*j+i}")
        for i in range(4):
            e(f"v_mul_f32 v{a+i}, v{a+i}, v{U+4*j+i}")
        for h in range(2):
            e(f"v_cvt_pk_bf16_f32 v{O+2*j+h}, v{a+2*h}, v{a+2*h+1}")
        if j % 2 == 1:
            e(f"buffer_store_dwordx4 v[{O+2*j-2}:{O+2*j+1}], v5, s[24:27], s22 offen offset:{1024*(j//2)} sc0 sc1")
    for h in range(2):
        e(f"v_cndmask_b32 v{O+12+h}, 0, v{O+12+h}, s[40:41]")
    e(f"buffer_store_dwordx2 v[{O+12}:{O+13}], v6, s[24:27], s20 offen sc0 sc1")
    ts(k, 8)
    e("s_lshl_b32 s21, s18, 2\ns_add_u32 s21, s21, s3\ns_mul_i32 s21, s21, 28672")
    e(f"v_add_u32 v6, {WO}, v5\nv_add_u32 v7, {WO+61440}, v5\nv_add_u32 v8, {WO+122880}, v5")
    e("s_lshr_b32 s44, s3, 1\ns_lshl_b32 s44, s44, 5\ns_and_b32 s45, s3, 1\ns_lshl_b32 s45, s45, 2\ns_add_u32 s44, s44, s45")
    e(f"s_mul_i32 s44, s44, 160\ns_add_u32 s44, s44, {XT}")
    e("v_mul_u32_u24 v10, 160, v18\nv_lshl_add_u32 v10, v3, 3, v10\nv_add_u32 v10, s44, v10")
    e(f"v_lshlrev_b32 v9, 4, v3\nv_add_u32 v9, {GBO}, v9")
    srd(k, 36, 10, WS_FLAG, SZ_FLAG)
    e("s_lshl_b32 s46, s18, 8\nv_mov_b32 v14, s46\nv_mov_b32 v15, 1")
    e("s_waitcnt vmcnt(0)\ns_barrier")
    ts(k, 9)
    e(f"s_cmp_lg_u32 s3, 0\ns_cbranch_scc1 {L('nopoll')}")
    e("s_mov_b32 s45, 0\ns_mov_b64 exec, 1\nbuffer_atomic_add v15, v14, s[36:39], 0 offen sc1")
    e(f"{L('poll')}:")
    e("buffer_load_dword v16, v14, s[36:39], 0 offen sc0 sc1\ns_add_u32 s45, s45, 1\ns_waitcnt vmcnt(0)")
    e(f"v_readfirstlane_b32 s46, v16\ns_cmp_ge_u32 s46, 8\ns_cbranch_scc1 {L('pdone')}")
    e(f"s_cmp_lt_u32 s45, 0x400000\ns_cbranch_scc1 {L('poll')}")
    e(f"{L('pdone')}:")
    e("s_mov_b64 exec, -1")
    e(f"{L('nopoll')}:")
    e("s_barrier")
    ts(k, 10)
    AF, BF, AC = 32, 144, 12

    def breads(kap):
        b = BF + 20 * (kap % 3)
        if kap < 25:
            base, off = 6 + kap // 12, (kap % 12) * 5120
        else:
            base, off = 5, WO2 + (kap - 25) * 5120
        return [f"ds_read_b128 v[{b+4*j}:{b+4*j+3}], v{base} offset:{off + 1024*j}" for j in range(5)]

    for kap in range(28):
        if kap % 4 == 0:
            e(f"s_add_u32 s23, s21, {kap*1024}")
        e(f"buffer_load_dwordx4 v[{AF+4*kap}:{AF+4*kap+3}], v5, s[24:27], s23 offen offset:{1024*(kap % 4)} sc1")
        if kap == 1:
            for x in breads(0) + breads(1):
                e(x)
    for kap in range(28):
        e(f"s_waitcnt vmcnt({27-kap}) lgkmcnt({5 if kap < 27 else 0})")
        rd = breads(kap + 2) if kap + 2 < 28 else []
        b = BF + 20 * (kap % 3)
        for j in range(5):
            a = AC + 4 * j
            src = "0" if kap == 0 else f"v[{a}:{a+3}]"
            for _ in range(2):
                if rd:
                    e(rd.pop(0))
            e(f"v_mfma_f32_16x16x32_bf16 v[{a}:{a+3}], v[{b+4*j}:{b+4*j+3}], v[{AF+4*kap}:{AF+4*kap+3}], {src}")
    for j in range(5):
        e(f"ds_read_b128 v[{AF+4*j}:{AF+4*j+3}], v9 offset:{64*j}")
        e(f"ds_read_b64 v[{AF+20+2*j}:{AF+21+2*j}], v10 offset:{32*j}")
    for j in range(5):
        e(f"s_waitcnt lgkmcnt({2*(4-j) + j})")
        for h in range(2):
            e(f"v_lshlrev_b32 v{64+2*h}, 16, v{AF+20+2*j+h}\nv_and_b32 v{65+2*h}, 0xffff0000, v{AF+20+2*j+h}")
        for i in range(4):
            e(f"v_fma_f32 v{AC+4*j+i}, v{AC+4*j+i}, v{AF+4*j+i}, v{64+i}")
        for h in range(2):
            e(f"v_cvt_pk_bf16_f32 v{AC+4*j+h}, v{AC+4*j+2*h}, v{AC+4*j+2*h+1}")
        e(f"ds_write_b64 v10, v[{AC+4*j}:{AC+4*j+1}] offset:{32*j}")
    e("s_waitcnt lgkmcnt(0)\ns_barrier")
    ts_end(k, 3, 10, 100)
    e("s_endpgm")

    e(f"{L('loader')}:")
    e("v_lshrrev_b32 v2, 3, v1\nv_and_b32 v3, 7, v1\nv_bfe_u32 v4, v2, 1, 1\nv_lshlrev_b32 v4, 2, v4")
    e("v_xor_b32 v3, v3, v4\nv_lshlrev_b32 v2, 12, v2\nv_lshl_add_u32 v10, v3, 4, v2")
    e(f"v_add_u32 v11, {32768-1024}, v10\nv_xor_b32 v12, 32, v10\nv_add_u32 v12, {2*(32768-1024)}, v12\nv_add_u32 v13, {32768-1024}, v12")
    e("s_lshl_b32 s20, s18, 18\ns_lshl_b32 s21, s16, 17\ns_add_u32 s20, s20, s21\ns_lshl_b32 s21, s17, 11\ns_add_u32 s20, s20, s21")
    e("s_lshl_b32 s21, s19, 6\ns_lshl_b32 s22, s17, 5\ns_add_u32 s21, s21, s22\ns_add_u32 s21, s21, s16\ns_mul_i32 s21, s21, 7168")
    e("s_lshl_b32 s22, s17, 13\ns_lshl_b32 s23, s16, 12\ns_add_u32 s22, s22, s23")
    e(f"s_mul_i32 s23, s17, 7168\ns_add_u32 s44, s16, 1\ns_mul_i32 s44, s44, {ZU}\ns_add_u32 s23, s23, s44\ns_add_u32 s23, s23, {ZB0}")
    e(f"s_add_u32 s49, s23, {4*ZU}\ns_cmp_eq_u32 s16, 1\ns_cselect_b32 s44, {2*ZU}, 0\ns_sub_u32 s49, s49, s44")
    e(f"s_mov_b32 s53, {2*ZU}\ns_mov_b32 s45, 0\ns_mov_b32 s46, 0")
    e("s_waitcnt lgkmcnt(0)")
    srd(k, 24, 4, 0, S * 4096)
    srd(k, 28, 10, WS_Z2P, SZ_Z2P)

    def wunit():
        e("s_mov_b32 m0, s22")
        for i in range(4):
            e(f"buffer_load_dwordx4 v{10+i}, s[24:27], s20 offen offset:{1024*i} lds")
        e(f"s_add_u32 s20, s20, 128\ns_add_u32 s22, s22, {WU}\ns_and_b32 s22, s22, 0xffff")

    def zunit():
        e("s_mov_b32 m0, s23\ns_add_u32 s47, s21, 4096")
        for j in range(4):
            e(f"buffer_load_dwordx4 v5, s[28:31], s21 offen offset:{1024*j} lds")
        e("s_add_u32 m0, s23, 4096")
        for j in range(3):
            e(f"buffer_load_dwordx4 v5, s[28:31], s47 offen offset:{1024*j} lds")
        e(f"s_add_u32 s21, s21, 14336\ns_cmp_eq_u32 s23, s49\ns_cselect_b32 s44, {-4*ZU}, s53\ns_add_u32 s23, s23, s44")

    def sched(h, p):
        if p % 2 == h:
            kap = p + DZ
            return ("z", kap) if 0 <= kap < 32 else None
        u = (p - (p % 2) + DZ + 2) // 2
        return ("w", u) if 0 <= u < 16 else None

    def wo_setup():
        srd(k, 24, 10, WS_WOUTP, SZ_WOUTP)
        e(f"s_sub_u32 s22, s3, 4\ns_mul_i32 s22, s22, 5120\ns_mul_i32 s20, s19, 143360\ns_add_u32 s21, s20, s22\ns_add_u32 s22, s22, {WO}")

    def wo_round(n0):
        e(f"s_add_u32 s23, s21, {1024*n0}\ns_add_u32 m0, s22, {1024*n0}")
        for i in range(4):
            e(f"buffer_load_dwordx4 v5, s[24:27], s23 offen offset:{1024*i} lds")
        e(f"s_add_u32 s23, s21, {1024*n0+4096}\ns_add_u32 m0, s22, {1024*n0+4096}")
        e("buffer_load_dwordx4 v5, s[24:27], s23 offen lds")

    def loader(h):
        q = []

        def issue(p):
            un = sched(h, p)
            if un:
                (zunit if un[0] == "z" else wunit)()
                q.extend([p] * (7 if un[0] == "z" else 4))

        def wait(p):
            return sum(1 for t in q if t > p - DZ + 2)

        for p in range(-DZ - 3, -2):
            issue(p)
        e(f"s_waitcnt vmcnt({wait(-3)})")
        P1 = 32 - DZ - 2
        e("s_mov_b32 s45, 0")
        e(f"{L('ll%d' % h)}:")
        ws_ = set()
        for p in range(-2, P1):
            save = k.L
            if p >= 0:
                k.L = []
            e("s_barrier")
            issue(p)
            ws_.add((p % 2, wait(p)))
            if p % 2 == 1:
                e(f"s_add_u32 s45, s45, 1\ns_cmp_lt_u32 s45, {(P1+2)//2}")
            e(f"s_waitcnt vmcnt({wait(p)})")
            k.L = save
        assert len(ws_) == 2, ws_
        e(f"s_cbranch_scc1 {L('ll%d' % h)}")
        for p in range(P1, 32):
            if p == 28:
                wo_setup()
            e("s_barrier")
            issue(p)
            if p >= 28:
                wo_round((74, 94, 0, 20)[p - 28])
                q.extend([99] * 5)
            if p < 31 and any(p - DZ + 2 >= t > p - DZ + 1 for t in q):
                e(f"s_waitcnt vmcnt({wait(p)})")
        e(f"s_branch {L('ltail')}")

    e(f"s_cmp_eq_u32 s16, 1\ns_cbranch_scc1 {L('lh1')}")
    loader(0)
    e(f"{L('lh1')}:")
    loader(1)
    e(f"{L('ltail')}:")
    e("s_sub_u32 s3, s3, 4")
    srd(k, 32, 10, WS_X1, SZ_X1)
    srd(k, 40, 8, 0, S * 1280)
    srd(k, 28, 10, WS_MOD, SZ_MOD)
    e("s_lshl_b32 s23, s3, 6\nv_add_u32 v2, s23, v1")
    for i in range(3):
        e(f"v_add_u32 v3, {256*i}, v2\nv_mul_u32_u24 v4, 6554, v3\nv_lshrrev_b32 v4, 16, v4")
        e(f"v_mul_u32_u24 v6, 10, v4\nv_sub_u32 v3, v3, v6\nv_mul_u32_u24 v4, 1280, v4\nv_lshl_add_u32 v{10+i}, v3, 4, v4")
    e("s_mul_i32 s44, s18, 81920\ns_mul_i32 s45, s19, 160\ns_add_u32 s44, s44, s45")
    e(f"s_lshl_b32 s47, s3, 10\ns_add_u32 s47, s47, {XT}\nv_add_u32 v13, s47, v5")
    e("s_barrier")
    wo_round(40)
    e("s_barrier")
    wo_round(54)
    wo_round(105)
    e(f"s_cmp_lg_u32 s3, 3\ns_cbranch_scc1 {L('gdone')}")
    e(f"s_mul_i32 s45, s19, 320\ns_add_u32 s45, s45, {5*2560}")
    e(f"s_mov_b32 m0, {GBO}\ns_mov_b64 exec, 0xfffff\nbuffer_load_dwordx4 v5, s[28:31], s45 offen lds\ns_mov_b64 exec, -1")
    e(f"{L('gdone')}:")
    e(f"s_lshl_b32 s22, s3, 12\ns_add_u32 s23, s20, {25*5120}\ns_add_u32 s23, s23, s22\ns_add_u32 m0, s22, {WO2}")
    for i in range(3):
        e(f"buffer_load_dwordx4 v5, s[24:27], s23 offen offset:{1024*i} lds")
    e(f"s_cmp_eq_u32 s3, 3\ns_cbranch_scc1 {L('no4')}")
    e("buffer_load_dwordx4 v5, s[24:27], s23 offen offset:3072 lds")
    e(f"{L('no4')}:")
    for i in range(2):
        e(f"s_add_u32 m0, s47, {4096*i}\nbuffer_load_dwordx4 v{10+i}, s[32:35], s44 offen lds")
    e(f"s_cmp_ge_u32 s3, 2\ns_cbranch_scc1 {L('nox')}")
    e("s_add_u32 m0, s47, 8192\nbuffer_load_dwordx4 v12, s[32:35], s44 offen lds")
    e(f"{L('nox')}:")
    e("s_barrier\ns_waitcnt vmcnt(0)\ns_barrier\ns_barrier")
    for i in range(3):
        e(f"ds_read_b128 v[{16+4*i}:{19+4*i}], v13 offset:{4096*i}")
    for i in range(2):
        e(f"s_waitcnt lgkmcnt({2-i})\nbuffer_store_dwordx4 v[{16+4*i}:{19+4*i}], v{10+i}, s[40:43], s44 offen")
    e(f"s_cmp_ge_u32 s3, 2\ns_cbranch_scc1 {L('end')}")
    e("s_waitcnt lgkmcnt(0)\nbuffer_store_dwordx4 v[24:27], v12, s[40:43], s44 offen")
    e(f"{L('end')}:")
    e("s_endpgm")
    k.waits = None
    return k
```

```python
from common import *

SL, XT, GBO = 36864, 147456, 157696
import os
DIST = int(os.environ.get('P5D', 2))


def build(diag=False):
    k = Kern("p5_kernel", 256, 512, GBO + 1024, vgpr=128, sgpr=96 if diag else 64)
    k.diag = diag
    e = k.e
    L = k.lab
    ts_begin(k)
    e(f"s_cmp_ge_u32 s2, 256\ns_cbranch_scc1 {L('end')}")
    e(f"s_load_dwordx2 s[4:5], s[0:1], {KA_OUT}")
    e(f"s_load_dwordx2 s[10:11], s[0:1], {KA_WS}")
    e("v_and_b32 v1, 63, v0\nv_lshrrev_b32 v2, 6, v0\nv_readfirstlane_b32 s3, v2")
    e("s_and_b32 s16, s2, 7\ns_lshr_b32 s17, s2, 3")
    e("s_and_b32 s18, s16, 3\ns_lshl_b32 s18, s18, 3\ns_lshr_b32 s19, s16, 2\ns_lshl_b32 s19, s19, 2\ns_add_u32 s18, s18, s19")
    e("s_lshr_b32 s19, s17, 3\ns_add_u32 s18, s18, s19")
    e("s_and_b32 s19, s17, 7")
    e("v_lshlrev_b32 v5, 4, v1")
    e(f"s_cmp_lt_u32 s3, 4\ns_cbranch_scc1 {L('loader')}")

    e("s_sub_u32 s3, s3, 4")
    e(f"v_add_u32 v6, {2*SL}, v5\ns_lshl_b32 s23, s3, 12\ns_add_u32 s23, s23, 20480\nv_add_u32 v7, s23, v5\nv_add_u32 v8, {2*SL}, v7")
    e("v_and_b32 v2, 15, v1\nv_lshrrev_b32 v3, 4, v1")
    e("v_lshrrev_b32 v10, 2, v2\nv_and_b32 v11, 3, v2\nv_lshl_add_u32 v10, v10, 3, v11")
    e("s_lshr_b32 s44, s3, 1\ns_lshl_b32 s44, s44, 5\ns_and_b32 s45, s3, 1\ns_lshl_b32 s45, s45, 2\ns_add_u32 s44, s44, s45")
    e(f"s_mul_i32 s44, s44, 160\ns_add_u32 s44, s44, {XT}")
    e("v_mul_u32_u24 v10, 160, v10\nv_lshl_add_u32 v10, v3, 3, v10\nv_add_u32 v10, s44, v10")
    e(f"v_lshlrev_b32 v9, 4, v3\nv_add_u32 v9, {GBO}, v9")
    ts(k, 1)
    BF, AC = 32, 104

    def reads(kap):
        c, i = divmod(kap, 4)
        sl = c % 4
        off = (sl % 2) * SL
        b = BF + 24 * (kap % 3)
        out = [f"ds_read_b128 v[{b+20}:{b+23}], v{7 + sl//2} offset:{off + 1024*i}"]
        for j in range(5):
            out.append(f"ds_read_b128 v[{b+4*j}:{b+4*j+3}], v{5 + sl//2} offset:{off + 5120*i + 1024*j}")
        return out

    ts(k, 2)
    e("s_barrier")
    ts(k, 3)
    for x in reads(0) + reads(1):
        e(x)
    for kap in range(28):
        nxt = kap + 2
        if nxt < 28 and nxt % 4 == 0:
            e("s_waitcnt lgkmcnt(0)\ns_barrier")
            if nxt in (8, 16, 24):
                ts(k, 3 + nxt // 8)
        else:
            e(f"s_waitcnt lgkmcnt({6 if kap < 27 else 0})")
        rd = reads(nxt) if nxt < 28 else []
        b = BF + 24 * (kap % 3)
        for j in range(5):
            a = AC + 4 * j
            src = "0" if kap == 0 else f"v[{a}:{a+3}]"
            for _ in range(2):
                if rd:
                    e(rd.pop(0))
            e(f"v_mfma_f32_16x16x32_bf16 v[{a}:{a+3}], v[{b+4*j}:{b+4*j+3}], v[{b+20}:{b+23}], {src}")
    ts(k, 7)
    e("s_barrier")
    for j in range(5):
        e(f"ds_read_b128 v[{BF+4*j}:{BF+4*j+3}], v9 offset:{64*j}")
        e(f"ds_read_b64 v[{BF+20+2*j}:{BF+21+2*j}], v10 offset:{32*j}")
    for j in range(5):
        e(f"s_waitcnt lgkmcnt({2*(4-j) + j})")
        for h in range(2):
            e(f"v_lshlrev_b32 v{64+2*h}, 16, v{BF+20+2*j+h}\nv_and_b32 v{65+2*h}, 0xffff0000, v{BF+20+2*j+h}")
        for i in range(4):
            e(f"v_fma_f32 v{AC+4*j+i}, v{AC+4*j+i}, v{BF+4*j+i}, v{64+i}")
        for h in range(2):
            e(f"v_cvt_pk_bf16_f32 v{AC+4*j+h}, v{AC+4*j+2*h}, v{AC+4*j+2*h+1}")
        e(f"ds_write_b64 v10, v[{AC+4*j}:{AC+4*j+1}] offset:{32*j}")
    e("s_waitcnt lgkmcnt(0)\ns_barrier")
    ts(k, 9)
    ts_end(k, 4, 10, 124)
    e("s_endpgm")

    e(f"{L('loader')}:")
    e("s_mul_i32 s20, s19, 28\ns_add_u32 s20, s20, s3\ns_mul_i32 s20, s20, 5120")
    e("s_mul_i32 s22, s3, 5120")
    e("s_lshl_b32 s21, s18, 2\ns_add_u32 s21, s21, s3\ns_mul_i32 s21, s21, 28672")
    e("s_lshl_b32 s46, s3, 12\ns_add_u32 s46, s46, 20480")
    e("s_waitcnt lgkmcnt(0)")
    srd(k, 24, 10, WS_WOUTP, SZ_WOUTP)
    srd(k, 28, 10, WS_A5P, SZ_A5P)

    def chunk(c):
        sl = (c % 4) * SL
        e(f"s_add_u32 s23, s21, {c*4096}\ns_add_u32 m0, s46, {sl}")
        for i in range(4):
            e(f"buffer_load_dwordx4 v5, s[28:31], s23 offen offset:{1024*i} lds")
        e(f"s_add_u32 s23, s20, {c*20480}\ns_add_u32 m0, s22, {sl}")
        for j in range(4):
            e(f"buffer_load_dwordx4 v5, s[24:27], s23 offen offset:{1024*j} lds")
        e(f"s_add_u32 s23, s20, {c*20480+4096}\ns_add_u32 m0, s22, {sl+4096}")
        e("buffer_load_dwordx4 v5, s[24:27], s23 offen lds")

    for c in range(DIST):
        chunk(c)
    srd(k, 32, 10, WS_X1, SZ_X1)
    srd(k, 36, 10, WS_MOD, SZ_MOD)
    srd(k, 40, 4, 0, S * 1280)
    e("s_lshl_b32 s23, s3, 6\nv_add_u32 v2, s23, v1")
    for i in range(3):
        e(f"v_add_u32 v3, {256*i}, v2\nv_mul_u32_u24 v4, 6554, v3\nv_lshrrev_b32 v4, 16, v4")
        e(f"v_mul_u32_u24 v6, 10, v4\nv_sub_u32 v3, v3, v6\nv_mul_u32_u24 v4, 1280, v4\nv_lshl_add_u32 v{10+i}, v3, 4, v4")
    e("s_mul_i32 s44, s18, 81920\ns_mul_i32 s45, s19, 160\ns_add_u32 s44, s44, s45")
    e(f"s_mul_i32 s45, s19, 320\ns_add_u32 s45, s45, {5*2560}")
    e(f"s_lshl_b32 s47, s3, 10\ns_add_u32 s47, s47, {XT}\nv_add_u32 v13, s47, v5")
    last = DIST - 1
    for c in range(7):
        e(f"s_waitcnt vmcnt({9*(last-c)})\ns_barrier")
        hi = min(6, c + DIST)
        while last < hi:
            last += 1
            chunk(last)
            if last == 6:
                for i in range(2):
                    e(f"s_add_u32 m0, s47, {4096*i}\nbuffer_load_dwordx4 v{10+i}, s[32:35], s44 offen lds")
                e(f"s_cmp_ge_u32 s3, 2\ns_cbranch_scc1 {L('nox')}")
                e("s_add_u32 m0, s47, 8192\nbuffer_load_dwordx4 v12, s[32:35], s44 offen lds")
                e(f"{L('nox')}:")
                e(f"s_cmp_lg_u32 s3, 3\ns_cbranch_scc1 {L('nogb')}")
                e(f"s_mov_b32 m0, {GBO}\ns_mov_b64 exec, 0xfffff\nbuffer_load_dwordx4 v5, s[36:39], s45 offen lds\ns_mov_b64 exec, -1")
                e(f"{L('nogb')}:")
    e("s_waitcnt vmcnt(0)\ns_barrier\ns_barrier")
    for i in range(3):
        e(f"ds_read_b128 v[{16+4*i}:{19+4*i}], v13 offset:{4096*i}")
    for i in range(2):
        e(f"s_waitcnt lgkmcnt({2-i})\nbuffer_store_dwordx4 v[{16+4*i}:{19+4*i}], v{10+i}, s[40:43], s44 offen")
    e(f"s_cmp_ge_u32 s3, 2\ns_cbranch_scc1 {L('end')}")
    e("s_waitcnt lgkmcnt(0)\nbuffer_store_dwordx4 v[24:27], v12, s[40:43], s44 offen")
    e(f"{L('end')}:")
    e("s_endpgm")
    return k
```

```python
import sys
import k1, k2, k3, k4, k5, k45, os

HEADER = open("adaLN_cond__spectral_fnet__mixer_gmlp__prompt.s.ref").read().split("; Override launch")[0]


def make(diag=False):
    if os.environ.get("F45", "1") == "1":
        ks = [k1.build(diag), k2.build(diag), k3.build(diag), k45.build(diag)]
    else:
        ks = [k1.build(diag), k2.build(diag), k3.build(diag), k4.build(diag), k5.build(diag)]
    out = HEADER + "\n".join(k.launch_line() for k in ks) + "\n"
    out += '.amdgcn_target "amdgcn-amd-amdhsa--gfx950"\n.text\n'
    out += "\n".join(k.text() for k in ks) + "\n"
    out += k2.tables() + "\ncode_end:\n" + '.section .rodata,"a"\n' + "".join(k.desc() for k in ks)
    return out, ks


if __name__ == "__main__":
    diag = "dbg" if "dbg" in sys.argv else ("diag" in sys.argv)
    out, ks = make(diag)
    path = sys.argv[1]
    open(path, "w").write(out)
    print("P4 waits", ks[3].waits)
```

```python
from common import *
import numpy as np

TAB_FA, TAB_TW, TAB_FB, TAB_SZ = 0, 2048, 2048 + 5120, 2048 + 5120 + 9216


def bf16_bits(x):
    u = np.asarray(x, dtype=np.float32).view(np.uint32).astype(np.uint64)
    return ((u + 0x7FFF + ((u >> 16) & 1)) >> 16).astype(np.uint16)


def tables():
    fa = np.zeros((2, 64, 8))
    fb = np.zeros((3, 3, 64, 8))
    for l in range(64):
        m, g = l % 16, l // 16
        for jj in range(8):
            c = jj % 2
            for a in range(2):
                e1, cp, d1 = 8 * a + 2 * (m // 4) + (m % 4) // 2, m % 2, 4 * g + jj // 2
                th = 2 * np.pi * ((e1 * d1) % 16) / 16
                fa[a, l, jj] = [[np.cos(th), np.sin(th)], [-np.sin(th), np.cos(th)]][cp][c]
            for b in range(3):
                for ks in range(3):
                    e2, d2 = 16 * b + m, 16 * ks + 4 * g + jj // 2
                    ps = 2 * np.pi * ((e2 * d2) % 40) / 40
                    fb[b, ks, l, jj] = 0.0 if d2 >= 40 else (np.cos(ps) if c == 0 else np.sin(ps))
    tw = np.zeros((40, 16, 2), dtype=np.float32)
    for d2 in range(40):
        for e1 in range(16):
            th = 2 * np.pi * e1 * d2 / 640
            tw[d2, e1] = (np.cos(th), np.sin(th))
    raw = bf16_bits(fa).tobytes() + tw.tobytes() + bf16_bits(fb).tobytes()
    assert len(raw) == TAB_SZ
    w = np.frombuffer(raw, dtype=np.uint32)
    out = [".p2align 8", ".type p2_tab,@object", "p2_tab:"]
    for i in range(0, len(w), 8):
        out.append("  .long " + ",".join(f"0x{x:x}" for x in w[i:i + 8]))
    out.append(f".size p2_tab, {TAB_SZ}")
    return "\n".join(out)


def sprinkle(k, start, items, every):
    body, out, skip, n = k.L[start:], [], None, 0
    items = list(items)
    for line in body:
        t = line.strip()
        out.append(line)
        if t.startswith("s_cbranch"):
            skip = t.split()[1] + ":"
        elif skip and t == skip:
            skip = None
        n += 1
        if items and n >= every and skip is None:
            out += ["  " + x for x in items.pop(0).split("\n")]
            n = 0
    for it in items:
        out += ["  " + x for x in it.split("\n")]
    k.L[start:] = out


def wave_allsum(k, r, t):
    for m in ("quad_perm:[1,0,3,2]", "quad_perm:[2,3,0,1]", "row_half_mirror", "row_mirror"):
        k.e(f"v_add_f32_dpp v{r}, v{r}, v{r} {m} row_mask:0xf bank_mask:0xf")
    for sw in ("v_permlane16_swap_b32", "v_permlane32_swap_b32"):
        k.e(f"v_mov_b32 v{t}, v{r}")
        k.e(f"{sw} v{r}, v{t}")
        k.e(f"v_add_f32 v{r}, v{r}, v{t}")


def build(diag=False):
    HB, HJ = 0, 800 * 4
    TB, TJ, TE = HB + 8 * HJ, 3104, 192
    YB, YJ = 0, 772 * 4
    TABL = (TB + 5 * TJ + 255) // 256 * 256
    MODL = TABL + TAB_SZ
    VL = MODL + 16384
    assert VL % 256 == 0
    YM = VL + 24576
    PK = [VL, VL + 8192]
    k = Kern("p2_kernel", 256, 512, VL + 81920, vgpr=212, sgpr=96 if diag else 64)
    k.diag = diag
    e = k.e
    L = k.lab
    ts_begin(k)
    e(f"s_cmp_ge_u32 s2, 256\ns_cbranch_scc1 {L('end')}")
    e(f"s_load_dwordx2 s[4:5], s[0:1], {KA_X}")
    e(f"s_load_dwordx2 s[10:11], s[0:1], {KA_WS}")
    e(f"s_load_dwordx2 s[56:57], s[0:1], {KA_WOUT}")
    e(f"s_load_dwordx2 s[52:53], s[0:1], {KA_WIN}")
    e("s_getpc_b64 s[6:7]")
    e("s_add_u32 s6, s6, p2_tab@rel32@lo+4\ns_addc_u32 s7, s7, p2_tab@rel32@hi+12")
    e("v_and_b32 v1, 63, v0\nv_lshrrev_b32 v2, 6, v0\nv_readfirstlane_b32 s3, v2")
    e("s_and_b32 s14, s2, 7\ns_lshr_b32 s15, s2, 3")
    e("s_lshl_b32 s16, s14, 2\ns_lshr_b32 s18, s15, 3\ns_add_u32 s16, s16, s18")
    e("s_and_b32 s17, s15, 7")
    e("v_lshlrev_b32 v9, 4, v1")
    e("s_and_b32 s58, s14, 3\ns_mul_i32 s58, s58, 40\ns_lshr_b32 s22, s14, 2\ns_mul_i32 s22, s22, 80")
    e("s_add_u32 s59, s58, s15\ns_add_u32 s58, s59, 32")
    for r in (59, 58):
        e(f"s_cmp_ge_u32 s{r}, 80\ns_cselect_b32 s23, 80, 0\ns_add_u32 s{r}, s{r}, s23\ns_add_u32 s{r}, s{r}, s22")
    e(f"s_mul_i32 s60, s3, 10240\ns_mul_i32 s20, s16, 81920\ns_add_u32 s32, s20, s60\ns_add_u32 s60, s60, {VL}")
    e("s_add_u32 s33, s32, 4096\ns_add_u32 s34, s32, 8192\ns_add_u32 s61, s60, 4096\ns_add_u32 s62, s60, 8192")
    e(f"s_lshl_b32 s63, s3, 12\ns_and_b32 s35, s63, 0x3000\ns_add_u32 s63, s63, {TABL}")
    e("s_waitcnt lgkmcnt(0)")
    ts(k, 1)
    srd(k, 24, 10, WS_V, SZ_V)
    e("s_mov_b32 m0, s60\nbuffer_load_dwordx4 v9, s[24:27], s32 offen lds")
    e(f"s_cmp_lt_u32 s3, 4\ns_cselect_b32 s28, s6, s10\ns_cselect_b32 s29, s7, s11\ns_movk_i32 s30, {SZ_MOD}\ns_cselect_b32 s30, {TAB_SZ}, s30\ns_mov_b32 s31, 0x20000")
    dma = []
    for i in range(1, 10):
        dma.append((f"s_mov_b32 m0, s{60 + i//4}\n" if i % 4 == 0 else "") + f"buffer_load_dwordx4 v9, s[24:27], s{32 + i//4} offen offset:{1024*(i % 4)} lds")
    for i in range(4):
        dma.append(("s_mov_b32 m0, s63\n" if i == 0 else "") + f"buffer_load_dwordx4 v9, s[28:31], s35 offen offset:{1024*i} lds")
    mark0 = len(k.L)
    srd(k, 36, 4, 0, S * 1280)
    e("s_lshl_b32 s18, s17, 8\ns_add_u32 s18, s18, s16")
    e("s_mov_b32 s19, 1.0\ns_mov_b32 s20, 1.0")
    e(f"s_mov_b32 s21, {fhex(-0.25)}")
    e(f"s_cmp_lg_u32 s16, 0\ns_cbranch_scc1 {L('par')}")
    e("s_cmp_ge_u32 s17, 4")
    e("s_cselect_b32 s19, 0, 1.0\ns_cselect_b32 s20, 1.0, 0\ns_cselect_b32 s22, 992, 0")
    e("s_sub_u32 s18, s18, s22\ns_mov_b32 s21, 0")
    e(f"{L('par')}:")
    e("s_and_b32 s44, s3, 3\ns_lshl_b32 s42, s44, 6\ns_add_u32 s42, s42, s18")
    e("s_lshr_b32 s43, s3, 2\ns_sub_u32 s45, 2048, s42")
    e("s_cmp_eq_u32 s43, 1\ns_cselect_b32 s42, s45, s42")
    e("s_cmp_eq_u32 s42, 2048")
    e("s_cselect_b32 s42, 1024, s42\ns_cselect_b32 s43, 0, s43\ns_cselect_b32 s44, 4, s44")
    e("s_mul_i32 s45, s42, 1280")
    CA, SA, FA, TW, FB, X, GA, CB, SB = 20, 25, 32, 40, 56, 80, 86, 96, 106
    e("v_lshlrev_b32 v126, 3, v1\nv_lshlrev_b32 v125, 2, v1")
    dma.append(f"buffer_load_dwordx2 v[{X}:{X+1}], v126, s[36:39], s45 offen")
    dma.append(f"buffer_load_dwordx2 v[{X+2}:{X+3}], v126, s[36:39], s45 offen offset:512")
    dma.append(f"buffer_load_dword v{X+4}, v125, s[36:39], s45 offen offset:1024")
    e("v_and_b32 v10, 15, v1\nv_lshrrev_b32 v11, 4, v1")
    e("v_lshrrev_b32 v14, 2, v10\nv_and_b32 v15, 3, v10")
    e("s_lshl_b32 s22, s3, 3\nv_add_u32 v16, s22, v15\nv_add_u32 v17, 4, v16")
    e(f"s_cmp_lt_u32 s3, 5\ns_cbranch_scc1 {L('pa')}")
    e("s_sub_u32 s22, s3, 5\ns_lshl_b32 s22, s22, 4")
    e("v_mov_b32 v14, 4\nv_add_u32 v16, s22, v10\nv_min_u32 v16, 39, v16\nv_mov_b32 v17, v16")
    e(f"{L('pa')}:")
    RA, TA, TWA, FBA = 116, 118, 138, 204
    for r in range(2):
        e(f"v_lshlrev_b32 v18, 7, v{16+r}\nv_lshl_add_u32 v{TWA+r}, v11, 4, v18")
        e(f"v_mul_u32_u24 v18, {HJ}, v14\nv_mul_u32_u24 v19, 80, v{16+r}\nv_add_u32 v18, v18, v19")
        e(f"v_lshl_add_u32 v{RA+r}, v11, 4, v18")
        e(f"v_mul_u32_u24 v18, {TJ}, v14\nv_mul_u32_u24 v19, {2*TE}, v11\nv_add_u32 v18, v18, v19")
        e(f"v_lshl_add_u32 v{TA+r}, v{16+r}, 2, v18")
    RB, RBC, YA, YMA = 120, 122, 4, 208
    for r in range(2):
        e(f"s_add_u32 s22, s3, {8*r}\ns_min_u32 s22, s22, 14")
        e("s_mul_i32 s23, s22, 86\ns_lshr_b32 s23, s23, 8")
        e("s_mul_i32 s40, s23, 3\ns_sub_u32 s40, s22, s40")
        e(f"s_mul_i32 s41, s40, 3072\nv_add_u32 v{6+r}, s41, v9")
        e("s_lshl_b32 s41, s23, 2")
        e("v_lshrrev_b32 v2, 2, v10\nv_and_b32 v3, 3, v10\nv_add_u32 v3, s41, v3")
        e(f"s_cmp_lt_u32 s23, 4\ns_cbranch_scc1 {L('pb%d' % r)}")
        e("v_mov_b32 v2, 4\nv_mov_b32 v3, v10")
        e(f"{L('pb%d' % r)}:")
        e(f"v_lshlrev_b32 v19, 8, v11\nv_lshl_add_u32 v19, v3, 2, v19\ns_lshl_b32 s41, s40, 10\nv_add_u32 v19, s41, v19\nv_mul_u32_u24 v18, {YJ}, v2")
        e(f"v_add_u32 v{YA+r}, v18, v19\nv_sub_u32 v18, v18, v19\nv_add_u32 v{YMA+r}, {YM + 3072 - 192}, v18")
        e(f"v_mul_u32_u24 v2, {TJ}, v2\nv_mul_u32_u24 v3, {TE}, v3\nv_add_u32 v2, v2, v3")
        e(f"v_lshl_add_u32 v{RB+r}, v11, 4, v2")
        e(f"v_and_b32 v3, 1, v11\nv_lshl_add_u32 v{RBC+r}, v3, 4, v2")
    M, MF = 128, 144
    e("v_lshrrev_b32 v2, 1, v10\nv_and_b32 v3, 1, v10")
    e("v_lshlrev_b32 v12, 6, v2\nv_add_u32 v12, s18, v12")
    e("v_cmp_eq_u32 vcc, 4, v2\nv_mov_b32 v13, 1024\nv_cndmask_b32 v12, v12, v13, vcc")
    e(f"v_cvt_f32_u32 v12, v12\nv_mul_f32 v12, {fhex(1/2048)}, v12")
    e(f"v_cvt_f32_u32 v3, v3\nv_mul_f32 v3, {fhex(0.25)}, v3")
    e("v_lshlrev_b32 v13, 2, v11\nv_cvt_f32_u32 v13, v13\nv_fma_f32 v13, v12, v13, v3")
    MT = 152
    for jj in range(8):
        c = (jj % 4) + 16 * (jj // 4)
        e(f"v_fmamk_f32 v{MT+jj}, v12, {fhex(c)}, v13")
        e(f"v_add_f32 v{MT+8+jj}, s21, v{MT+jj}")
    for i in range(16):
        e(f"v_cos_f32 v{MT+i}, v{MT+i}")
    for i in range(16):
        e(f"v_mul_f32 v{MT+i}, s{19 + i // 8}, v{MT+i}")
    for i in range(8):
        e(f"v_cvt_pk_bf16_f32 v{MF+i}, v{MT+2*i}, v{MT+2*i+1}")
    TR, HW = 128, 133
    e("v_lshrrev_b32 v2, 2, v1\nv_and_b32 v3, 3, v1")
    e("v_and_b32 v12, 7, v2\nv_lshlrev_b32 v12, 1, v12")
    e(f"v_mul_u32_u24 v2, 1280, v2\nv_and_b32 v13, 1, v3\nv_lshl_add_u32 v2, v13, 3, v2\nv_add_u32 v2, {VL}, v2")
    e("s_mul_i32 s22, s3, 10\nv_lshrrev_b32 v3, 1, v3\nv_add_u32 v3, s22, v3")
    for u in range(5):
        e(f"v_add_u32 v13, {2*u}, v3\nv_xor_b32 v13, v13, v12\nv_lshl_add_u32 v{TR+u}, v13, 4, v2")
    e(f"s_mul_i32 s22, s3, 80\nv_add_u32 v2, s22, v10\nv_mul_u32_u24 v3, {2*HJ}, v11")
    e(f"v_lshlrev_b32 v8, 2, v2\nv_add_u32 v8, {MODL}, v8\nv_add_u32 v124, {MODL}, v9\nv_add_u32 v15, {MODL}, v126")
    for u in range(5):
        e(f"v_add_u32 v12, {16*u}, v2\nv_mul_u32_u24 v13, 205, v12\nv_lshrrev_b32 v13, 13, v13")
        e(f"v_mul_u32_u24 v18, 40, v13\nv_sub_u32 v12, v12, v18\nv_mul_u32_u24 v12, 80, v12")
        e(f"v_lshl_add_u32 v12, v13, 2, v12\nv_add_u32 v{HW+u}, v12, v3")
    e(f"s_cmp_eq_u32 s2, 0\ns_cselect_b32 s22, {fhex(2048.0)}, 0")
    e("v_cmp_eq_u32 vcc, 0, v11\nv_mov_b32 v2, s22\nv_cndmask_b32 v127, 0, v2, vcc")
    e(f"s_mul_i32 s22, s44, {YJ}\ns_cmp_eq_u32 s43, 1\ns_cselect_b32 s40, {YM + 512}, {YB}\ns_add_u32 s22, s22, s40")
    e("v_add_u32 v16, s22, v9\nv_add_u32 v17, s22, v126")
    sprinkle(k, mark0, dma, 13)
    ts(k, 2)
    srd(k, 24, 10, WS_X1, SZ_X1)
    srd(k, 36, 10, WS_H2, SZ_H2)
    srd(k, 28, 52, 0, 640 * 3456)
    srd(k, 32, 56, 0, 864 * 1280)
    srd(k, 4, 10, WS_WINP, SZ_WINP)
    srd(k, 60, 10, WS_WOUTP, SZ_WOUTP)
    e("v_lshrrev_b32 v2, 4, v1\nv_and_b32 v3, 15, v1\nv_lshlrev_b32 v12, 1, v2\nv_xor_b32 v3, v3, v12")
    e("v_mul_u32_u24 v2, 3456, v2\nv_lshl_add_u32 v204, v3, 4, v2\nv_xor_b32 v3, 8, v3\nv_lshl_add_u32 v205, v3, 4, v2")
    e(f"v_add_u32 v205, {8*3456-1024}, v205\nv_cmp_gt_u32 vcc, 14, v3\nv_cndmask_b32 v205, 0x40000000, v205, vcc\nv_xor_b32 v3, 8, v3")
    e("v_cmp_gt_u32 vcc, 14, v3\nv_cndmask_b32 v204, 0x40000000, v204, vcc")
    e("s_and_b32 s21, s3, 1\ns_lshl_b32 s21, s21, 4\ns_bfe_u32 s22, s3, 0x10001\ns_lshl_b32 s22, s22, 2\ns_add_u32 s21, s21, s22\ns_mul_i32 s21, s21, 3456")
    for u in range(2):
        e(f"s_mul_i32 s23, s{59-u}, 205\ns_lshr_b32 s23, s23, 12\ns_mul_i32 s40, s23, 20\ns_sub_u32 s22, s{59-u}, s40")
        e("s_lshr_b32 s40, s23, 1\ns_mul_i32 s40, s40, 432\ns_and_b32 s23, s23, 1\ns_mul_i32 s23, s23, 224\ns_add_u32 s40, s40, s23")
        e(f"s_mul_i32 s22, s22, {32*3456}\ns_add_u32 s40, s40, s22\ns_add_u32 s{12+u}, s40, s21")
    e("s_mul_i32 s40, s2, 2341\ns_lshr_b32 s40, s40, 16\ns_mul_i32 s41, s40, 28\ns_sub_u32 s41, s2, s41")
    e("s_mul_i32 s22, s41, 37\ns_lshr_b32 s22, s22, 8\ns_mul_i32 s23, s22, 7\ns_sub_u32 s41, s41, s23")
    e("s_lshl_b32 s23, s41, 5\ns_cmp_ge_u32 s41, 3\ns_cselect_b32 s47, 16, 0\ns_add_u32 s23, s23, s47")
    e("s_cmp_eq_u32 s41, 6\ns_cselect_b32 s23, 96, s23\ns_cselect_b32 s47, 96, 0")
    e("s_mul_i32 s22, s22, 216\ns_add_u32 s23, s23, s22\ns_mul_i32 s23, s23, 1280\ns_mul_i32 s40, s40, 160\ns_add_u32 s8, s23, s40")
    e("s_and_b32 s9, s3, 3\ns_lshl_b32 s41, s9, 6")
    for n in range(2):
        e(("v_add_u32 v3, s41, v1" if n == 0 else "v_add_u32 v3, 256, v1") + "\nv_mul_u32_u24 v2, 6554, v3\nv_lshrrev_b32 v2, 16, v2\nv_mul_u32_u24 v12, 10, v2\nv_sub_u32 v3, v3, v12")
        e(f"v_lshrrev_b32 v12, 4, v2\nv_mul_u32_u24 v12, s47, v12\nv_add_u32 v2, v2, v12\nv_mul_u32_u24 v2, 1280, v2\nv_lshl_add_u32 v{206+n}, v3, 4, v2")
    e(f"s_lshl_b32 s22, s3, 5\ns_add_u32 s22, s22, {VL+16384-96}")
    e("v_lshrrev_b32 v2, 2, v1\nv_mul_u32_u24 v12, 160, v2\nv_and_b32 v3, 3, v1\nv_lshl_add_u32 v12, v3, 3, v12\nv_add_u32 v30, s22, v12")
    e("v_and_b32 v12, 7, v2\nv_lshlrev_b32 v12, 1, v12\nv_bfe_u32 v13, v1, 1, 1\ns_lshl_b32 s22, s3, 1")
    e("v_add_u32 v13, s22, v13\nv_xor_b32 v13, v13, v12\nv_lshlrev_b32 v13, 4, v13\nv_lshl_add_u32 v13, v2, 8, v13")
    e(f"v_and_b32 v12, 1, v1\nv_lshl_add_u32 v31, v12, 3, v13\nv_add_u32 v31, {PK[0]}, v31")
    ts(k, 3)
    e(f"s_waitcnt vmcnt(3)\ns_barrier")
    ts(k, 4)
    DA = 152
    for u in range(5):
        for ks in range(2):
            for h in range(2):
                b = DA + 8 * u + 4 * ks + 2 * h
                e(f"ds_read_b64_tr_b16 v[{b}:{b+1}], v{TR+u} offset:{(32*ks+16*h)*1280}")
        e(f"ds_read2st64_b32 v[{CA+2*u}:{CA+2*u+1}], v8 offset0:0 offset1:10")
        if u < 4:
            e("v_add_u32 v8, 64, v8")
        if u >= 2:
            uu = u - 2
            e("s_waitcnt lgkmcnt(10)")
            step1(e, uu, DA, MF)
    for uu in (3, 4):
        e(f"s_waitcnt lgkmcnt({5*(4-uu)})")
        step1(e, uu, DA, MF)
    for a in range(2):
        e(f"ds_read_b128 v[{FA+4*a}:{FA+4*a+3}], v9 offset:{TABL + TAB_FA + 1024*a}")
    for r in range(2):
        for a in range(2):
            b = TW + 8 * r + 4 * a
            e(f"ds_read_b128 v[{b}:{b+3}], v{TWA+r} offset:{TABL + TAB_TW + 64*a}")
    for u in range(5):
        a = ACCR(u)
        sa, ca = CA + 2 * u, CA + 2 * u + 1
        e(f"v_mul_f32 v{sa}, v{sa}, v127")
        e(f"v_fma_f32 v{a}, v{a}, v{ca}, v{sa}")
        for i in range(1, 4):
            e(f"v_mul_f32 v{a+i}, v{a+i}, v{ca}")
        e(f"v_cvt_pk_bf16_f32 v{a}, v{a}, v{a+1}")
        e(f"v_cvt_pk_bf16_f32 v{a+2}, v{a+2}, v{a+3}")
    e("s_mov_b32 exec_hi, 0xffff")
    for u in range(5):
        e(f"ds_write_b32 v{HW+u}, v{ACCR(u)} offset:{HB}")
    e("s_mov_b32 exec_hi, 0")
    for u in range(5):
        e(f"ds_write_b32 v{HW+u}, v{ACCR(u)+2} offset:{HB+HJ}")
    e("s_mov_b32 exec_hi, -1")
    e("s_waitcnt lgkmcnt(0)\ns_barrier")
    ts(k, 5)
    e(f"s_cmp_lt_u32 s3, 4\ns_cbranch_scc1 {L('rw2')}")
    e(f"s_lshl_b32 s22, s9, 11\ns_add_u32 m0, s22, {PK[0]}")
    e("buffer_load_dwordx4 v204, s[28:31], s12 offen lds\nbuffer_load_dwordx4 v205, s[28:31], s12 offen offset:1024 lds")
    e(f"s_lshl_b32 s23, s9, 10\ns_add_u32 m0, s23, {VL+16384}\nbuffer_load_dwordx4 v206, s[32:35], s8 offen lds")
    e(f"s_mov_b32 m0, {VL+16384+4096}\ns_cmp_lg_u32 s3, 7\ns_cbranch_scc1 {L('rw1')}\nbuffer_load_dwordx4 v207, s[32:35], s8 offen lds")
    e(f"{L('rw1')}:")
    e(f"s_cmp_ge_u32 s15, 8\ns_cbranch_scc1 {L('rw2')}\ns_add_u32 m0, s22, {PK[1]}")
    e("buffer_load_dwordx4 v204, s[28:31], s13 offen lds\nbuffer_load_dwordx4 v205, s[28:31], s13 offen offset:1024 lds")
    e(f"{L('rw2')}:")
    for r in range(2):
        e(f"ds_read_b128 v[{152+4*r}:{155+4*r}], v{RA+r} offset:{HB}")
    for r in range(2):
        for ks in range(3):
            b = FB + 12 * r + 4 * ks
            e(f"ds_read_b128 v[{b}:{b+3}], v{6+r} offset:{TABL + TAB_FB + 1024*ks}")
    for r in range(2):
        e(f"s_waitcnt lgkmcnt({7-r})")
        for a in range(2):
            d = 160 + 8 * r + 4 * a
            e(f"v_mfma_f32_16x16x32_bf16 v[{d}:{d+3}], v[{FA+4*a}:{FA+4*a+3}], v[{152+4*r}:{155+4*r}], 0")
    for r in range(2):
        for a in range(2):
            for p in range(2):
                br, bi = 160 + 8 * r + 4 * a + 2 * p, 161 + 8 * r + 4 * a + 2 * p
                tc, tsn = TW + 8 * r + 4 * a + 2 * p, TW + 8 * r + 4 * a + 2 * p + 1
                t = 176 + 8 * r + 4 * a + 2 * p
                e(f"v_mul_f32 v{t}, v{br}, v{tc}")
                e(f"v_mul_f32 v{t+1}, v{bi}, v{tc}")
                e(f"v_fma_f32 v{t}, v{bi}, v{tsn}, v{t}")
                e(f"v_fma_f32 v{t+1}, -v{br}, v{tsn}, v{t+1}")
                e(f"v_cvt_pk_bf16_f32 v{t}, v{t}, v{t+1}")
                e(f"ds_write_b32 v{TA+r}, v{t} offset:{TB + (8*a+p)*TE}")
    e("s_waitcnt lgkmcnt(0)\ns_barrier")
    ts(k, 6)
    for r in range(2):
        for ks in range(3):
            b = 152 + 12 * r + 4 * ks
            e(f"ds_read_b128 v[{b}:{b+3}], v{(RB if ks < 2 else RBC)+r} offset:{TB + 64*ks}")
    for (reg, ch) in ((GA, 2), (CB, 4), (SB, 3)):
        e(f"ds_read_b128 v[{reg}:{reg+3}], v124 offset:{ch*2560}")
        e(f"ds_read_b128 v[{reg+4}:{reg+7}], v124 offset:{ch*2560+1024}")
        e(f"ds_read_b64 v[{reg+8}:{reg+9}], v15 offset:{ch*2560+2048}")
    for r in range(2):
        for ks in range(3):
            b = 152 + 12 * r + 4 * ks
            d = 176 + 4 * r
            e(f"s_waitcnt lgkmcnt({9 + 5 - 3*r - ks})")
            src = "0" if ks == 0 else f"v[{d}:{d+3}]"
            e(f"v_mfma_f32_16x16x32_bf16 v[{d}:{d+3}], v[{FB+12*r+4*ks}:{FB+12*r+4*ks+3}], v[{b}:{b+3}], {src}")
    XF = 186
    e(f"s_waitcnt vmcnt(3)\ns_cmp_ge_u32 s3, 4\ns_cbranch_scc1 {L('xok')}\ns_waitcnt vmcnt(0)")
    e(f"{L('xok')}:")
    for u in range(5):
        e(f"v_lshlrev_b32 v{XF+2*u}, 16, v{X+u}")
        e(f"v_and_b32 v{XF+2*u+1}, 0xffff0000, v{X+u}")
    for r in range(2):
        for i in range(4):
            e(f"ds_write_b32 v{YA+r}, v{176+4*r+i} offset:{YB + 64*i}")
            e(f"ds_write_b32 v{YMA+r}, v{176+4*r+i} offset:{64*(3-i)}")
    e("s_waitcnt lgkmcnt(0)\ns_barrier")
    ts(k, 7)
    Y = 152
    e(f"ds_read_b128 v[{Y}:{Y+3}], v16\nds_read_b128 v[{Y+4}:{Y+7}], v16 offset:1024\nds_read_b64 v[{Y+8}:{Y+9}], v17 offset:2048")
    e("s_waitcnt lgkmcnt(0)")
    for i in range(10):
        e(f"v_fma_f32 v{XF+i}, v{GA+i}, v{Y+i}, v{XF+i}")
    for u in range(5):
        e(f"v_cvt_pk_bf16_f32 v{X+u}, v{XF+2*u}, v{XF+2*u+1}")

    def store3(R, sd):
        e(f"buffer_store_dwordx2 v[{R}:{R+1}], v126, s[{sd}:{sd+3}], s45 offen sc1")
        e(f"buffer_store_dwordx2 v[{R+2}:{R+3}], v126, s[{sd}:{sd+3}], s45 offen offset:512 sc1")
        e(f"buffer_store_dword v{R+4}, v125, s[{sd}:{sd+3}], s45 offen offset:1024 sc1")

    store3(X, 24)
    for u in range(5):
        e(f"v_lshlrev_b32 v{XF+2*u}, 16, v{X+u}")
        e(f"v_and_b32 v{XF+2*u+1}, 0xffff0000, v{X+u}")
    for i in range(5):
        e(f"v_add_f32 v{Y+i}, v{XF+2*i}, v{XF+2*i+1}")
    e(f"v_add_f32 v{Y}, v{Y}, v{Y+1}\nv_add_f32 v{Y+2}, v{Y+2}, v{Y+3}\nv_add_f32 v{Y}, v{Y}, v{Y+4}\nv_add_f32 v{Y}, v{Y}, v{Y+2}")
    wave_allsum(k, Y, Y + 1)
    e(f"v_mul_f32 v{Y}, {fhex(-1/640)}, v{Y}")
    for i in range(10):
        e(f"v_add_f32 v{XF+i}, v{XF+i}, v{Y}")
    e(f"v_mul_f32 v{Y}, v{XF}, v{XF}\nv_mul_f32 v{Y+1}, v{XF+1}, v{XF+1}")
    for i in range(2, 10):
        e(f"v_fmac_f32 v{Y + i % 2}, v{XF+i}, v{XF+i}")
    e(f"v_add_f32 v{Y}, v{Y}, v{Y+1}")
    wave_allsum(k, Y, Y + 1)
    e(f"v_mov_b32 v{Y+1}, {fhex(1e-5)}\nv_fmamk_f32 v{Y}, v{Y}, {fhex(1/640)}, v{Y+1}")
    e(f"v_rsq_f32 v{Y}, v{Y}")
    for i in range(10):
        e(f"v_mul_f32 v{XF+i}, v{XF+i}, v{Y}")
    for i in range(10):
        e(f"v_fma_f32 v{XF+i}, v{XF+i}, v{CB+i}, v{SB+i}")
    for u in range(5):
        e(f"v_cvt_pk_bf16_f32 v{Y+4+u}, v{XF+2*u}, v{XF+2*u+1}")
    store3(Y + 4, 36)
    ts(k, 8)
    e("s_waitcnt vmcnt(6)\ns_barrier")
    e(f"s_cmp_eq_u32 s3, 7\ns_cbranch_scc1 {L('pk2')}")
    e("ds_read_b64_tr_b16 v[204:205], v31\nds_read_b64_tr_b16 v[206:207], v31 offset:4096")
    e("s_mul_i32 s47, s59, 7\ns_add_u32 s47, s47, s3\ns_lshl_b32 s47, s47, 10")
    e(f"s_cmp_ge_u32 s15, 8\ns_cbranch_scc1 {L('pk1')}")
    e("ds_read_b64_tr_b16 v[200:201], v31 offset:8192\nds_read_b64_tr_b16 v[202:203], v31 offset:12288")
    e("s_mul_i32 s23, s58, 7\ns_add_u32 s23, s23, s3\ns_lshl_b32 s23, s23, 10\ns_waitcnt lgkmcnt(0)\nbuffer_store_dwordx4 v[200:203], v9, s[4:7], s23 offen sc1")
    e(f"{L('pk1')}:")
    e("s_waitcnt lgkmcnt(0)\nbuffer_store_dwordx4 v[204:207], v9, s[4:7], s47 offen sc1")
    e(f"{L('pk2')}:")
    e(f"s_cmp_lt_u32 s3, 3\ns_cbranch_scc1 {L('pk3')}\ns_cmp_ge_u32 s2, 224\ns_cbranch_scc1 {L('pk3')}")
    e("ds_read_b64_tr_b16 v[196:197], v30\nds_read_b64_tr_b16 v[198:199], v30 offset:2560")
    e("s_mul_i32 s41, s2, 5\ns_add_u32 s41, s41, s3\ns_sub_u32 s41, s41, 3\ns_lshl_b32 s41, s41, 10")
    e("s_waitcnt lgkmcnt(0)\nbuffer_store_dwordx4 v[196:199], v9, s[60:63], s41 offen sc1")
    e(f"{L('pk3')}:")
    ts(k, 9)
    ts_end(k, 1, 10, 200)
    e(f"{L('end')}:")
    e("s_endpgm")
    return k


def ACCR(u):
    return [192, 196, 200, 140, 28 + 0][u] if False else [192, 196, 200, 140, 112][u]


def step1(e, u, DA, MF):
    a = ACCR(u)
    for ks in range(2):
        d = DA + 8 * u + 4 * ks
        src = "0" if ks == 0 else f"v[{a}:{a+3}]"
        e(f"v_mfma_f32_16x16x32_bf16 v[{a}:{a+3}], v[{MF+4*ks}:{MF+4*ks+3}], v[{d}:{d+3}], {src}")
```

```python
from common import *

C1 = 2 * 0.7978845608028654 * 1.4426950408889634
C2 = C1 * 0.044715
import os
DIST = int(os.environ.get('P3D', 2))
PFST = int(os.environ.get('PFST', 8))
PFST2 = int(os.environ.get('PFST2', 99))


def gelu(e, regs, tmp, vneg_c2):
    n = len(regs)
    for i, r in enumerate(regs):
        e(f"v_mul_f32 v{tmp+i}, v{r}, v{r}")
    for i in range(n):
        e(f"v_fmaak_f32 v{tmp+i}, v{tmp+i}, v{vneg_c2}, {fhex(-C1)}")
    for i, r in enumerate(regs):
        e(f"v_mul_f32 v{tmp+i}, v{tmp+i}, v{r}")
    for i in range(n):
        e(f"v_exp_f32 v{tmp+i}, v{tmp+i}")
    for i in range(n):
        e(f"v_add_f32 v{tmp+i}, 1.0, v{tmp+i}")
    for i in range(n):
        e(f"v_rcp_f32 v{tmp+i}, v{tmp+i}")
    for i, r in enumerate(regs):
        e(f"v_mul_f32 v{r}, v{r}, v{tmp+i}")


def build(diag=False):
    k = Kern("p3_kernel", 256, 768, 163840, vgpr=128, sgpr=96 if diag else 64)
    k.diag = diag
    e = k.e
    L = k.lab
    SL = 32768
    ts_begin(k)
    e(f"s_cmp_ge_u32 s2, 256\ns_cbranch_scc1 {L('end')}")
    e(f"s_load_dwordx2 s[10:11], s[0:1], {KA_WS}")
    e(f"s_load_dwordx2 s[8:9], s[0:1], {KA_WSP}")
    e("v_and_b32 v1, 63, v0\nv_lshrrev_b32 v2, 6, v0\nv_readfirstlane_b32 s3, v2")
    e("s_and_b32 s16, s2, 7\ns_lshr_b32 s17, s2, 3")
    e("s_and_b32 s18, s16, 3\ns_lshl_b32 s18, s18, 2\ns_and_b32 s19, s17, 3\ns_add_u32 s18, s18, s19")
    e("s_lshr_b32 s19, s16, 2\ns_lshl_b32 s19, s19, 2\ns_bfe_u32 s20, s17, 0x20002\ns_add_u32 s19, s19, s20")
    e("s_lshr_b32 s17, s17, 4\ns_lshl_b32 s17, s17, 3\ns_add_u32 s19, s19, s17")
    e("v_lshlrev_b32 v5, 4, v1")
    e(f"s_cmp_lt_u32 s3, 4\ns_cbranch_scc1 {L('loader')}")
    e("s_sub_u32 s3, s3, 4")
    e("v_and_b32 v2, 15, v1\nv_lshrrev_b32 v3, 4, v1")
    e("v_lshrrev_b32 v15, 2, v2\nv_and_b32 v16, 3, v2")
    e("v_lshrrev_b32 v17, 1, v16\nv_lshlrev_b32 v17, 2, v17\nv_and_b32 v18, 2, v15\nv_or_b32 v17, v17, v18")
    e("v_xor_b32 v17, v17, v3\nv_lshlrev_b32 v17, 4, v17")
    e("v_lshl_add_u32 v16, v15, 3, v16\nv_lshl_add_u32 v6, v16, 7, v17")
    e("s_and_b32 s23, s3, 3\ns_lshl_b32 s23, s23, 12\nv_add_u32 v6, s23, v6\nv_xor_b32 v7, 64, v6")
    e("s_lshr_b32 s23, s3, 2\ns_lshl_b32 s23, s23, 12\nv_add_u32 v12, s23, v5")
    for b in (1, 2):
        e(f"v_add_u32 v{6+2*b}, {65536*b}, v6\nv_add_u32 v{7+2*b}, {65536*b}, v7\nv_add_u32 v{12+b}, {65536*b}, v12")
    e(f"v_mov_b32 v15, {fhex(-C2)}")
    e("s_lshl_b32 s20, s18, 2\ns_and_b32 s21, s3, 3\ns_add_u32 s20, s20, s21")
    e("s_and_b32 s21, s19, 7")
    e("s_waitcnt lgkmcnt(0)")
    ts(k, 1)
    AC, FRG = 32, 64

    def variant(z2, nt, tag):
        if z2:
            srd(k, 24, 10, WS_Z2P, SZ_Z2P)
            srd(k, 28, 10, WS_STATS, SZ_STATS)
            e("s_lshl_b32 s22, s21, 6\ns_add_u32 s22, s22, s20")
        else:
            srd(k, 24, 10, WS_Z1P, SZ_Z1P)
            e("s_lshl_b32 s22, s20, 3\ns_add_u32 s22, s22, s21")
        e(f"s_mul_i32 s22, s22, 7168")
        if nt == 3:
            e("s_add_u32 s22, s22, 4096")

        def reads(kap):
            st, ks = divmod(kap, 2)
            sl = st % 5
            base, off = sl // 2, (sl % 2) * SL
            b = FRG + 24 * (kap % 2)
            out = []
            for mt in range(2):
                out.append(f"ds_read_b128 v[{b+4*mt}:{b+4*mt+3}], v{6+2*base+ks} offset:{off + 512*mt}")
            for j in range(nt):
                out.append(f"ds_read_b128 v[{b+8+4*j}:{b+11+4*j}], v{12+base} offset:{off + 16384 + (7*ks+j)*1024}")
            return out

        ts(k, 2)
        e("s_barrier")
        ts(k, 3)
        for x in reads(0):
            e(x)
        for kap in range(20):
            nxt = kap + 1
            e("s_waitcnt lgkmcnt(0)")
            if nxt < 20 and nxt % 2 == 0:
                e("s_barrier")
                if nxt // 2 in (2, 4, 6, 8):
                    ts(k, 3 + nxt // 4)
            rd = reads(nxt) if nxt < 20 else []
            b = FRG + 24 * (kap % 2)
            for j in range(nt):
                for mt in range(2):
                    a = AC + 8 * j + 4 * mt
                    h, w = f"v[{b+4*mt}:{b+4*mt+3}]", f"v[{b+8+4*j}:{b+11+4*j}]"
                    src = "0" if kap == 0 else f"v[{a}:{a+3}]"
                    for _ in range(2):
                        if rd:
                            e(rd.pop(0))
                    e(f"v_mfma_f32_16x16x32_bf16 v[{a}:{a+3}], {h if z2 else w}, {w if z2 else h}, {src}")
        ts(k, 8)
        ST = 96
        for j in range(nt):
            regs = [AC + 8 * j + i for i in range(8)]
            gelu(e, regs, FRG, 15)
            if z2 and nt == 3 and j == 2:
                e("s_and_b32 s23, s19, 1\ns_cmp_eq_u32 s23, 1\ns_cselect_b32 s40, 0x00ff00ff, -1\ns_mov_b32 s41, s40")
                for r in regs:
                    e(f"v_cndmask_b32 v{r}, 0, v{r}, s[40:41]")
            for i in range(4):
                e(f"v_cvt_pk_bf16_f32 v{FRG+8+4*j+i}, v{regs[2*i]}, v{regs[2*i+1]}")
            e(f"buffer_store_dwordx4 v[{FRG+8+4*j}:{FRG+11+4*j}], v5, s[24:27], s22 offen offset:{1024*j} sc1")
            if z2:
                for i, r in enumerate(regs):
                    if j == 0:
                        e(f"v_mov_b32 v{ST+2*i}, v{r}\nv_mul_f32 v{ST+2*i+1}, v{r}, v{r}")
                    else:
                        e(f"v_add_f32 v{ST+2*i}, v{ST+2*i}, v{r}\nv_fmac_f32 v{ST+2*i+1}, v{r}, v{r}")
        if z2:
            m = 8
            for mask, dpp in ((0xff00ff00, "row_ror:8"), (0xf0f0f0f0, "row_half_mirror"),
                              (0xcccccccc, "quad_perm:[2,3,0,1]"), (0xaaaaaaaa, "quad_perm:[1,0,3,2]")):
                e(f"s_mov_b32 s40, 0x{mask:x}\ns_mov_b32 s41, s40")
                for i in range(m):
                    e(f"v_cndmask_b32 v{AC+i}, v{ST+i+m}, v{ST+i}, s[40:41]")
                for i in range(m):
                    e(f"v_cndmask_b32 v{ST+i}, v{ST+i}, v{ST+i+m}, s[40:41]")
                for i in range(m):
                    e(f"v_add_f32_dpp v{ST+i}, v{AC+i}, v{ST+i} {dpp} row_mask:0xf bank_mask:0xf")
                m //= 2
            e("v_lshlrev_b32 v2, 2, v1\ns_lshl_b32 s20, s20, 8")
            e(f"buffer_atomic_add_f32 v{ST}, v2, s[28:31], s20 offen")
        e(f"s_branch {L('fin')}")

    e(f"s_cmp_ge_u32 s19, 8\ns_cbranch_scc1 {L('z2')}")
    e(f"s_cmp_ge_u32 s3, 4\ns_cbranch_scc1 {L('z1b')}")
    variant(False, 4, "z1a")
    e(f"{L('z1b')}:")
    variant(False, 3, "z1b")
    e(f"{L('z2')}:")
    e(f"s_cmp_ge_u32 s3, 4\ns_cbranch_scc1 {L('z2b')}")
    variant(True, 4, "z2a")
    e(f"{L('z2b')}:")
    variant(True, 3, "z2b")
    e(f"{L('fin')}:")
    ts(k, 9)
    ts_end(k, 2, 10, 120)
    e("s_endpgm")

    e(f"{L('loader')}:")
    e("v_lshrrev_b32 v2, 3, v1\nv_and_b32 v3, 7, v1\nv_bfe_u32 v4, v2, 1, 1\nv_lshlrev_b32 v4, 2, v4")
    e("v_xor_b32 v3, v3, v4\nv_mul_u32_u24 v2, 1280, v2\nv_lshl_add_u32 v10, v3, 4, v2")
    e(f"v_add_u32 v11, {10240-1024}, v10\nv_xor_b32 v12, 32, v10\nv_add_u32 v12, {2*(10240-1024)}, v12\nv_add_u32 v13, {10240-1024}, v12")
    e("s_lshl_b32 s20, s18, 2\ns_add_u32 s20, s20, s3\ns_mul_i32 s20, s20, 40960")
    e("s_mul_i32 s21, s19, 35\ns_add_u32 s21, s21, s3\ns_lshl_b32 s21, s21, 12")
    e("s_lshl_b32 s22, s3, 12")
    e("s_cmp_eq_u32 s3, 3\ns_cselect_b32 s45, 0x40000000, 0")
    e("s_waitcnt lgkmcnt(0)")
    srd(k, 24, 10, WS_H2, SZ_H2)
    srd(k, 28, 10, WS_WINP, SZ_WINP)

    def dma(st):
        sl = (st % 5) * SL
        e(f"s_add_u32 s23, s20, {st*128}\ns_add_u32 m0, s22, {sl}")
        for i in range(4):
            e(f"buffer_load_dwordx4 v{10+i}, s[24:27], s23 offen offset:{1024*i} lds")
        e(f"s_add_u32 s23, s21, {st*14336}\ns_add_u32 m0, s22, {sl + 16384}\ns_add_u32 s44, s23, s45")
        for i in range(4):
            e(f"buffer_load_dwordx4 v5, s[28:31], s{23 if i < 2 else 44} offen offset:{1024*i} lds")

    for st in range(DIST):
        dma(st)
    last = DIST - 1
    q = [t for t in range(DIST) for _ in range(8)]
    for st in range(10):
        e(f"s_waitcnt vmcnt({len(q) - 1 - max(i for i, t in enumerate(q) if t == st)})\ns_barrier")
        hi = min(9, st + DIST)
        while last < hi:
            last += 1
            dma(last)
            q += [last] * 8
        if st == PFST:
            srd(k, 32, 8, 0, S * 4096)
            e("s_lshr_b32 s23, s2, 3\ns_lshl_b32 s23, s23, 2\ns_add_u32 s23, s23, s3\ns_lshl_b32 s23, s23, 13\nv_lshlrev_b32 v2, 7, v1")
            e("s_and_b32 s46, s16, 3\ns_lshl_b32 s46, s46, 21\ns_add_u32 s46, s46, s23\ns_lshr_b32 s23, s16, 2\ns_lshl_b32 s23, s23, 20\ns_add_u32 s46, s46, s23")
            e("buffer_load_dword v20, v2, s[32:35], s46 offen")
            q.append("pf")
        if st == PFST2:
            e("s_xor_b32 s46, s46, 0x100000\nbuffer_load_dword v20, v2, s[32:35], s46 offen")
            q.append("pf")
        if st == 8:
            code_srd(k, 36, "p4_kernel", "p2_tab-p4_kernel")
            e("s_lshl_b32 s23, s3, 10\nbuffer_load_dword v21, v5, s[36:39], s23 offen\ns_add_u32 s23, s23, 4096\nbuffer_load_dword v22, v5, s[36:39], s23 offen")
            q += ["pf"] * 2
    e(f"{L('end')}:")
    e("s_endpgm")
    return k
```

```python
from common import *

WU, ZB0, ZU, TBL = 16384, 65536, 14336, 151552
import os
DZ = int(os.environ.get("DZ", 6))
R3, SL3 = 65536, 32768
UA, UB = int(os.environ.get("UA", 5)), int(os.environ.get("UB", 11))
FL3 = 8192
C1 = 2 * 0.7978845608028654 * 1.4426950408889634
C2 = C1 * 0.044715
WO, WO2, XT, GBO = 32768, 0, 15360, 160768


def build(diag=False):
    k = Kern("p3_kernel", 256, 512, TBL + 12288, vgpr=216, sgpr=96 if diag else 64)
    k.diag = diag
    e = k.e
    L = k.lab
    ts_begin(k)
    e(f"s_cmp_ge_u32 s2, 256\ns_cbranch_scc1 {L('end')}")
    e(f"s_load_dwordx4 s[4:7], s[0:1], {KA_WSP}")
    e(f"s_load_dwordx2 s[10:11], s[0:1], {KA_WS}")
    e(f"s_load_dwordx2 s[8:9], s[0:1], {KA_OUT}")
    e("v_and_b32 v1, 63, v0\nv_lshrrev_b32 v2, 6, v0\nv_readfirstlane_b32 s3, v2")
    e("s_and_b32 s16, s2, 7\ns_lshr_b32 s17, s2, 3")
    e("s_and_b32 s12, s16, 3\ns_lshl_b32 s12, s12, 2\ns_and_b32 s13, s17, 3\ns_add_u32 s12, s12, s13")
    e("s_lshr_b32 s13, s16, 2\ns_lshl_b32 s13, s13, 2\ns_bfe_u32 s14, s17, 0x20002\ns_add_u32 s13, s13, s14")
    e("s_lshr_b32 s14, s17, 4\ns_lshl_b32 s14, s14, 3\ns_add_u32 s13, s13, s14")
    e("s_and_b32 s18, s16, 3\ns_lshl_b32 s18, s18, 3\ns_and_b32 s19, s17, 7\ns_add_u32 s18, s18, s19")
    e("s_lshr_b32 s19, s16, 2\ns_lshl_b32 s19, s19, 2\ns_lshr_b32 s17, s17, 3\ns_add_u32 s19, s19, s17")
    e("s_mov_b32 s57, s18\ns_mov_b32 s58, s19")
    e("v_lshlrev_b32 v5, 4, v1")
    e("s_and_b32 s16, s3, 1\ns_bfe_u32 s17, s3, 0x10001")
    e(f"s_cmp_ge_u32 s3, 4\ns_cbranch_scc1 {L('loader')}")

    e("v_and_b32 v2, 15, v1\nv_lshrrev_b32 v3, 4, v1")
    e("v_lshrrev_b32 v15, 2, v2\nv_and_b32 v16, 3, v2")
    e("v_lshl_add_u32 v18, v15, 3, v16")
    e("v_lshrrev_b32 v17, 1, v16\nv_lshlrev_b32 v17, 2, v17\nv_and_b32 v19, 2, v15\nv_or_b32 v17, v17, v19")
    e("v_xor_b32 v17, v17, v3\nv_lshlrev_b32 v17, 4, v17\nv_lshl_add_u32 v4, v18, 7, v17")
    e(f"s_lshl_b32 s23, s3, 12\ns_add_u32 s23, s23, {R3}\nv_add_u32 v6, s23, v4\nv_xor_b32 v7, 64, v6")
    e(f"v_add_u32 v8, 65536, v6\nv_add_u32 v9, 65536, v7\nv_add_u32 v10, {R3+16384}, v5\nv_add_u32 v11, 65536, v10")
    e(f"v_mov_b32 v20, {fhex(-C2)}\nv_mov_b32 v21, {fhex(-C2)}\nv_mov_b32 v22, {fhex(-C1)}\nv_mov_b32 v23, {fhex(-C1)}\nv_mov_b32 v24, 1.0\nv_mov_b32 v25, 1.0")
    e("s_lshl_b32 s20, s12, 2\ns_add_u32 s20, s20, s3\ns_and_b32 s21, s13, 7")
    e("s_waitcnt lgkmcnt(0)")
    ts(k, 1)
    srd(k, 32, 10, WS_STATS, SZ_STATS)
    A3, F3 = 32, [96, 132]

    def gemm1(z2):
        if z2:
            srd(k, 24, 10, WS_Z2P, SZ_Z2P)
            e("s_lshl_b32 s22, s21, 6\ns_add_u32 s22, s22, s20")
        else:
            srd(k, 24, 10, WS_Z1P, SZ_Z1P)
            e("s_lshl_b32 s22, s20, 3\ns_add_u32 s22, s22, s21")
        e("s_mul_i32 s22, s22, 7168\ns_add_u32 s23, s22, 4096")

        def reads(kap):
            st, ks = divmod(kap, 2)
            sl = st % 3
            base, off = sl // 2, (sl % 2) * SL3
            b = F3[kap % 2]
            out = [f"ds_read_b128 v[{b+4*mt}:{b+4*mt+3}], v{6+2*base+ks} offset:{off + 512*mt}" for mt in range(2)]
            out += [f"ds_read_b128 v[{b+8+4*j}:{b+11+4*j}], v{10+base} offset:{off + (7*ks+j)*1024}" for j in range(7)]
            return out

        e("s_barrier")
        ts(k, 2)
        for x in reads(0):
            e(x)
        e("s_waitcnt lgkmcnt(0)")
        for kap in range(20):
            nxt = kap + 1
            if nxt < 20 and nxt % 2 == 0:
                e("s_barrier")
            rd = reads(nxt) if nxt < 20 else []
            b = F3[kap % 2]
            n = 0
            for j in range(7):
                for mt in range(2):
                    a = A3 + 8 * j + 4 * mt
                    h, w = f"v[{b+4*mt}:{b+4*mt+3}]", f"v[{b+8+4*j}:{b+11+4*j}]"
                    src = "0" if kap == 0 else f"v[{a}:{a+3}]"
                    e(f"v_mfma_f32_16x16x32_bf16 v[{a}:{a+3}], {h if z2 else w}, {w if z2 else h}, {src}")
                    if rd:
                        e(rd.pop(0))
                    n += 1
                    if n == 13 and nxt < 20:
                        e("s_waitcnt lgkmcnt(0)")
        ts(k, 3)
        T, PKD, S1, S2 = 96, 112, 144, 152
        for j0 in range(0, 7, 2):
            tiles = [j for j in (j0, j0 + 1) if j < 7]
            prs = [A3 + 8 * j + 2 * i for j in tiles for i in range(4)]
            P = lambda r: f"v[{r}:{r+1}]"
            for n, r in enumerate(prs):
                e(f"v_pk_mul_f32 {P(T+2*n)}, {P(r)}, {P(r)}")
            for n, r in enumerate(prs):
                e(f"v_pk_fma_f32 {P(T+2*n)}, {P(T+2*n)}, v[20:21], v[22:23]")
            for n, r in enumerate(prs):
                e(f"v_pk_mul_f32 {P(T+2*n)}, {P(T+2*n)}, {P(r)}")
            for n in range(2 * len(prs)):
                e(f"v_exp_f32 v{T+n}, v{T+n}")
            for n, r in enumerate(prs):
                e(f"v_pk_add_f32 {P(T+2*n)}, {P(T+2*n)}, v[24:25]")
            for n in range(2 * len(prs)):
                e(f"v_rcp_f32 v{T+n}, v{T+n}")
            for n, r in enumerate(prs):
                e(f"v_pk_mul_f32 {P(r)}, {P(r)}, {P(T+2*n)}")
            for j in tiles:
                a = A3 + 8 * j
                if z2 and j == 6:
                    e("s_and_b32 s44, s13, 1\ns_cmp_eq_u32 s44, 1\ns_cselect_b32 s40, 0x00ff00ff, -1\ns_mov_b32 s41, s40")
                    for i in range(8):
                        e(f"v_cndmask_b32 v{a+i}, 0, v{a+i}, s[40:41]")
                o = PKD + 4 * j
                for i in range(4):
                    e(f"v_cvt_pk_bf16_f32 v{o+i}, v{a+2*i}, v{a+2*i+1}")
                e(f"buffer_store_dwordx4 v[{o}:{o+3}], v5, s[24:27], s{22 if j < 4 else 23} offen offset:{1024*(j % 4)} sc1")
                if z2:
                    for i in range(4):
                        r = a + 2 * i
                        if j == 0:
                            e(f"v_pk_mul_f32 {P(S2+2*i)}, {P(r)}, {P(r)}")
                        else:
                            e(f"v_pk_add_f32 {P(S1+2*i)}, {P(A3+2*i) if j == 1 else P(S1+2*i)}, {P(r)}")
                            e(f"v_pk_fma_f32 {P(S2+2*i)}, {P(r)}, {P(r)}, {P(S2+2*i)}")
        if z2:
            vals = [(S2 if idx % 2 else S1) + idx // 2 for idx in range(16)]
            m = 8
            for mask, dpp in ((0xff00ff00, "row_ror:8"), (0xf0f0f0f0, "row_half_mirror"),
                              (0xcccccccc, "quad_perm:[2,3,0,1]"), (0xaaaaaaaa, "quad_perm:[1,0,3,2]")):
                e(f"s_mov_b32 s40, 0x{mask:x}\ns_mov_b32 s41, s40")
                for i in range(m):
                    e(f"v_cndmask_b32 v{T+i}, v{vals[i+m]}, v{vals[i]}, s[40:41]")
                for i in range(m):
                    e(f"v_cndmask_b32 v{vals[i]}, v{vals[i]}, v{vals[i+m]}, s[40:41]")
                for i in range(m):
                    e(f"v_add_f32_dpp v{vals[i]}, v{T+i}, v{vals[i]} {dpp} row_mask:0xf bank_mask:0xf")
                m //= 2
            e("v_lshlrev_b32 v6, 2, v1\ns_lshl_b32 s20, s20, 8")
            e(f"buffer_atomic_add_f32 v{vals[0]}, v6, s[32:35], s20 offen")

    e(f"s_cmp_ge_u32 s13, 8\ns_cbranch_scc1 {L('z2')}")
    gemm1(False)
    e(f"s_branch {L('g1done')}")
    e(f"{L('z2')}:")
    gemm1(True)
    e(f"{L('g1done')}:")
    ts(k, 4)
    srd(k, 36, 10, WS_Z1P, SZ_Z1P)
    srd(k, 40, 6, 0, 4096)
    srd(k, 28, 10, WS_FLAG, SZ_FLAG)
    Z1, BS, STV = 192, 206, 96
    e("s_lshl_b32 s46, s18, 1\ns_add_u32 s46, s46, s16\ns_lshl_b32 s47, s46, 3\ns_add_u32 s47, s47, s19\ns_mul_i32 s47, s47, 7168")
    e("s_lshl_b32 s44, s17, 3\nv_add_u32 v26, s44, v5\ns_add_u32 s22, s47, 4096")
    e("s_lshl_b32 s46, s46, 6\ns_lshl_b32 s45, s17, 3\ns_add_u32 s46, s46, s45\nv_lshlrev_b32 v17, 1, v18")
    e(f"buffer_load_ushort v{BS}, v17, s[40:43], s46 offen")
    e("s_lshl_b32 s44, s17, 13\ns_lshl_b32 s45, s16, 12\ns_add_u32 s44, s44, s45\ns_lshl_b32 s45, s17, 9\ns_add_u32 s44, s44, s45")
    e("v_add_u32 v8, s44, v4\nv_xor_b32 v9, 64, v8\nv_xor_b32 v10, 512, v8\nv_xor_b32 v11, 512, v9")
    e(f"s_mul_i32 s44, s17, 7168\ns_add_u32 s44, s44, {ZB0}\nv_add_u32 v12, s44, v5")
    e(f"s_lshl_b32 s44, s17, 11\ns_add_u32 s44, s44, {TBL+8192}\nv_lshl_add_u32 v14, v3, 4, s44")
    e(f"s_lshl_b32 s44, s17, 12\ns_add_u32 s44, s44, {TBL}\nv_lshl_add_u32 v13, v18, 2, s44")
    e(f"s_lshl_b32 s44, s3, 11\ns_add_u32 s44, s44, {TBL}\nv_lshl_add_u32 v6, v1, 3, s44")
    e(f"s_lshl_b32 s44, s3, 10\ns_add_u32 s44, s44, {TBL+8192}\nv_lshl_add_u32 v7, v1, 2, s44")
    e("v_and_b32 v19, 1, v2\nv_mov_b32 v20, 0xffff\nv_lshlrev_b32 v19, 4, v19\nv_lshlrev_b32 v20, v19, v20")
    e("v_cmp_eq_u32 vcc, v15, v3\nv_cndmask_b32 v20, 0, v20, vcc")
    e("v_cmp_gt_u32 vcc, 2, v16\nv_cndmask_b32 v21, v20, 0, vcc\nv_cndmask_b32 v20, 0, v20, vcc")
    ACC = lambda s_, j: 32 + 32 * s_ + 4 * j
    ZB = [96, 128]
    RAW, RRV, DG, SO, WP = 160, 22, 24, 168, 184
    e(f"v_mov_b32 v16, {fhex(1e-5)}")
    for i in range(64):
        e(f"v_mov_b32 v{32+i}, 0")
    e(f"s_lshl_b32 s44, s12, 7\ns_add_u32 s44, s44, {FL3}\nv_lshl_add_u32 v22, v1, 11, s44")
    e(f"s_and_b32 s44, s2, 7\ns_lshl_b32 s44, s44, 11\ns_add_u32 s44, s44, {FL3}\nv_lshl_add_u32 v23, v1, 7, s44")
    e(f"v_mov_b32 v24, 1\ns_lshl_b32 s23, s3, 12")
    e("s_waitcnt vmcnt(0)\ns_barrier")
    e(f"s_cmp_lg_u32 s3, 0\ns_cbranch_scc1 {L('go')}")
    e("s_mov_b64 exec, 0xff\nbuffer_atomic_add v24, v22, s[28:31], 0 offen sc1\ns_mov_b64 exec, 0xffff\ns_mov_b32 s45, 0")
    e(f"{L('gpoll')}:")
    e("buffer_load_dword v27, v23, s[28:31], 0 offen sc0 sc1\ns_add_u32 s45, s45, 1\ns_waitcnt vmcnt(0)")
    e(f"v_cmp_gt_u32 vcc, 16, v27\ns_cbranch_vccz {L('gdone')}\ns_cmp_lt_u32 s45, 0x400000\ns_cbranch_scc1 {L('gpoll')}")
    e(f"{L('gdone')}:")
    e("s_mov_b64 exec, -1")
    e(f"{L('go')}:")
    e("s_barrier")
    ts(k, 5)
    for a in range(4):
        e(f"buffer_load_dwordx4 v[{STV+4*a}:{STV+4*a+3}], v5, s[32:35], s23 offen offset:{1024*a} sc1")
    for j in range(7):
        so, off = ("s47", 1024 * j) if j < 4 else ("s22", 1024 * (j - 4))
        e(f"buffer_load_dwordx2 v[{Z1+2*j}:{Z1+2*j+1}], v26, s[36:39], {so} offen offset:{off} sc1")
    e("s_waitcnt vmcnt(7)")
    for a in range(4):
        for h in range(2):
            s1, s2 = STV + 4 * a + 2 * h, STV + 4 * a + 2 * h + 1
            e(f"v_mul_f32 v{s1}, {fhex(-1/864)}, v{s1}")
            e(f"v_fmamk_f32 v{s2}, v{s2}, {fhex(1/864)}, v16")
            e(f"v_fma_f32 v{s2}, -v{s1}, v{s1}, v{s2}")
            e(f"v_rsq_f32 v{s2}, v{s2}")
        b = STV + 4 * a
        e(f"v_cvt_pk_bf16_f32 v{b}, v{b}, v{b+2}")
        e(f"v_cvt_pk_bf16_f32 v{b+2}, v{b+1}, v{b+1}")
        e(f"v_cvt_pk_bf16_f32 v{b+3}, v{b+3}, v{b+3}")
        e(f"ds_write_b64 v6, v[{b+2}:{b+3}] offset:{512*a}")
        e(f"ds_write_b32 v7, v{b} offset:{256*a}")
    e(f"v_mov_b32 v{DG+2}, 0\nv_mov_b32 v{DG+3}, 0")
    e("s_waitcnt lgkmcnt(0)")
    WPB = [184, 208]

    def period(par, do_main=True, do_scale=True, do_z=True, tail=()):
        rd = []
        for s_ in range(2):
            rd.append(f"ds_read_b128 v[{RAW+4*s_}:{RAW+4*s_+3}], v{8+2*s_+par}")
        rd.append(f"ds_read2_b32 v[{RRV}:{RRV+1}], v13 offset0:{32*par} offset1:{32*par+4}")
        b = ZB[1 - par]
        if do_z:
            for j in range(7):
                rd.append(f"ds_read_b128 v[{b+4*j}:{b+4*j+3}], v12 offset:{par*ZU + j*1024}")
            rd.append(f"ds_read_b128 v[{b+28}:{b+31}], v14 offset:{par*64}")
        main = mains(par) if do_main else []
        cv = [f"v_cvt_pk_bf16_f32 v{WPB[1-par]+i}, v{SO+2*i}, v{SO+2*i+1}" for i in range(8)] if do_scale else []
        cv += list(tail)
        ands = [f"v_and_b32 v{DG}, v{RRV}, v20", f"v_and_b32 v{DG+1}, v{RRV}, v21",
                f"v_and_b32 v{DG+4}, v{RRV+1}, v20", f"v_and_b32 v{DG+5}, v{RRV+1}, v21"]
        zr = rd[3:]
        if do_scale:
            for s_ in range(2):
                for h in range(2):
                    o = SO + 8 * s_ + 4 * h
                    e(f"v_mfma_f32_16x16x32_bf16 v[{o}:{o+3}], v[{DG+2*h}:{DG+2*h+3}], v[{RAW+4*s_}:{RAW+4*s_+3}], 0")
                    if zr:
                        e(zr.pop(0))
        rest = rd[:3] + zr
        fill = cv + ["s_waitcnt lgkmcnt(0)"] + ands
        for n, m in enumerate(main):
            e(m)
            if rest:
                e(rest.pop(0))
            else:
                c = 0
                while fill and c < 2:
                    x = fill.pop(0)
                    e(x)
                    c += 0.5 if x.startswith("s_") else 1
        for x in rest + fill:
            e(x)

    def mains(par):
        b = ZB[par]
        out = []
        for j in range(8):
            for s_ in range(2):
                a = ACC(s_, j)
                out.append(f"v_mfma_f32_16x16x32_bf16 v[{a}:{a+3}], v[{b+4*j}:{b+4*j+3}], v[{WPB[par]+4*s_}:{WPB[par]+4*s_+3}], v[{a}:{a+3}]")
        return out

    def advance():
        t = [f"v_add_u32 v{r}, s50, v{r}" for r in (8, 9, 10, 11)]
        t += ["v_add_u32 v12, s51, v12", "v_add_u32 v13, 256, v13", "v_add_u32 v14, 128, v14"]
        return t

    def deltas():
        return (f"s_add_u32 s48, s48, 1\ns_and_b32 s44, s48, 3\ns_cmp_eq_u32 s44, 0\ns_cselect_b32 s50, {-3*WU}, s52\n"
                f"s_add_u32 s49, s49, 1\ns_cmp_eq_u32 s49, 3\ns_cselect_b32 s51, {-4*ZU}, s53\ns_cselect_b32 s49, 0, s49\n"
                "s_cmp_lt_u32 s48, 17").split("\n")

    e(f"s_mov_b32 s48, 0\ns_mov_b32 s49, 0\ns_mov_b32 s52, {WU}\ns_mov_b32 s53, {2*ZU}")
    e("v_subrev_u32 v14, 64, v14")
    e("s_barrier")
    period(0, do_main=False, do_scale=False, do_z=False, tail=deltas())
    e("s_barrier")
    period(1, do_main=False, tail=advance())
    ts(k, 6)
    e(f"{L('cloop')}:")
    e("s_barrier")
    period(0, tail=deltas())
    e("s_barrier")
    period(1, tail=advance())
    e(f"s_cbranch_scc1 {L('cloop')}")
    ts(k, 7)
    e("s_xor_b32 s44, s3, 2\ns_lshl_b32 s44, s44, 13\nv_add_u32 v8, s44, v5\nv_lshl_add_u32 v10, v1, 2, s44")
    for j in range(7):
        a = ACC(1, j)
        e(f"ds_write_b128 v8, v[{a}:{a+3}] offset:{1024*j}")
    e(f"ds_write_b32 v10, v{ACC(1, 7)} offset:7168")
    e("s_lshl_b32 s44, s3, 13\nv_add_u32 v8, s44, v5\nv_lshl_add_u32 v10, v1, 2, s44")
    srd(k, 24, 10, WS_A5P, SZ_A5P)
    e("s_lshl_b32 s20, s18, 2\ns_lshl_b32 s21, s16, 1\ns_add_u32 s20, s20, s21\ns_add_u32 s20, s20, s17\ns_mul_i32 s20, s20, 28")
    e("s_lshr_b32 s21, s19, 1\ns_mul_i32 s21, s21, 7\ns_add_u32 s20, s20, s21\ns_lshl_b32 s20, s20, 10")
    e("s_and_b32 s21, s19, 1\ns_mul_i32 s22, s21, 3072\ns_add_u32 s22, s22, s20\ns_add_u32 s20, s20, 6144")
    e("s_lshl_b32 s23, s21, 3\nv_add_u32 v6, s23, v5")
    e("s_cmp_eq_u32 s21, 1\ns_cselect_b32 s41, 0, -1\ns_mov_b32 s40, -1")
    U = 128
    e("s_waitcnt vmcnt(0)")
    e(f"v_lshlrev_b32 v{BS}, 16, v{BS}\nv_add_f32 v{BS}, v{BS}, v{ACC(0, 7)}")
    for j in range(7):
        for h in range(2):
            e(f"v_lshlrev_b32 v{U+4*j+2*h}, 16, v{Z1+2*j+h}\nv_and_b32 v{U+4*j+2*h+1}, 0xffff0000, v{Z1+2*j+h}")
    e("s_waitcnt lgkmcnt(0)\ns_barrier")
    P = 96
    e("ds_read_b32 v20, v10 offset:7168")
    for j in range(7):
        e(f"ds_read_b128 v[{P+4*j}:{P+4*j+3}], v8 offset:{1024*j}")
    e(f"s_waitcnt lgkmcnt(7)\nv_add_f32 v{BS}, v{BS}, v20")
    for j in range(7):
        for i in range(4):
            e(f"v_add_f32 v{ACC(0, j)+i}, v{ACC(0, j)+i}, v{BS}")
    O = 64
    for j in range(7):
        e(f"s_waitcnt lgkmcnt({6-j})" if j < 2 else ("s_waitcnt lgkmcnt(0)\ns_barrier" if j == 2 else ""))
        a = ACC(0, j)
        for i in range(4):
            e(f"v_add_f32 v{a+i}, v{a+i}, v{P+4*j+i}")
        for i in range(4):
            e(f"v_mul_f32 v{a+i}, v{a+i}, v{U+4*j+i}")
        for h in range(2):
            e(f"v_cvt_pk_bf16_f32 v{O+2*j+h}, v{a+2*h}, v{a+2*h+1}")
        if j % 2 == 1:
            e(f"buffer_store_dwordx4 v[{O+2*j-2}:{O+2*j+1}], v5, s[24:27], s22 offen offset:{1024*(j//2)} sc0 sc1")
    for h in range(2):
        e(f"v_cndmask_b32 v{O+12+h}, 0, v{O+12+h}, s[40:41]")
    e(f"buffer_store_dwordx2 v[{O+12}:{O+13}], v6, s[24:27], s20 offen sc0 sc1")
    ts(k, 8)
    e("s_lshl_b32 s21, s57, 2\ns_add_u32 s21, s21, s3\ns_mul_i32 s21, s21, 28672")
    e(f"v_add_u32 v6, {WO}, v5\nv_add_u32 v7, {WO+61440}, v5\nv_add_u32 v8, {WO+122880}, v5")
    e("s_lshr_b32 s44, s3, 1\ns_lshl_b32 s44, s44, 5\ns_and_b32 s45, s3, 1\ns_lshl_b32 s45, s45, 2\ns_add_u32 s44, s44, s45")
    e(f"s_mul_i32 s44, s44, 160\ns_add_u32 s44, s44, {XT}")
    e("v_mul_u32_u24 v10, 160, v18\nv_lshl_add_u32 v10, v3, 3, v10\nv_add_u32 v10, s44, v10")
    e(f"v_lshlrev_b32 v9, 4, v3\nv_add_u32 v9, {GBO}, v9")
    srd(k, 36, 10, WS_FLAG, SZ_FLAG)
    e("s_lshl_b32 s46, s18, 8\nv_mov_b32 v14, s46\nv_mov_b32 v15, 1\ns_lshl_b32 s46, s57, 8\nv_mov_b32 v17, s46")
    e("s_waitcnt vmcnt(0)\ns_barrier")
    ts(k, 9)
    e(f"s_cmp_lg_u32 s3, 0\ns_cbranch_scc1 {L('nopoll')}")
    e("s_mov_b32 s45, 0\ns_mov_b64 exec, 1\nbuffer_atomic_add v15, v14, s[36:39], 0 offen sc1")
    e(f"{L('poll')}:")
    e("buffer_load_dword v16, v17, s[36:39], 0 offen sc0 sc1\ns_add_u32 s45, s45, 1\ns_waitcnt vmcnt(0)")
    e(f"v_readfirstlane_b32 s46, v16\ns_cmp_ge_u32 s46, 8\ns_cbranch_scc1 {L('pdone')}")
    e(f"s_cmp_lt_u32 s45, 0x400000\ns_cbranch_scc1 {L('poll')}")
    e(f"{L('pdone')}:")
    e("s_mov_b64 exec, -1")
    e(f"{L('nopoll')}:")
    e("s_barrier")
    ts(k, 10)
    AF, BF, AC = 32, 144, 12

    def breads(kap):
        b = BF + 20 * (kap % 3)
        if kap < 25:
            base, off = 6 + kap // 12, (kap % 12) * 5120
        else:
            base, off = 5, WO2 + (kap - 25) * 5120
        return [f"ds_read_b128 v[{b+4*j}:{b+4*j+3}], v{base} offset:{off + 1024*j}" for j in range(5)]

    for kap in range(28):
        if kap % 4 == 0:
            e(f"s_add_u32 s23, s21, {kap*1024}")
        e(f"buffer_load_dwordx4 v[{AF+4*kap}:{AF+4*kap+3}], v5, s[24:27], s23 offen offset:{1024*(kap % 4)} sc1")
        if kap == 1:
            for x in breads(0) + breads(1):
                e(x)
    for kap in range(28):
        e(f"s_waitcnt vmcnt({27-kap}) lgkmcnt({5 if kap < 27 else 0})")
        rd = breads(kap + 2) if kap + 2 < 28 else []
        b = BF + 20 * (kap % 3)
        for j in range(5):
            a = AC + 4 * j
            src = "0" if kap == 0 else f"v[{a}:{a+3}]"
            for _ in range(2):
                if rd:
                    e(rd.pop(0))
            e(f"v_mfma_f32_16x16x32_bf16 v[{a}:{a+3}], v[{b+4*j}:{b+4*j+3}], v[{AF+4*kap}:{AF+4*kap+3}], {src}")
    for j in range(5):
        e(f"ds_read_b128 v[{AF+4*j}:{AF+4*j+3}], v9 offset:{64*j}")
        e(f"ds_read_b64 v[{AF+20+2*j}:{AF+21+2*j}], v10 offset:{32*j}")
    for j in range(5):
        e(f"s_waitcnt lgkmcnt({2*(4-j) + j})")
        for h in range(2):
            e(f"v_lshlrev_b32 v{64+2*h}, 16, v{AF+20+2*j+h}\nv_and_b32 v{65+2*h}, 0xffff0000, v{AF+20+2*j+h}")
        for i in range(4):
            e(f"v_fma_f32 v{AC+4*j+i}, v{AC+4*j+i}, v{AF+4*j+i}, v{64+i}")
        for h in range(2):
            e(f"v_cvt_pk_bf16_f32 v{AC+4*j+h}, v{AC+4*j+2*h}, v{AC+4*j+2*h+1}")
        e(f"ds_write_b64 v10, v[{AC+4*j}:{AC+4*j+1}] offset:{32*j}")
    e("s_waitcnt lgkmcnt(0)\ns_barrier")
    ts_end(k, 2, 10, 100)
    e("s_endpgm")

    e(f"{L('loader')}:")
    e("v_lshrrev_b32 v2, 3, v1\nv_and_b32 v3, 7, v1\nv_bfe_u32 v4, v2, 1, 1\nv_lshlrev_b32 v4, 2, v4\nv_xor_b32 v4, v3, v4")
    e("v_mul_u32_u24 v6, 1280, v2\nv_lshl_add_u32 v10, v4, 4, v6")
    e(f"v_add_u32 v11, {10240-1024}, v10\nv_xor_b32 v12, 32, v10\nv_add_u32 v12, {2*(10240-1024)}, v12\nv_add_u32 v13, {10240-1024}, v12")
    e("s_sub_u32 s15, s3, 4\ns_lshl_b32 s20, s12, 2\ns_add_u32 s20, s20, s15\ns_mul_i32 s20, s20, 40960")
    e("s_mul_i32 s21, s13, 35\ns_add_u32 s21, s21, s15\ns_lshl_b32 s21, s21, 12")
    e(f"s_lshl_b32 s22, s15, 12\ns_add_u32 s22, s22, {R3}\ns_cmp_eq_u32 s15, 3\ns_cselect_b32 s45, 0x40000000, 0")
    e("s_waitcnt lgkmcnt(0)")
    srd(k, 24, 10, WS_H2, SZ_H2)
    srd(k, 28, 10, WS_WINP, SZ_WINP)

    def dma3(st):
        sl = (st % 3) * SL3
        e(f"s_add_u32 s23, s20, {st*128}\ns_add_u32 m0, s22, {sl}")
        for i in range(4):
            e(f"buffer_load_dwordx4 v{10+i}, s[24:27], s23 offen offset:{1024*i} lds")
        e(f"s_add_u32 s23, s21, {st*14336}\ns_add_u32 m0, s22, {sl + 16384}\ns_add_u32 s44, s23, s45")
        for i in range(4):
            e(f"buffer_load_dwordx4 v5, s[28:31], s{23 if i < 2 else 44} offen offset:{1024*i} lds")

    dma3(0)
    dma3(1)
    srd(k, 32, 4, 0, S * 4096)
    e("s_lshl_b32 s46, s18, 18\ns_lshl_b32 s47, s16, 17\ns_add_u32 s46, s46, s47\ns_lshl_b32 s47, s17, 11\ns_add_u32 s46, s46, s47")
    e("s_lshl_b32 s47, s17, 13\ns_lshl_b32 s48, s16, 12\ns_add_u32 s47, s47, s48")
    e("v_lshlrev_b32 v6, 4, v4\nv_lshl_add_u32 v6, v2, 7, v6\nv_add_u32 v6, s47, v6\nv_xor_b32 v7, 32, v6")
    e("v_lshlrev_b32 v8, 12, v2\nv_lshl_add_u32 v14, v3, 4, v8\nv_lshl_add_u32 v8, v4, 4, v8")

    def wdma(u):
        e(f"s_add_u32 s23, s46, {128*u}\ns_add_u32 m0, s47, {WU*u}")
        for i in range(4):
            e(f"buffer_load_dwordx4 v{10+i}, s[32:35], s23 offen offset:{1024*i} lds")

    WR = lambda u, i: 16 + 16 * (u - 4) + 4 * i
    for st in range(8):
        e("s_waitcnt vmcnt(8)\ns_barrier")
        dma3(st + 2)
    e(f"v_mov_b32 v10, v8\nv_add_u32 v11, {32768-1024}, v8\nv_xor_b32 v12, 32, v8\nv_add_u32 v12, {2*(32768-1024)}, v12\nv_add_u32 v13, {32768-1024}, v12")
    wdma(0)
    wdma(1)
    e("s_waitcnt vmcnt(16)\ns_barrier")
    wdma(2)
    wdma(3)
    e("s_waitcnt vmcnt(16)\ns_barrier")
    e("v_add_u32 v15, 65536, v14")

    def wload(u):
        e(f"s_add_u32 s23, s46, {128*u}\ns_add_u32 s44, s46, {128*u+32768}")
        for i in range(4):
            e(f"buffer_load_dwordx4 v[{WR(u, i)}:{WR(u, i)+3}], v{14 + i//2}, s[32:35], s{44 if i % 2 else 23} offen")

    for u in range(4, UA):
        wload(u)
    srd(k, 28, 10, WS_Z2P, SZ_Z2P)
    e("s_lshl_b32 s21, s19, 6\ns_lshl_b32 s22, s17, 5\ns_add_u32 s21, s21, s22\ns_mul_i32 s21, s21, 7168")
    e(f"s_mul_i32 s22, s17, 7168\ns_add_u32 s22, s22, {ZB0}")
    e("s_barrier")
    for u in range(UA, UB):
        wload(u)
    e(f"s_waitcnt vmcnt({4*(UB-4)})\ns_barrier")

    def wunit(u, half):
        for i in (2 * half, 2 * half + 1):
            e(f"ds_write_b128 v{6 + half}, v[{WR(u, i)}:{WR(u, i)+3}] offset:{(u % 4)*WU + 1024*i}")

    def zunit(kap, h):
        off = 4096 * h
        e(f"s_add_u32 s23, s21, {kap*7168 + off}\ns_add_u32 m0, s22, {((kap + 1) % 6) * ZU + off}")
        for j in range(4 - h):
            e(f"buffer_load_dwordx4 v5, s[28:31], s23 offen offset:{1024*j} sc1 lds")

    def wload2(u, half):
        e(f"s_add_u32 s23, s46, {128*u}\ns_add_u32 s44, s46, {128*u+32768}")
        for i in (2 * half, 2 * half + 1):
            e(f"buffer_load_dwordx4 v[{WR(u, i)}:{WR(u, i)+3}], v{14 + half}, s[32:35], s{44 if i % 2 else 23} offen")

    def wo_setup():
        srd(k, 24, 10, WS_WOUTP, SZ_WOUTP)
        e(f"s_sub_u32 s22, s3, 4\ns_mul_i32 s22, s22, 5120\ns_mul_i32 s20, s58, 143360\ns_add_u32 s21, s20, s22\ns_add_u32 s22, s22, {WO}")

    def wo_round(n0):
        e(f"s_add_u32 s23, s21, {1024*n0}\ns_add_u32 m0, s22, {1024*n0}")
        for i in range(4):
            e(f"buffer_load_dwordx4 v5, s[24:27], s23 offen offset:{1024*i} lds")
        e(f"s_add_u32 s23, s21, {1024*n0+4096}\ns_add_u32 m0, s22, {1024*n0+4096}")
        e("buffer_load_dwordx4 v5, s[24:27], s23 offen lds")

    def loader(h):
        q = [("w", u) for u in range(4, UB) for _ in range(4)]
        done = -1
        late = list(range(UB, 16))
        pend = False

        def need(tag):
            nonlocal done
            idx = max(i for i, t in enumerate(q) if t == tag)
            if idx <= done:
                return None
            done = idx
            return min(63, len(q) - 1 - idx)

        late = [(u, hf) for u in late for hf in range(2)]
        for p in range(-DZ, 32):
            if p == 28:
                wo_setup()
            if p >= -2:
                e("s_barrier")
            if p + DZ < 32:
                zunit(p + DZ, h)
                q.extend([("z", p + DZ)] * (4 - h))
            w = []
            if pend:
                w.append("lgkmcnt(2)" if 4 <= (p - (p % 2) + 6) // 2 < 16 else "lgkmcnt(0)")
                pend = False
            u = (p - (p % 2) + 6) // 2
            if 4 <= u < 16:
                n = need(("w", u))
                if n is not None:
                    e(f"s_waitcnt vmcnt({n})")
                wunit(u, p % 2)
                pend = True
            if p >= -2 and late:
                u, hf = late.pop(0)
                wload2(u, hf)
                q.extend([("w", u)] * 2)
            if p >= 28:
                wo_round((74, 94, 0, 20)[p - 28])
                q.extend([99] * 5)
            if ("z", p + 2) in q and p >= -2:
                n = need(("z", p + 2))
                if n is not None:
                    w.insert(0, f"vmcnt({n})")
            if w:
                e("s_waitcnt " + " ".join(w))
        e(f"s_branch {L('ltail')}")

    e(f"s_cmp_eq_u32 s16, 1\ns_cbranch_scc1 {L('lh1')}")
    loader(0)
    e(f"{L('lh1')}:")
    loader(1)
    e(f"{L('ltail')}:")
    e("s_sub_u32 s3, s3, 4")
    srd(k, 32, 10, WS_X1, SZ_X1)
    srd(k, 40, 8, 0, S * 1280)
    srd(k, 28, 10, WS_MOD, SZ_MOD)
    e("s_lshl_b32 s23, s3, 6\nv_add_u32 v2, s23, v1")
    for i in range(3):
        e(f"v_add_u32 v3, {256*i}, v2\nv_mul_u32_u24 v4, 6554, v3\nv_lshrrev_b32 v4, 16, v4")
        e(f"v_mul_u32_u24 v6, 10, v4\nv_sub_u32 v3, v3, v6\nv_mul_u32_u24 v4, 1280, v4\nv_lshl_add_u32 v{10+i}, v3, 4, v4")
    e("s_mul_i32 s44, s57, 81920\ns_mul_i32 s45, s58, 160\ns_add_u32 s44, s44, s45")
    e(f"s_lshl_b32 s47, s3, 10\ns_add_u32 s47, s47, {XT}\nv_add_u32 v13, s47, v5")
    e("s_barrier")
    wo_round(40)
    e("s_barrier")
    wo_round(54)
    wo_round(105)
    e(f"s_cmp_lg_u32 s3, 3\ns_cbranch_scc1 {L('gbdone')}")
    e(f"s_mul_i32 s45, s58, 320\ns_add_u32 s45, s45, {5*2560}")
    e(f"s_mov_b32 m0, {GBO}\ns_mov_b64 exec, 0xfffff\nbuffer_load_dwordx4 v5, s[28:31], s45 offen lds\ns_mov_b64 exec, -1")
    e(f"{L('gbdone')}:")
    e(f"s_lshl_b32 s22, s3, 12\ns_add_u32 s23, s20, {25*5120}\ns_add_u32 s23, s23, s22\ns_add_u32 m0, s22, {WO2}")
    for i in range(3):
        e(f"buffer_load_dwordx4 v5, s[24:27], s23 offen offset:{1024*i} lds")
    e(f"s_cmp_eq_u32 s3, 3\ns_cbranch_scc1 {L('no4')}")
    e("buffer_load_dwordx4 v5, s[24:27], s23 offen offset:3072 lds")
    e(f"{L('no4')}:")
    for i in range(2):
        e(f"s_add_u32 m0, s47, {4096*i}\nbuffer_load_dwordx4 v{10+i}, s[32:35], s44 offen lds")
    e(f"s_cmp_ge_u32 s3, 2\ns_cbranch_scc1 {L('nox')}")
    e("s_add_u32 m0, s47, 8192\nbuffer_load_dwordx4 v12, s[32:35], s44 offen lds")
    e(f"{L('nox')}:")
    e("s_barrier\ns_waitcnt vmcnt(0)\ns_barrier\ns_barrier")
    for i in range(3):
        e(f"ds_read_b128 v[{16+4*i}:{19+4*i}], v13 offset:{4096*i}")
    for i in range(2):
        e(f"s_waitcnt lgkmcnt({2-i})\nbuffer_store_dwordx4 v[{16+4*i}:{19+4*i}], v{10+i}, s[40:43], s44 offen")
    e(f"s_cmp_ge_u32 s3, 2\ns_cbranch_scc1 {L('end')}")
    e("s_waitcnt lgkmcnt(0)\nbuffer_store_dwordx4 v[24:27], v12, s[40:43], s44 offen")
    e(f"{L('end')}:")
    e("s_endpgm")
    k.waits = None
    return k
```

```python
from common import *

WU, ZB0, ZU, TBL = 16384, 65536, 14336, 151552
OOB = 0x40000000
DZ = 4
KIDX = 3
import os
NG1 = int(os.environ.get('NG1', 5))
WO, WO2, XT, GBO = 32768, 0, 15360, 160768


def build(diag=False):
    k = Kern("p4_kernel", 256, 512, TBL + 12288, vgpr=216, sgpr=96 if diag else 64)
    k.diag = diag
    e = k.e
    L = k.lab
    ts_begin(k)
    e(f"s_cmp_ge_u32 s2, 256\ns_cbranch_scc1 {L('end')}")
    e(f"s_load_dwordx4 s[4:7], s[0:1], {KA_WSP}")
    e(f"s_load_dwordx2 s[10:11], s[0:1], {KA_WS}")
    e(f"s_load_dwordx2 s[8:9], s[0:1], {KA_OUT}")
    e("v_and_b32 v1, 63, v0\nv_lshrrev_b32 v2, 6, v0\nv_readfirstlane_b32 s3, v2")
    e("s_and_b32 s16, s2, 7\ns_lshr_b32 s17, s2, 3")
    e("s_and_b32 s18, s16, 3\ns_lshl_b32 s18, s18, 3\ns_and_b32 s19, s17, 7\ns_add_u32 s18, s18, s19")
    e("s_lshr_b32 s19, s16, 2\ns_lshl_b32 s19, s19, 2\ns_lshr_b32 s17, s17, 3\ns_add_u32 s19, s19, s17")
    e("s_mov_b32 s57, s18\ns_mov_b32 s58, s19")
    e("v_lshlrev_b32 v5, 4, v1")
    e("s_and_b32 s16, s3, 1\ns_bfe_u32 s17, s3, 0x10001")
    e(f"s_cmp_ge_u32 s3, 4\ns_cbranch_scc1 {L('loader')}")

    e("s_lshl_b32 s23, s3, 12")
    e("s_waitcnt lgkmcnt(0)")
    ts(k, 1)
    srd(k, 32, 10, WS_STATS, SZ_STATS)
    STV = 96
    for a in range(4):
        e(f"buffer_load_dwordx4 v[{STV+4*a}:{STV+4*a+3}], v5, s[32:35], s23 offen offset:{1024*a}")
    srd(k, 36, 10, WS_Z1P, SZ_Z1P)
    srd(k, 40, 6, 0, 4096)
    e("v_and_b32 v2, 15, v1\nv_lshrrev_b32 v3, 4, v1")
    e("v_lshrrev_b32 v15, 2, v2\nv_and_b32 v16, 3, v2")
    e("v_lshl_add_u32 v18, v15, 3, v16")
    Z1, BS = 192, 206
    e("s_lshl_b32 s46, s18, 1\ns_add_u32 s46, s46, s16\ns_lshl_b32 s47, s46, 3\ns_add_u32 s47, s47, s19\ns_mul_i32 s47, s47, 7168")
    e("s_lshl_b32 s44, s17, 3\nv_add_u32 v17, s44, v5\ns_add_u32 s44, s47, 4096")
    for j in range(7):
        so, off = ("s47", 1024 * j) if j < 4 else ("s44", 1024 * (j - 4))
        e(f"buffer_load_dwordx2 v[{Z1+2*j}:{Z1+2*j+1}], v17, s[36:39], {so} offen offset:{off}")
    e("s_lshl_b32 s46, s46, 6\ns_lshl_b32 s45, s17, 3\ns_add_u32 s46, s46, s45\nv_lshlrev_b32 v17, 1, v18")
    e(f"buffer_load_ushort v{BS}, v17, s[40:43], s46 offen")
    e("v_lshrrev_b32 v17, 1, v16\nv_lshlrev_b32 v17, 2, v17\nv_and_b32 v19, 2, v15\nv_or_b32 v17, v17, v19")
    e("v_xor_b32 v17, v17, v3\nv_lshlrev_b32 v17, 4, v17\nv_lshl_add_u32 v8, v18, 7, v17")
    e("s_lshl_b32 s44, s17, 13\ns_lshl_b32 s45, s16, 12\ns_add_u32 s44, s44, s45\ns_lshl_b32 s45, s17, 9\ns_add_u32 s44, s44, s45")
    e("v_add_u32 v8, s44, v8\nv_xor_b32 v9, 64, v8\nv_xor_b32 v10, 512, v8\nv_xor_b32 v11, 512, v9")
    e(f"s_mul_i32 s44, s17, 7168\ns_add_u32 s44, s44, {ZB0}\nv_add_u32 v12, s44, v5")
    e(f"s_lshl_b32 s44, s17, 11\ns_add_u32 s44, s44, {TBL+8192}\nv_lshl_add_u32 v14, v3, 4, s44")
    e(f"s_lshl_b32 s44, s17, 12\ns_add_u32 s44, s44, {TBL}\nv_lshl_add_u32 v13, v18, 2, s44")
    e(f"s_lshl_b32 s44, s3, 11\ns_add_u32 s44, s44, {TBL}\nv_lshl_add_u32 v6, v1, 3, s44")
    e(f"s_lshl_b32 s44, s3, 10\ns_add_u32 s44, s44, {TBL+8192}\nv_lshl_add_u32 v7, v1, 2, s44")
    e("v_and_b32 v19, 1, v2\nv_mov_b32 v20, 0xffff\nv_lshlrev_b32 v19, 4, v19\nv_lshlrev_b32 v20, v19, v20")
    e("v_cmp_eq_u32 vcc, v15, v3\nv_cndmask_b32 v20, 0, v20, vcc")
    e("v_cmp_gt_u32 vcc, 2, v16\nv_cndmask_b32 v21, v20, 0, vcc\nv_cndmask_b32 v20, 0, v20, vcc")
    ACC = lambda s_, j: 32 + 32 * s_ + 4 * j
    ZB = [96, 128]
    RAW, RRV, DG, SO, WP = 160, 22, 24, 168, 184
    e(f"v_mov_b32 v16, {fhex(1e-5)}")
    for i in range(64):
        e(f"v_mov_b32 v{32+i}, 0")
    e("s_waitcnt vmcnt(8)")
    ts(k, 2)
    for a in range(4):
        for h in range(2):
            s1, s2 = STV + 4 * a + 2 * h, STV + 4 * a + 2 * h + 1
            e(f"v_mul_f32 v{s1}, {fhex(-1/864)}, v{s1}")
            e(f"v_fmamk_f32 v{s2}, v{s2}, {fhex(1/864)}, v16")
            e(f"v_fma_f32 v{s2}, -v{s1}, v{s1}, v{s2}")
            e(f"v_rsq_f32 v{s2}, v{s2}")
        b = STV + 4 * a
        e(f"v_cvt_pk_bf16_f32 v{b}, v{b}, v{b+2}")
        e(f"v_cvt_pk_bf16_f32 v{b+2}, v{b+1}, v{b+1}")
        e(f"v_cvt_pk_bf16_f32 v{b+3}, v{b+3}, v{b+3}")
        e(f"ds_write_b64 v6, v[{b+2}:{b+3}] offset:{512*a}")
        e(f"ds_write_b32 v7, v{b} offset:{256*a}")
    e(f"v_mov_b32 v{DG+2}, 0\nv_mov_b32 v{DG+3}, 0")
    e("s_waitcnt lgkmcnt(0)")
    ts(k, 3)
    WPB = [184, 208]

    def period(par, do_main=True, do_scale=True, do_z=True, tail=()):
        rd = []
        for s_ in range(2):
            rd.append(f"ds_read_b128 v[{RAW+4*s_}:{RAW+4*s_+3}], v{8+2*s_+par}")
        rd.append(f"ds_read2_b32 v[{RRV}:{RRV+1}], v13 offset0:{32*par} offset1:{32*par+4}")
        b = ZB[1 - par]
        if do_z:
            for j in range(7):
                rd.append(f"ds_read_b128 v[{b+4*j}:{b+4*j+3}], v12 offset:{par*ZU + j*1024}")
            rd.append(f"ds_read_b128 v[{b+28}:{b+31}], v14 offset:{par*64}")
        main = mains(par) if do_main else []
        cv = [f"v_cvt_pk_bf16_f32 v{WPB[1-par]+i}, v{SO+2*i}, v{SO+2*i+1}" for i in range(8)] if do_scale else []
        cv += list(tail)
        ands = [f"v_and_b32 v{DG}, v{RRV}, v20", f"v_and_b32 v{DG+1}, v{RRV}, v21",
                f"v_and_b32 v{DG+4}, v{RRV+1}, v20", f"v_and_b32 v{DG+5}, v{RRV+1}, v21"]
        zr = rd[3:]
        if do_scale:
            for s_ in range(2):
                for h in range(2):
                    o = SO + 8 * s_ + 4 * h
                    e(f"v_mfma_f32_16x16x32_bf16 v[{o}:{o+3}], v[{DG+2*h}:{DG+2*h+3}], v[{RAW+4*s_}:{RAW+4*s_+3}], 0")
                    if zr:
                        e(zr.pop(0))
        rest = rd[:3] + zr
        fill = cv + ["s_waitcnt lgkmcnt(0)"] + ands
        for n, m in enumerate(main):
            e(m)
            if rest:
                e(rest.pop(0))
            else:
                c = 0
                while fill and c < 2:
                    x = fill.pop(0)
                    e(x)
                    c += 0.5 if x.startswith("s_") else 1
        for x in rest + fill:
            e(x)

    def mains(par):
        b = ZB[par]
        out = []
        for j in range(8):
            for s_ in range(2):
                a = ACC(s_, j)
                out.append(f"v_mfma_f32_16x16x32_bf16 v[{a}:{a+3}], v[{b+4*j}:{b+4*j+3}], v[{WPB[par]+4*s_}:{WPB[par]+4*s_+3}], v[{a}:{a+3}]")
        return out

    def advance():
        t = [f"v_add_u32 v{r}, s50, v{r}" for r in (8, 9, 10, 11)]
        t += ["v_add_u32 v12, s51, v12", "v_add_u32 v13, 256, v13", "v_add_u32 v14, 128, v14"]
        return t

    def deltas():
        return (f"s_add_u32 s48, s48, 1\ns_and_b32 s44, s48, 3\ns_cmp_eq_u32 s44, 0\ns_cselect_b32 s50, {-3*WU}, s52\n"
                f"s_add_u32 s49, s49, 1\ns_cmp_eq_u32 s49, 3\ns_cselect_b32 s51, {-4*ZU}, s53\ns_cselect_b32 s49, 0, s49\n"
                "s_cmp_lt_u32 s48, 17").split("\n")

    e(f"s_mov_b32 s48, 0\ns_mov_b32 s49, 0\ns_mov_b32 s52, {WU}\ns_mov_b32 s53, {2*ZU}")
    e("v_subrev_u32 v14, 64, v14")
    e("s_barrier")
    period(0, do_main=False, do_scale=False, do_z=False, tail=deltas())
    e("s_barrier")
    period(1, do_main=False, tail=advance())
    ts(k, 4)
    e(f"{L('cloop')}:")
    e("s_barrier")
    period(0, tail=deltas())
    e("s_barrier")
    period(1, tail=advance())
    e(f"s_cbranch_scc1 {L('cloop')}")
    ts(k, 6)
    e("s_xor_b32 s44, s3, 2\ns_lshl_b32 s44, s44, 13\nv_add_u32 v8, s44, v5\nv_lshl_add_u32 v10, v1, 2, s44")
    for j in range(7):
        a = ACC(1, j)
        e(f"ds_write_b128 v8, v[{a}:{a+3}] offset:{1024*j}")
    e(f"ds_write_b32 v10, v{ACC(1, 7)} offset:7168")
    e("s_lshl_b32 s44, s3, 13\nv_add_u32 v8, s44, v5\nv_lshl_add_u32 v10, v1, 2, s44")
    srd(k, 24, 10, WS_A5P, SZ_A5P)
    e("s_lshl_b32 s20, s18, 2\ns_lshl_b32 s21, s16, 1\ns_add_u32 s20, s20, s21\ns_add_u32 s20, s20, s17\ns_mul_i32 s20, s20, 28")
    e("s_lshr_b32 s21, s19, 1\ns_mul_i32 s21, s21, 7\ns_add_u32 s20, s20, s21\ns_lshl_b32 s20, s20, 10")
    e("s_and_b32 s21, s19, 1\ns_mul_i32 s22, s21, 3072\ns_add_u32 s22, s22, s20\ns_add_u32 s20, s20, 6144")
    e("s_lshl_b32 s23, s21, 3\nv_add_u32 v6, s23, v5")
    e("s_cmp_eq_u32 s21, 1\ns_cselect_b32 s41, 0, -1\ns_mov_b32 s40, -1")
    U = 128
    e("s_waitcnt vmcnt(0)")
    e(f"v_lshlrev_b32 v{BS}, 16, v{BS}\nv_add_f32 v{BS}, v{BS}, v{ACC(0, 7)}")
    for j in range(7):
        for h in range(2):
            e(f"v_lshlrev_b32 v{U+4*j+2*h}, 16, v{Z1+2*j+h}\nv_and_b32 v{U+4*j+2*h+1}, 0xffff0000, v{Z1+2*j+h}")
    e("s_waitcnt lgkmcnt(0)\ns_barrier")
    ts(k, 7)
    P = 96
    e("ds_read_b32 v20, v10 offset:7168")
    for j in range(7):
        e(f"ds_read_b128 v[{P+4*j}:{P+4*j+3}], v8 offset:{1024*j}")
    e(f"s_waitcnt lgkmcnt(7)\nv_add_f32 v{BS}, v{BS}, v20")
    for j in range(7):
        for i in range(4):
            e(f"v_add_f32 v{ACC(0, j)+i}, v{ACC(0, j)+i}, v{BS}")
    O = 64
    for j in range(7):
        e(f"s_waitcnt lgkmcnt({6-j})" if j < 2 else ("s_waitcnt lgkmcnt(0)\ns_barrier" if j == 2 else ""))
        a = ACC(0, j)
        for i in range(4):
            e(f"v_add_f32 v{a+i}, v{a+i}, v{P+4*j+i}")
        for i in range(4):
            e(f"v_mul_f32 v{a+i}, v{a+i}, v{U+4*j+i}")
        for h in range(2):
            e(f"v_cvt_pk_bf16_f32 v{O+2*j+h}, v{a+2*h}, v{a+2*h+1}")
        if j % 2 == 1:
            e(f"buffer_store_dwordx4 v[{O+2*j-2}:{O+2*j+1}], v5, s[24:27], s22 offen offset:{1024*(j//2)} sc0 sc1")
    for h in range(2):
        e(f"v_cndmask_b32 v{O+12+h}, 0, v{O+12+h}, s[40:41]")
    e(f"buffer_store_dwordx2 v[{O+12}:{O+13}], v6, s[24:27], s20 offen sc0 sc1")
    ts(k, 8)
    e("s_lshl_b32 s21, s57, 2\ns_add_u32 s21, s21, s3\ns_mul_i32 s21, s21, 28672")
    e(f"v_add_u32 v6, {WO}, v5\nv_add_u32 v7, {WO+61440}, v5\nv_add_u32 v8, {WO+122880}, v5")
    e("s_lshr_b32 s44, s3, 1\ns_lshl_b32 s44, s44, 5\ns_and_b32 s45, s3, 1\ns_lshl_b32 s45, s45, 2\ns_add_u32 s44, s44, s45")
    e(f"s_mul_i32 s44, s44, 160\ns_add_u32 s44, s44, {XT}")
    e("v_mul_u32_u24 v10, 160, v18\nv_lshl_add_u32 v10, v3, 3, v10\nv_add_u32 v10, s44, v10")
    e(f"v_lshlrev_b32 v9, 4, v3\nv_add_u32 v9, {GBO}, v9")
    srd(k, 36, 10, WS_FLAG, SZ_FLAG)
    e("s_lshl_b32 s46, s18, 8\nv_mov_b32 v14, s46\nv_mov_b32 v15, 1\ns_lshl_b32 s46, s57, 8\nv_mov_b32 v17, s46")
    e("s_waitcnt vmcnt(0)\ns_barrier")
    ts(k, 9)
    e(f"s_cmp_lg_u32 s3, 0\ns_cbranch_scc1 {L('nopoll')}")
    e("s_mov_b32 s45, 0\ns_mov_b64 exec, 1\nbuffer_atomic_add v15, v14, s[36:39], 0 offen sc1")
    e(f"{L('poll')}:")
    e("buffer_load_dword v16, v17, s[36:39], 0 offen sc0 sc1\ns_add_u32 s45, s45, 1\ns_waitcnt vmcnt(0)")
    e(f"v_readfirstlane_b32 s46, v16\ns_cmp_ge_u32 s46, 8\ns_cbranch_scc1 {L('pdone')}")
    e(f"s_cmp_lt_u32 s45, 0x400000\ns_cbranch_scc1 {L('poll')}")
    e(f"{L('pdone')}:")
    e("s_mov_b64 exec, -1")
    e(f"{L('nopoll')}:")
    e("s_barrier")
    ts(k, 10)
    AF, BF, AC = 32, 144, 12

    def breads(kap):
        b = BF + 20 * (kap % 3)
        if kap < 25:
            base, off = 6 + kap // 12, (kap % 12) * 5120
        else:
            base, off = 5, WO2 + (kap - 25) * 5120
        return [f"ds_read_b128 v[{b+4*j}:{b+4*j+3}], v{base} offset:{off + 1024*j}" for j in range(5)]

    for kap in range(28):
        if kap % 4 == 0:
            e(f"s_add_u32 s23, s21, {kap*1024}")
        e(f"buffer_load_dwordx4 v[{AF+4*kap}:{AF+4*kap+3}], v5, s[24:27], s23 offen offset:{1024*(kap % 4)} sc1")
        if kap == 1:
            for x in breads(0) + breads(1):
                e(x)
    for kap in range(28):
        e(f"s_waitcnt vmcnt({27-kap}) lgkmcnt({5 if kap < 27 else 0})")
        rd = breads(kap + 2) if kap + 2 < 28 else []
        b = BF + 20 * (kap % 3)
        for j in range(5):
            a = AC + 4 * j
            src = "0" if kap == 0 else f"v[{a}:{a+3}]"
            for _ in range(2):
                if rd:
                    e(rd.pop(0))
            e(f"v_mfma_f32_16x16x32_bf16 v[{a}:{a+3}], v[{b+4*j}:{b+4*j+3}], v[{AF+4*kap}:{AF+4*kap+3}], {src}")
    for j in range(5):
        e(f"ds_read_b128 v[{AF+4*j}:{AF+4*j+3}], v9 offset:{64*j}")
        e(f"ds_read_b64 v[{AF+20+2*j}:{AF+21+2*j}], v10 offset:{32*j}")
    for j in range(5):
        e(f"s_waitcnt lgkmcnt({2*(4-j) + j})")
        for h in range(2):
            e(f"v_lshlrev_b32 v{64+2*h}, 16, v{AF+20+2*j+h}\nv_and_b32 v{65+2*h}, 0xffff0000, v{AF+20+2*j+h}")
        for i in range(4):
            e(f"v_fma_f32 v{AC+4*j+i}, v{AC+4*j+i}, v{AF+4*j+i}, v{64+i}")
        for h in range(2):
            e(f"v_cvt_pk_bf16_f32 v{AC+4*j+h}, v{AC+4*j+2*h}, v{AC+4*j+2*h+1}")
        e(f"ds_write_b64 v10, v[{AC+4*j}:{AC+4*j+1}] offset:{32*j}")
    e("s_waitcnt lgkmcnt(0)\ns_barrier")
    ts_end(k, KIDX, 10, 100)
    e("s_endpgm")

    e(f"{L('loader')}:")
    e("v_lshrrev_b32 v2, 3, v1\nv_and_b32 v3, 7, v1\nv_bfe_u32 v4, v2, 1, 1\nv_lshlrev_b32 v4, 2, v4")
    e("v_xor_b32 v3, v3, v4\nv_lshlrev_b32 v2, 12, v2\nv_lshl_add_u32 v10, v3, 4, v2")
    e(f"v_add_u32 v11, {32768-1024}, v10\nv_xor_b32 v12, 32, v10\nv_add_u32 v12, {2*(32768-1024)}, v12\nv_add_u32 v13, {32768-1024}, v12")
    e("s_lshl_b32 s20, s18, 18\ns_lshl_b32 s21, s16, 17\ns_add_u32 s20, s20, s21\ns_lshl_b32 s21, s17, 11\ns_add_u32 s20, s20, s21")
    e("s_lshl_b32 s21, s19, 6\ns_lshl_b32 s22, s17, 5\ns_add_u32 s21, s21, s22\ns_add_u32 s21, s21, s16\ns_mul_i32 s21, s21, 7168")
    e("s_lshl_b32 s22, s17, 13\ns_lshl_b32 s23, s16, 12\ns_add_u32 s22, s22, s23")
    e(f"s_mul_i32 s23, s17, 7168\ns_add_u32 s44, s16, 1\ns_mul_i32 s44, s44, {ZU}\ns_add_u32 s23, s23, s44\ns_add_u32 s23, s23, {ZB0}")
    e(f"s_add_u32 s49, s23, {4*ZU}\ns_cmp_eq_u32 s16, 1\ns_cselect_b32 s44, {2*ZU}, 0\ns_sub_u32 s49, s49, s44")
    e(f"s_mov_b32 s53, {2*ZU}\ns_mov_b32 s45, 0\ns_mov_b32 s46, 0")
    e("s_waitcnt lgkmcnt(0)")
    srd(k, 24, 4, 0, S * 4096)
    srd(k, 28, 10, WS_Z2P, SZ_Z2P)

    def wunit():
        e("s_mov_b32 m0, s22")
        for i in range(4):
            e(f"buffer_load_dwordx4 v{10+i}, s[24:27], s20 offen offset:{1024*i} lds")
        e(f"s_add_u32 s20, s20, 128\ns_add_u32 s22, s22, {WU}\ns_and_b32 s22, s22, 0xffff")

    def zunit():
        e("s_mov_b32 m0, s23\ns_add_u32 s47, s21, 4096")
        for j in range(4):
            e(f"buffer_load_dwordx4 v5, s[28:31], s21 offen offset:{1024*j} lds")
        e("s_add_u32 m0, s23, 4096")
        for j in range(3):
            e(f"buffer_load_dwordx4 v5, s[28:31], s47 offen offset:{1024*j} lds")
        e(f"s_add_u32 s21, s21, 14336\ns_cmp_eq_u32 s23, s49\ns_cselect_b32 s44, {-4*ZU}, s53\ns_add_u32 s23, s23, s44")

    def sched(h, p):
        if p % 2 == h:
            kap = p + DZ
            return ("z", kap) if 0 <= kap < 32 else None
        u = (p - (p % 2) + DZ + 2) // 2
        return ("w", u) if 0 <= u < 16 else None

    def wo_setup():
        srd(k, 24, 10, WS_WOUTP, SZ_WOUTP)
        e(f"s_sub_u32 s22, s3, 4\ns_mul_i32 s22, s22, 5120\ns_mul_i32 s20, s58, 143360\ns_add_u32 s21, s20, s22\ns_add_u32 s22, s22, {WO}")

    def wo_round(n0):
        e(f"s_add_u32 s23, s21, {1024*n0}\ns_add_u32 m0, s22, {1024*n0}")
        for i in range(4):
            e(f"buffer_load_dwordx4 v5, s[24:27], s23 offen offset:{1024*i} lds")
        e(f"s_add_u32 s23, s21, {1024*n0+4096}\ns_add_u32 m0, s22, {1024*n0+4096}")
        e("buffer_load_dwordx4 v5, s[24:27], s23 offen lds")

    def loader(h):
        q = []

        def issue(p):
            un = sched(h, p)
            if un:
                (zunit if un[0] == "z" else wunit)()
                q.extend([p] * (7 if un[0] == "z" else 4))

        def wait(p):
            return sum(1 for t in q if t > p - DZ + 2)

        for p in range(-DZ - 3, -2):
            issue(p)
        e(f"s_waitcnt vmcnt({wait(-3)})")
        P1 = 32 - DZ - 2
        e("s_mov_b32 s45, 0")
        e(f"{L('ll%d' % h)}:")
        ws_ = set()
        for p in range(-2, P1):
            save = k.L
            if p >= 0:
                k.L = []
            e("s_barrier")
            issue(p)
            ws_.add((p % 2, wait(p)))
            if p % 2 == 1:
                e(f"s_add_u32 s45, s45, 1\ns_cmp_lt_u32 s45, {(P1+2)//2}")
            e(f"s_waitcnt vmcnt({wait(p)})")
            k.L = save
        assert len(ws_) == 2, ws_
        e(f"s_cbranch_scc1 {L('ll%d' % h)}")
        for p in range(P1, 32):
            if p == 28:
                wo_setup()
            e("s_barrier")
            issue(p)
            if p >= 28:
                wo_round((74, 94, 0, 20)[p - 28])
                q.extend([99] * 5)
            if p < 31 and any(p - DZ + 2 >= t > p - DZ + 1 for t in q):
                e(f"s_waitcnt vmcnt({wait(p)})")
        e(f"s_branch {L('ltail')}")

    e(f"s_cmp_eq_u32 s16, 1\ns_cbranch_scc1 {L('lh1')}")
    loader(0)
    e(f"{L('lh1')}:")
    loader(1)
    e(f"{L('ltail')}:")
    e("s_sub_u32 s3, s3, 4")
    srd(k, 32, 10, WS_X1, SZ_X1)
    srd(k, 40, 8, 0, S * 1280)
    srd(k, 28, 10, WS_MOD, SZ_MOD)
    e("s_lshl_b32 s23, s3, 6\nv_add_u32 v2, s23, v1")
    for i in range(3):
        e(f"v_add_u32 v3, {256*i}, v2\nv_mul_u32_u24 v4, 6554, v3\nv_lshrrev_b32 v4, 16, v4")
        e(f"v_mul_u32_u24 v6, 10, v4\nv_sub_u32 v3, v3, v6\nv_mul_u32_u24 v4, 1280, v4\nv_lshl_add_u32 v{10+i}, v3, 4, v4")
    e("s_mul_i32 s44, s57, 81920\ns_mul_i32 s45, s58, 160\ns_add_u32 s44, s44, s45")
    e(f"s_lshl_b32 s47, s3, 10\ns_add_u32 s47, s47, {XT}\nv_add_u32 v13, s47, v5")
    e("s_barrier")
    wo_round(40)
    e("s_barrier")
    wo_round(54)
    wo_round(105)
    e(f"s_cmp_lg_u32 s3, 3\ns_cbranch_scc1 {L('gdone')}")
    e(f"s_mul_i32 s45, s58, 320\ns_add_u32 s45, s45, {5*2560}")
    e(f"s_mov_b32 m0, {GBO}\ns_mov_b64 exec, 0xfffff\nbuffer_load_dwordx4 v5, s[28:31], s45 offen lds\ns_mov_b64 exec, -1")
    e(f"{L('gdone')}:")
    e(f"s_lshl_b32 s22, s3, 12\ns_add_u32 s23, s20, {25*5120}\ns_add_u32 s23, s23, s22\ns_add_u32 m0, s22, {WO2}")
    for i in range(3):
        e(f"buffer_load_dwordx4 v5, s[24:27], s23 offen offset:{1024*i} lds")
    e(f"s_cmp_eq_u32 s3, 3\ns_cbranch_scc1 {L('no4')}")
    e("buffer_load_dwordx4 v5, s[24:27], s23 offen offset:3072 lds")
    e(f"{L('no4')}:")
    for i in range(2):
        e(f"s_add_u32 m0, s47, {4096*i}\nbuffer_load_dwordx4 v{10+i}, s[32:35], s44 offen lds")
    e(f"s_cmp_ge_u32 s3, 2\ns_cbranch_scc1 {L('nox')}")
    e("s_add_u32 m0, s47, 8192\nbuffer_load_dwordx4 v12, s[32:35], s44 offen lds")
    e(f"{L('nox')}:")
    e("s_barrier\ns_waitcnt vmcnt(0)\ns_barrier\ns_barrier")
    for i in range(3):
        e(f"ds_read_b128 v[{16+4*i}:{19+4*i}], v13 offset:{4096*i}")
    for i in range(2):
        e(f"s_waitcnt lgkmcnt({2-i})\nbuffer_store_dwordx4 v[{16+4*i}:{19+4*i}], v{10+i}, s[40:43], s44 offen")
    e(f"s_cmp_ge_u32 s3, 2\ns_cbranch_scc1 {L('end')}")
    e("s_waitcnt lgkmcnt(0)\nbuffer_store_dwordx4 v[24:27], v12, s[40:43], s44 offen")
    e(f"{L('end')}:")
    e("s_endpgm")
    k.waits = None
    return k
```

```python
import sys
import k1, k2, k3, k4, k5, k45, k345, os

HEADER = open("adaLN_cond__spectral_fnet__mixer_gmlp__prompt.s.ref").read().split("; Override launch")[0]


def make(diag=False):
    if os.environ.get("F345", "0") == "1":
        ks = [k1.build(diag), k2.build(diag), k345.build(diag)]
    elif os.environ.get("F45", "1") == "1":
        ks = [k1.build(diag), k2.build(diag), k3.build(diag), k45.build(diag)]
    else:
        ks = [k1.build(diag), k2.build(diag), k3.build(diag), k4.build(diag), k5.build(diag)]
    out = HEADER + "\n".join(k.launch_line() for k in ks) + "\n"
    out += '.amdgcn_target "amdgcn-amd-amdhsa--gfx950"\n.text\n'
    out += "\n".join(k.text() for k in ks) + "\n"
    out += k2.tables() + "\ncode_end:\n" + '.section .rodata,"a"\n' + "".join(k.desc() for k in ks)
    return out, ks


if __name__ == "__main__":
    diag = "dbg" if "dbg" in sys.argv else ("diag" in sys.argv)
    out, ks = make(diag)
    path = sys.argv[1]
    open(path, "w").write(out)
```

```python
from common import *
import numpy as np

import os
SPLIT = int(os.environ.get('SPLIT', 1))
TAB_FA, TAB_TW, TAB_FB, TAB_SZ = 0, 2048, 2048 + 5120, 2048 + 5120 + 9216


def bf16_bits(x):
    u = np.asarray(x, dtype=np.float32).view(np.uint32).astype(np.uint64)
    return ((u + 0x7FFF + ((u >> 16) & 1)) >> 16).astype(np.uint16)


def tables():
    fa = np.zeros((2, 64, 8))
    fb = np.zeros((3, 3, 64, 8))
    for l in range(64):
        m, g = l % 16, l // 16
        for jj in range(8):
            c = jj % 2
            for a in range(2):
                e1, cp, d1 = 8 * a + 2 * (m // 4) + (m % 4) // 2, m % 2, 4 * g + jj // 2
                th = 2 * np.pi * ((e1 * d1) % 16) / 16
                fa[a, l, jj] = [[np.cos(th), np.sin(th)], [-np.sin(th), np.cos(th)]][cp][c]
            for b in range(3):
                for ks in range(3):
                    e2, d2 = 16 * b + m, 16 * ks + 4 * g + jj // 2
                    ps = 2 * np.pi * ((e2 * d2) % 40) / 40
                    fb[b, ks, l, jj] = 0.0 if d2 >= 40 else (np.cos(ps) if c == 0 else np.sin(ps))
    tw = np.zeros((40, 16, 2), dtype=np.float32)
    for d2 in range(40):
        for e1 in range(16):
            th = 2 * np.pi * e1 * d2 / 640
            tw[d2, e1] = (np.cos(th), np.sin(th))
    raw = bf16_bits(fa).tobytes() + tw.tobytes() + bf16_bits(fb).tobytes()
    assert len(raw) == TAB_SZ
    w = np.frombuffer(raw, dtype=np.uint32)
    out = [".p2align 8", ".type p2_tab,@object", "p2_tab:"]
    for i in range(0, len(w), 8):
        out.append("  .long " + ",".join(f"0x{x:x}" for x in w[i:i + 8]))
    out.append(f".size p2_tab, {TAB_SZ}")
    return "\n".join(out)


def sprinkle(k, start, items, every):
    body, out, skip, n = k.L[start:], [], None, 0
    items = list(items)
    for line in body:
        t = line.strip()
        out.append(line)
        if t.startswith("s_cbranch"):
            skip = t.split()[1] + ":"
        elif skip and t == skip:
            skip = None
        n += 1
        if items and n >= every and skip is None:
            out += ["  " + x for x in items.pop(0).split("\n")]
            n = 0
    for it in items:
        out += ["  " + x for x in it.split("\n")]
    k.L[start:] = out


def wave_allsum(k, r, t):
    for m in ("quad_perm:[1,0,3,2]", "quad_perm:[2,3,0,1]", "row_half_mirror", "row_mirror"):
        k.e(f"v_add_f32_dpp v{r}, v{r}, v{r} {m} row_mask:0xf bank_mask:0xf")
    for sw in ("v_permlane16_swap_b32", "v_permlane32_swap_b32"):
        k.e(f"v_mov_b32 v{t}, v{r}")
        k.e(f"{sw} v{r}, v{t}")
        k.e(f"v_add_f32 v{r}, v{r}, v{t}")


def build(diag=False):
    HB, HJ = 0, 800 * 4
    TB, TJ, TE = HB + 8 * HJ, 3104, 192
    YB, YJ = 0, 772 * 4
    TABL = (TB + 5 * TJ + 255) // 256 * 256
    MODL = TABL + TAB_SZ
    VL = MODL + 16384
    assert VL % 256 == 0
    YM = VL + 24576
    PK = [VL, VL + 8192]
    k = Kern("p2_kernel", 256, 512, VL + 81920, vgpr=212, sgpr=96 if diag else 64)
    k.diag = diag
    e = k.e
    L = k.lab
    ts_begin(k)
    e(f"s_cmp_ge_u32 s2, 256\ns_cbranch_scc1 {L('end')}")
    e(f"s_load_dwordx2 s[4:5], s[0:1], {KA_X}")
    e(f"s_load_dwordx2 s[10:11], s[0:1], {KA_WS}")
    e(f"s_load_dwordx2 s[56:57], s[0:1], {KA_WOUT}")
    e(f"s_load_dwordx4 s[52:55], s[0:1], {KA_WIN}")
    e("s_getpc_b64 s[6:7]")
    e("s_add_u32 s6, s6, p2_tab@rel32@lo+4\ns_addc_u32 s7, s7, p2_tab@rel32@hi+12")
    e("v_and_b32 v1, 63, v0\nv_lshrrev_b32 v2, 6, v0\nv_readfirstlane_b32 s3, v2")
    e("s_and_b32 s14, s2, 7\ns_lshr_b32 s15, s2, 3")
    e("s_lshl_b32 s16, s14, 2\ns_lshr_b32 s18, s15, 3\ns_add_u32 s16, s16, s18")
    e("s_and_b32 s17, s15, 7")
    e("v_lshlrev_b32 v9, 4, v1")
    e("s_and_b32 s58, s14, 3\ns_mul_i32 s58, s58, 40\ns_lshr_b32 s22, s14, 2\ns_mul_i32 s22, s22, 80")
    e("s_add_u32 s59, s58, s15\ns_add_u32 s58, s59, 32")
    for r in (59, 58):
        e(f"s_cmp_ge_u32 s{r}, 80\ns_cselect_b32 s23, 80, 0\ns_add_u32 s{r}, s{r}, s23\ns_add_u32 s{r}, s{r}, s22")
    e(f"s_mul_i32 s60, s3, 10240\ns_mul_i32 s20, s16, 81920\ns_add_u32 s32, s20, s60\ns_add_u32 s60, s60, {VL}")
    e("s_add_u32 s33, s32, 4096\ns_add_u32 s34, s32, 8192\ns_add_u32 s61, s60, 4096\ns_add_u32 s62, s60, 8192")
    e(f"s_lshl_b32 s63, s3, 12\ns_and_b32 s35, s63, 0x3000\ns_add_u32 s63, s63, {TABL}")
    e("s_waitcnt lgkmcnt(0)")
    ts(k, 1)
    srd(k, 24, 10, WS_V, SZ_V)
    e("s_mov_b32 m0, s60\nbuffer_load_dwordx4 v9, s[24:27], s32 offen lds")
    e(f"s_cmp_lt_u32 s3, 4\ns_cselect_b32 s28, s6, s10\ns_cselect_b32 s29, s7, s11\ns_movk_i32 s30, {SZ_MOD}\ns_cselect_b32 s30, {TAB_SZ}, s30\ns_mov_b32 s31, 0x20000")
    dma = []
    for i in range(1, 10):
        dma.append((f"s_mov_b32 m0, s{60 + i//4}\n" if i % 4 == 0 else "") + f"buffer_load_dwordx4 v9, s[24:27], s{32 + i//4} offen offset:{1024*(i % 4)} lds")
    for i in range(4):
        dma.append(("s_mov_b32 m0, s63\n" if i == 0 else "") + f"buffer_load_dwordx4 v9, s[28:31], s35 offen offset:{1024*i} lds")
    mark0 = len(k.L)
    srd(k, 36, 4, 0, S * 1280)
    e("s_lshl_b32 s18, s17, 8\ns_add_u32 s18, s18, s16")
    e("s_mov_b32 s19, 1.0\ns_mov_b32 s20, 1.0")
    e(f"s_mov_b32 s21, {fhex(-0.25)}")
    e(f"s_cmp_lg_u32 s16, 0\ns_cbranch_scc1 {L('par')}")
    e("s_cmp_ge_u32 s17, 4")
    e("s_cselect_b32 s19, 0, 1.0\ns_cselect_b32 s20, 1.0, 0\ns_cselect_b32 s22, 992, 0")
    e("s_sub_u32 s18, s18, s22\ns_mov_b32 s21, 0")
    e(f"{L('par')}:")
    e("s_and_b32 s44, s3, 3\ns_lshl_b32 s42, s44, 6\ns_add_u32 s42, s42, s18")
    e("s_lshr_b32 s43, s3, 2\ns_sub_u32 s45, 2048, s42")
    e("s_cmp_eq_u32 s43, 1\ns_cselect_b32 s42, s45, s42")
    e("s_cmp_eq_u32 s42, 2048")
    e("s_cselect_b32 s42, 1024, s42\ns_cselect_b32 s43, 0, s43\ns_cselect_b32 s44, 4, s44")
    e("s_mul_i32 s45, s42, 1280")
    CA, SA, FA, TW, FB, X, GA, CB, SB = 20, 25, 32, 40, 56, 80, 86, 96, 106
    e("v_lshlrev_b32 v126, 3, v1\nv_lshlrev_b32 v125, 2, v1")
    dma.append(f"buffer_load_dwordx2 v[{X}:{X+1}], v126, s[36:39], s45 offen")
    dma.append(f"buffer_load_dwordx2 v[{X+2}:{X+3}], v126, s[36:39], s45 offen offset:512")
    dma.append(f"buffer_load_dword v{X+4}, v125, s[36:39], s45 offen offset:1024")
    e("v_and_b32 v10, 15, v1\nv_lshrrev_b32 v11, 4, v1")
    e("v_lshrrev_b32 v14, 2, v10\nv_and_b32 v15, 3, v10")
    e("s_lshl_b32 s22, s3, 3\nv_add_u32 v16, s22, v15\nv_add_u32 v17, 4, v16")
    e(f"s_cmp_lt_u32 s3, 5\ns_cbranch_scc1 {L('pa')}")
    e("s_sub_u32 s22, s3, 5\ns_lshl_b32 s22, s22, 4")
    e("v_mov_b32 v14, 4\nv_add_u32 v16, s22, v10\nv_min_u32 v16, 39, v16\nv_mov_b32 v17, v16")
    e(f"{L('pa')}:")
    RA, TA, TWA, FBA = 116, 118, 138, 204
    for r in range(2):
        e(f"v_lshlrev_b32 v18, 7, v{16+r}\nv_lshl_add_u32 v{TWA+r}, v11, 4, v18")
        e(f"v_mul_u32_u24 v18, {HJ}, v14\nv_mul_u32_u24 v19, 80, v{16+r}\nv_add_u32 v18, v18, v19")
        e(f"v_lshl_add_u32 v{RA+r}, v11, 4, v18")
        e(f"v_mul_u32_u24 v18, {TJ}, v14\nv_mul_u32_u24 v19, {2*TE}, v11\nv_add_u32 v18, v18, v19")
        e(f"v_lshl_add_u32 v{TA+r}, v{16+r}, 2, v18")
    RB, RBC, YA, YMA = 120, 122, 4, 208
    for r in range(2):
        e(f"s_add_u32 s22, s3, {8*r}\ns_min_u32 s22, s22, 14")
        e("s_mul_i32 s23, s22, 86\ns_lshr_b32 s23, s23, 8")
        e("s_mul_i32 s40, s23, 3\ns_sub_u32 s40, s22, s40")
        e(f"s_mul_i32 s41, s40, 3072\nv_add_u32 v{6+r}, s41, v9")
        e("s_lshl_b32 s41, s23, 2")
        e("v_lshrrev_b32 v2, 2, v10\nv_and_b32 v3, 3, v10\nv_add_u32 v3, s41, v3")
        e(f"s_cmp_lt_u32 s23, 4\ns_cbranch_scc1 {L('pb%d' % r)}")
        e("v_mov_b32 v2, 4\nv_mov_b32 v3, v10")
        e(f"{L('pb%d' % r)}:")
        e(f"v_lshlrev_b32 v19, 8, v11\nv_lshl_add_u32 v19, v3, 2, v19\ns_lshl_b32 s41, s40, 10\nv_add_u32 v19, s41, v19\nv_mul_u32_u24 v18, {YJ}, v2")
        e(f"v_add_u32 v{YA+r}, v18, v19\nv_sub_u32 v18, v18, v19\nv_add_u32 v{YMA+r}, {YM + 3072 - 192}, v18")
        e(f"v_mul_u32_u24 v2, {TJ}, v2\nv_mul_u32_u24 v3, {TE}, v3\nv_add_u32 v2, v2, v3")
        e(f"v_lshl_add_u32 v{RB+r}, v11, 4, v2")
        e(f"v_and_b32 v3, 1, v11\nv_lshl_add_u32 v{RBC+r}, v3, 4, v2")
    M, MF = 128, 144
    e("v_lshrrev_b32 v2, 1, v10\nv_and_b32 v3, 1, v10")
    e("v_lshlrev_b32 v12, 6, v2\nv_add_u32 v12, s18, v12")
    e("v_cmp_eq_u32 vcc, 4, v2\nv_mov_b32 v13, 1024\nv_cndmask_b32 v12, v12, v13, vcc")
    e(f"v_cvt_f32_u32 v12, v12\nv_mul_f32 v12, {fhex(1/2048)}, v12")
    e(f"v_cvt_f32_u32 v3, v3\nv_mul_f32 v3, {fhex(0.25)}, v3")
    e("v_lshlrev_b32 v13, 2, v11\nv_cvt_f32_u32 v13, v13\nv_fma_f32 v13, v12, v13, v3")
    MT = 152
    for jj in range(8):
        c = (jj % 4) + 16 * (jj // 4)
        e(f"v_fmamk_f32 v{MT+jj}, v12, {fhex(c)}, v13")
        e(f"v_add_f32 v{MT+8+jj}, s21, v{MT+jj}")
    for i in range(16):
        e(f"v_cos_f32 v{MT+i}, v{MT+i}")
    for i in range(16):
        e(f"v_mul_f32 v{MT+i}, s{19 + i // 8}, v{MT+i}")
    for i in range(8):
        e(f"v_cvt_pk_bf16_f32 v{MF+i}, v{MT+2*i}, v{MT+2*i+1}")
    TR, HW = 128, 133
    e("v_lshrrev_b32 v2, 2, v1\nv_and_b32 v3, 3, v1")
    e("v_and_b32 v12, 7, v2\nv_lshlrev_b32 v12, 1, v12")
    e(f"v_mul_u32_u24 v2, 1280, v2\nv_and_b32 v13, 1, v3\nv_lshl_add_u32 v2, v13, 3, v2\nv_add_u32 v2, {VL}, v2")
    e("s_mul_i32 s22, s3, 10\nv_lshrrev_b32 v3, 1, v3\nv_add_u32 v3, s22, v3")
    for u in range(5):
        e(f"v_add_u32 v13, {2*u}, v3\nv_xor_b32 v13, v13, v12\nv_lshl_add_u32 v{TR+u}, v13, 4, v2")
    e(f"s_mul_i32 s22, s3, 80\nv_add_u32 v2, s22, v10\nv_mul_u32_u24 v3, {2*HJ}, v11")
    e(f"v_lshlrev_b32 v8, 2, v2\nv_add_u32 v8, {MODL}, v8\nv_add_u32 v124, {MODL}, v9\nv_add_u32 v15, {MODL}, v126")
    for u in range(5):
        e(f"v_add_u32 v12, {16*u}, v2\nv_mul_u32_u24 v13, 205, v12\nv_lshrrev_b32 v13, 13, v13")
        e(f"v_mul_u32_u24 v18, 40, v13\nv_sub_u32 v12, v12, v18\nv_mul_u32_u24 v12, 80, v12")
        e(f"v_lshl_add_u32 v12, v13, 2, v12\nv_add_u32 v{HW+u}, v12, v3")
    e(f"s_cmp_eq_u32 s2, 0\ns_cselect_b32 s22, {fhex(2048.0)}, 0")
    e("v_cmp_eq_u32 vcc, 0, v11\nv_mov_b32 v2, s22\nv_cndmask_b32 v127, 0, v2, vcc")
    e(f"s_mul_i32 s22, s44, {YJ}\ns_cmp_eq_u32 s43, 1\ns_cselect_b32 s40, {YM + 512}, {YB}\ns_add_u32 s22, s22, s40")
    e("v_add_u32 v16, s22, v9\nv_add_u32 v17, s22, v126")
    sprinkle(k, mark0, dma, 13)
    ts(k, 2)
    srd(k, 24, 10, WS_X1, SZ_X1)
    srd(k, 36, 10, WS_H2, SZ_H2)
    srd(k, 28, 52, 0, 640 * 3456)
    srd(k, 32, 56, 0, 864 * 1280)
    srd(k, 4, 10, WS_WINP, SZ_WINP)
    srd(k, 60, 10, WS_WOUTP, SZ_WOUTP)
    srd(k, 48, 54, 0, S * 4096)
    e("s_lshl_b32 s22, s15, 2\ns_and_b32 s23, s3, 3\ns_add_u32 s22, s22, s23\ns_lshl_b32 s22, s22, 13")
    e("s_and_b32 s46, s14, 3\ns_lshl_b32 s46, s46, 21\ns_add_u32 s46, s46, s22\ns_lshr_b32 s23, s14, 2\ns_lshl_b32 s23, s23, 20\ns_add_u32 s46, s46, s23")
    e("v_lshrrev_b32 v2, 3, v1\nv_lshlrev_b32 v2, 11, v2\nv_and_b32 v3, 7, v1\nv_lshl_add_u32 v85, v3, 7, v2")
    e("v_lshrrev_b32 v2, 4, v1\nv_and_b32 v3, 15, v1\nv_lshlrev_b32 v12, 1, v2\nv_xor_b32 v3, v3, v12")
    e("v_mul_u32_u24 v2, 3456, v2\nv_lshl_add_u32 v204, v3, 4, v2\nv_xor_b32 v3, 8, v3\nv_lshl_add_u32 v205, v3, 4, v2")
    e(f"v_add_u32 v205, {8*3456-1024}, v205\nv_cmp_gt_u32 vcc, 14, v3\nv_cndmask_b32 v205, 0x40000000, v205, vcc\nv_xor_b32 v3, 8, v3")
    e("v_cmp_gt_u32 vcc, 14, v3\nv_cndmask_b32 v204, 0x40000000, v204, vcc")
    e("s_and_b32 s21, s3, 1\ns_lshl_b32 s21, s21, 4\ns_bfe_u32 s22, s3, 0x10001\ns_lshl_b32 s22, s22, 2\ns_add_u32 s21, s21, s22\ns_mul_i32 s21, s21, 3456")
    for u in range(2):
        e(f"s_mul_i32 s23, s{59-u}, 205\ns_lshr_b32 s23, s23, 12\ns_mul_i32 s40, s23, 20\ns_sub_u32 s22, s{59-u}, s40")
        e("s_lshr_b32 s40, s23, 1\ns_mul_i32 s40, s40, 432\ns_and_b32 s23, s23, 1\ns_mul_i32 s23, s23, 224\ns_add_u32 s40, s40, s23")
        e(f"s_mul_i32 s22, s22, {32*3456}\ns_add_u32 s40, s40, s22\ns_add_u32 s{12+u}, s40, s21")
    e("s_mul_i32 s40, s2, 2341\ns_lshr_b32 s40, s40, 16\ns_mul_i32 s41, s40, 28\ns_sub_u32 s41, s2, s41")
    e("s_mul_i32 s22, s41, 37\ns_lshr_b32 s22, s22, 8\ns_mul_i32 s23, s22, 7\ns_sub_u32 s41, s41, s23")
    e("s_lshl_b32 s23, s41, 5\ns_cmp_ge_u32 s41, 3\ns_cselect_b32 s47, 16, 0\ns_add_u32 s23, s23, s47")
    e("s_cmp_eq_u32 s41, 6\ns_cselect_b32 s23, 96, s23\ns_cselect_b32 s47, 96, 0")
    e("s_mul_i32 s22, s22, 216\ns_add_u32 s23, s23, s22\ns_mul_i32 s23, s23, 1280\ns_mul_i32 s40, s40, 160\ns_add_u32 s8, s23, s40")
    e("s_and_b32 s9, s3, 3\ns_lshl_b32 s41, s9, 6")
    for n in range(2):
        e(("v_add_u32 v3, s41, v1" if n == 0 else "v_add_u32 v3, 256, v1") + "\nv_mul_u32_u24 v2, 6554, v3\nv_lshrrev_b32 v2, 16, v2\nv_mul_u32_u24 v12, 10, v2\nv_sub_u32 v3, v3, v12")
        e(f"v_lshrrev_b32 v12, 4, v2\nv_mul_u32_u24 v12, s47, v12\nv_add_u32 v2, v2, v12\nv_mul_u32_u24 v2, 1280, v2\nv_lshl_add_u32 v{206+n}, v3, 4, v2")
    e(f"s_lshl_b32 s22, s3, 5\ns_add_u32 s22, s22, {VL+16384-96}")
    e("v_lshrrev_b32 v2, 2, v1\nv_mul_u32_u24 v12, 160, v2\nv_and_b32 v3, 3, v1\nv_lshl_add_u32 v12, v3, 3, v12\nv_add_u32 v30, s22, v12")
    e("v_and_b32 v12, 7, v2\nv_lshlrev_b32 v12, 1, v12\nv_bfe_u32 v13, v1, 1, 1\ns_lshl_b32 s22, s3, 1")
    e("v_add_u32 v13, s22, v13\nv_xor_b32 v13, v13, v12\nv_lshlrev_b32 v13, 4, v13\nv_lshl_add_u32 v13, v2, 8, v13")
    e(f"v_and_b32 v12, 1, v1\nv_lshl_add_u32 v31, v12, 3, v13\nv_add_u32 v31, {PK[0]}, v31")
    ts(k, 3)
    e(f"s_waitcnt vmcnt(3)\ns_barrier")
    ts(k, 4)
    if SPLIT:
        e(f"s_cmp_lt_u32 s3, 4\ns_cbranch_scc1 {L('pf2')}")
        e("s_mov_b32 exec_hi, 0\nbuffer_load_dword v85, v85, s[48:51], s46 offen\ns_mov_b32 exec_hi, -1")
        e(f"{L('pf2')}:")
    DA = 152
    for u in range(5):
        for ks in range(2):
            for h in range(2):
                b = DA + 8 * u + 4 * ks + 2 * h
                e(f"ds_read_b64_tr_b16 v[{b}:{b+1}], v{TR+u} offset:{(32*ks+16*h)*1280}")
        e(f"ds_read2st64_b32 v[{CA+2*u}:{CA+2*u+1}], v8 offset0:0 offset1:10")
        if u < 4:
            e("v_add_u32 v8, 64, v8")
        if u >= 2:
            uu = u - 2
            e("s_waitcnt lgkmcnt(10)")
            step1(e, uu, DA, MF)
    for uu in (3, 4):
        e(f"s_waitcnt lgkmcnt({5*(4-uu)})")
        step1(e, uu, DA, MF)
    for a in range(2):
        e(f"ds_read_b128 v[{FA+4*a}:{FA+4*a+3}], v9 offset:{TABL + TAB_FA + 1024*a}")
    for r in range(2):
        for a in range(2):
            b = TW + 8 * r + 4 * a
            e(f"ds_read_b128 v[{b}:{b+3}], v{TWA+r} offset:{TABL + TAB_TW + 64*a}")
    for u in range(5):
        a = ACCR(u)
        sa, ca = CA + 2 * u, CA + 2 * u + 1
        e(f"v_mul_f32 v{sa}, v{sa}, v127")
        e(f"v_fma_f32 v{a}, v{a}, v{ca}, v{sa}")
        for i in range(1, 4):
            e(f"v_mul_f32 v{a+i}, v{a+i}, v{ca}")
        e(f"v_cvt_pk_bf16_f32 v{a}, v{a}, v{a+1}")
        e(f"v_cvt_pk_bf16_f32 v{a+2}, v{a+2}, v{a+3}")
    e("s_mov_b32 exec_hi, 0xffff")
    for u in range(5):
        e(f"ds_write_b32 v{HW+u}, v{ACCR(u)} offset:{HB}")
    e("s_mov_b32 exec_hi, 0")
    for u in range(5):
        e(f"ds_write_b32 v{HW+u}, v{ACCR(u)+2} offset:{HB+HJ}")
    e("s_mov_b32 exec_hi, -1")
    e("s_waitcnt lgkmcnt(0)\ns_barrier")
    ts(k, 5)
    e(f"s_cmp_lt_u32 s3, 4\ns_cbranch_scc1 {L('rw2')}")
    e(f"s_lshl_b32 s22, s9, 11\ns_add_u32 m0, s22, {PK[0]}")
    e("buffer_load_dwordx4 v204, s[28:31], s12 offen lds\nbuffer_load_dwordx4 v205, s[28:31], s12 offen offset:1024 lds")
    e(f"s_lshl_b32 s23, s9, 10\ns_add_u32 m0, s23, {VL+16384}\nbuffer_load_dwordx4 v206, s[32:35], s8 offen lds")
    e(f"s_mov_b32 m0, {VL+16384+4096}\ns_cmp_lg_u32 s3, 7\ns_cbranch_scc1 {L('rw1')}\nbuffer_load_dwordx4 v207, s[32:35], s8 offen lds")
    e(f"{L('rw1')}:")
    e(f"s_cmp_ge_u32 s15, 8\ns_cbranch_scc1 {L('rw2')}\ns_add_u32 m0, s22, {PK[1]}")
    e("buffer_load_dwordx4 v204, s[28:31], s13 offen lds\nbuffer_load_dwordx4 v205, s[28:31], s13 offen offset:1024 lds")
    e(f"{L('rw2')}:")
    for r in range(2):
        e(f"ds_read_b128 v[{152+4*r}:{155+4*r}], v{RA+r} offset:{HB}")
    for r in range(2):
        for ks in range(3):
            b = FB + 12 * r + 4 * ks
            e(f"ds_read_b128 v[{b}:{b+3}], v{6+r} offset:{TABL + TAB_FB + 1024*ks}")
    for r in range(2):
        e(f"s_waitcnt lgkmcnt({7-r})")
        for a in range(2):
            d = 160 + 8 * r + 4 * a
            e(f"v_mfma_f32_16x16x32_bf16 v[{d}:{d+3}], v[{FA+4*a}:{FA+4*a+3}], v[{152+4*r}:{155+4*r}], 0")
    for r in range(2):
        for a in range(2):
            for p in range(2):
                br, bi = 160 + 8 * r + 4 * a + 2 * p, 161 + 8 * r + 4 * a + 2 * p
                tc, tsn = TW + 8 * r + 4 * a + 2 * p, TW + 8 * r + 4 * a + 2 * p + 1
                t = 176 + 8 * r + 4 * a + 2 * p
                e(f"v_mul_f32 v{t}, v{br}, v{tc}")
                e(f"v_mul_f32 v{t+1}, v{bi}, v{tc}")
                e(f"v_fma_f32 v{t}, v{bi}, v{tsn}, v{t}")
                e(f"v_fma_f32 v{t+1}, -v{br}, v{tsn}, v{t+1}")
                e(f"v_cvt_pk_bf16_f32 v{t}, v{t}, v{t+1}")
                e(f"ds_write_b32 v{TA+r}, v{t} offset:{TB + (8*a+p)*TE}")
    e("s_waitcnt lgkmcnt(0)\ns_barrier")
    ts(k, 6)
    for r in range(2):
        for ks in range(3):
            b = 152 + 12 * r + 4 * ks
            e(f"ds_read_b128 v[{b}:{b+3}], v{(RB if ks < 2 else RBC)+r} offset:{TB + 64*ks}")
    for (reg, ch) in ((GA, 2), (CB, 4), (SB, 3)):
        e(f"ds_read_b128 v[{reg}:{reg+3}], v124 offset:{ch*2560}")
        e(f"ds_read_b128 v[{reg+4}:{reg+7}], v124 offset:{ch*2560+1024}")
        e(f"ds_read_b64 v[{reg+8}:{reg+9}], v15 offset:{ch*2560+2048}")
    for r in range(2):
        for ks in range(3):
            b = 152 + 12 * r + 4 * ks
            d = 176 + 4 * r
            e(f"s_waitcnt lgkmcnt({9 + 5 - 3*r - ks})")
            src = "0" if ks == 0 else f"v[{d}:{d+3}]"
            e(f"v_mfma_f32_16x16x32_bf16 v[{d}:{d+3}], v[{FB+12*r+4*ks}:{FB+12*r+4*ks+3}], v[{b}:{b+3}], {src}")
    XF = 186
    e(f"s_waitcnt vmcnt(3)\ns_cmp_ge_u32 s3, 4\ns_cbranch_scc1 {L('xok')}\ns_waitcnt vmcnt(0)")
    e(f"{L('xok')}:")
    for u in range(5):
        e(f"v_lshlrev_b32 v{XF+2*u}, 16, v{X+u}")
        e(f"v_and_b32 v{XF+2*u+1}, 0xffff0000, v{X+u}")
    for r in range(2):
        for i in range(4):
            e(f"ds_write_b32 v{YA+r}, v{176+4*r+i} offset:{YB + 64*i}")
            e(f"ds_write_b32 v{YMA+r}, v{176+4*r+i} offset:{64*(3-i)}")
    e("s_waitcnt lgkmcnt(0)\ns_barrier")
    ts(k, 7)
    Y = 152
    e(f"ds_read_b128 v[{Y}:{Y+3}], v16\nds_read_b128 v[{Y+4}:{Y+7}], v16 offset:1024\nds_read_b64 v[{Y+8}:{Y+9}], v17 offset:2048")
    e("s_waitcnt lgkmcnt(0)")
    for i in range(10):
        e(f"v_fma_f32 v{XF+i}, v{GA+i}, v{Y+i}, v{XF+i}")
    for u in range(5):
        e(f"v_cvt_pk_bf16_f32 v{X+u}, v{XF+2*u}, v{XF+2*u+1}")

    def store3(R, sd):
        e(f"buffer_store_dwordx2 v[{R}:{R+1}], v126, s[{sd}:{sd+3}], s45 offen sc1")
        e(f"buffer_store_dwordx2 v[{R+2}:{R+3}], v126, s[{sd}:{sd+3}], s45 offen offset:512 sc1")
        e(f"buffer_store_dword v{R+4}, v125, s[{sd}:{sd+3}], s45 offen offset:1024 sc1")

    store3(X, 24)
    for u in range(5):
        e(f"v_lshlrev_b32 v{XF+2*u}, 16, v{X+u}")
        e(f"v_and_b32 v{XF+2*u+1}, 0xffff0000, v{X+u}")
    for i in range(5):
        e(f"v_add_f32 v{Y+i}, v{XF+2*i}, v{XF+2*i+1}")
    e(f"v_add_f32 v{Y}, v{Y}, v{Y+1}\nv_add_f32 v{Y+2}, v{Y+2}, v{Y+3}\nv_add_f32 v{Y}, v{Y}, v{Y+4}\nv_add_f32 v{Y}, v{Y}, v{Y+2}")
    wave_allsum(k, Y, Y + 1)
    e(f"v_mul_f32 v{Y}, {fhex(-1/640)}, v{Y}")
    for i in range(10):
        e(f"v_add_f32 v{XF+i}, v{XF+i}, v{Y}")
    e(f"v_mul_f32 v{Y}, v{XF}, v{XF}\nv_mul_f32 v{Y+1}, v{XF+1}, v{XF+1}")
    for i in range(2, 10):
        e(f"v_fmac_f32 v{Y + i % 2}, v{XF+i}, v{XF+i}")
    e(f"v_add_f32 v{Y}, v{Y}, v{Y+1}")
    wave_allsum(k, Y, Y + 1)
    e(f"v_mov_b32 v{Y+1}, {fhex(1e-5)}\nv_fmamk_f32 v{Y}, v{Y}, {fhex(1/640)}, v{Y+1}")
    e(f"v_rsq_f32 v{Y}, v{Y}")
    for i in range(10):
        e(f"v_mul_f32 v{XF+i}, v{XF+i}, v{Y}")
    for i in range(10):
        e(f"v_fma_f32 v{XF+i}, v{XF+i}, v{CB+i}, v{SB+i}")
    for u in range(5):
        e(f"v_cvt_pk_bf16_f32 v{Y+4+u}, v{XF+2*u}, v{XF+2*u+1}")
    store3(Y + 4, 36)
    ts(k, 8)
    e("s_waitcnt vmcnt(6)\ns_barrier")
    e(f"s_cmp_eq_u32 s3, 7\ns_cbranch_scc1 {L('pk2')}")
    e("ds_read_b64_tr_b16 v[204:205], v31\nds_read_b64_tr_b16 v[206:207], v31 offset:4096")
    e("s_mul_i32 s47, s59, 7\ns_add_u32 s47, s47, s3\ns_lshl_b32 s47, s47, 10")
    e(f"s_cmp_ge_u32 s15, 8\ns_cbranch_scc1 {L('pk1')}")
    e("ds_read_b64_tr_b16 v[200:201], v31 offset:8192\nds_read_b64_tr_b16 v[202:203], v31 offset:12288")
    e("s_mul_i32 s23, s58, 7\ns_add_u32 s23, s23, s3\ns_lshl_b32 s23, s23, 10\ns_waitcnt lgkmcnt(0)\nbuffer_store_dwordx4 v[200:203], v9, s[4:7], s23 offen sc1")
    e(f"{L('pk1')}:")
    e("s_waitcnt lgkmcnt(0)\nbuffer_store_dwordx4 v[204:207], v9, s[4:7], s47 offen sc1")
    e(f"{L('pk2')}:")
    e(f"s_cmp_lt_u32 s3, 3\ns_cbranch_scc1 {L('pk3')}\ns_cmp_ge_u32 s2, 224\ns_cbranch_scc1 {L('pk3')}")
    e("ds_read_b64_tr_b16 v[196:197], v30\nds_read_b64_tr_b16 v[198:199], v30 offset:2560")
    e("s_mul_i32 s41, s2, 5\ns_add_u32 s41, s41, s3\ns_sub_u32 s41, s41, 3\ns_lshl_b32 s41, s41, 10")
    e("s_waitcnt lgkmcnt(0)\nbuffer_store_dwordx4 v[196:199], v9, s[60:63], s41 offen sc1")
    e(f"{L('pk3')}:")
    ts(k, 9)
    ts_end(k, 1, 10, 200)
    e(f"{L('end')}:")
    e("s_endpgm")
    return k


def ACCR(u):
    return [192, 196, 200, 140, 28 + 0][u] if False else [192, 196, 200, 140, 112][u]


def step1(e, u, DA, MF):
    a = ACCR(u)
    for ks in range(2):
        d = DA + 8 * u + 4 * ks
        src = "0" if ks == 0 else f"v[{a}:{a+3}]"
        e(f"v_mfma_f32_16x16x32_bf16 v[{a}:{a+3}], v[{MF+4*ks}:{MF+4*ks+3}], v[{d}:{d+3}], {src}")
```

```python
from common import *

C1 = 2 * 0.7978845608028654 * 1.4426950408889634
C2 = C1 * 0.044715
import os
DIST = int(os.environ.get('P3D', 2))
PFST = int(os.environ.get('PFST', 7))
DEFER = int(os.environ.get('DEFER', 1))
SPLIT = int(os.environ.get('SPLIT', 1))
PFST2 = int(os.environ.get('PFST2', 99))


def gelu(e, regs, tmp, vneg_c2):
    n = len(regs)
    for i, r in enumerate(regs):
        e(f"v_mul_f32 v{tmp+i}, v{r}, v{r}")
    for i in range(n):
        e(f"v_fmaak_f32 v{tmp+i}, v{tmp+i}, v{vneg_c2}, {fhex(-C1)}")
    for i, r in enumerate(regs):
        e(f"v_mul_f32 v{tmp+i}, v{tmp+i}, v{r}")
    for i in range(n):
        e(f"v_exp_f32 v{tmp+i}, v{tmp+i}")
    for i in range(n):
        e(f"v_add_f32 v{tmp+i}, 1.0, v{tmp+i}")
    for i in range(n):
        e(f"v_rcp_f32 v{tmp+i}, v{tmp+i}")
    for i, r in enumerate(regs):
        e(f"v_mul_f32 v{r}, v{r}, v{tmp+i}")


def build(diag=False):
    k = Kern("p3_kernel", 256, 768, 163840, vgpr=128, sgpr=96 if diag else 64)
    k.diag = diag
    e = k.e
    L = k.lab
    SL = 32768
    ts_begin(k)
    e(f"s_cmp_ge_u32 s2, 256\ns_cbranch_scc1 {L('end')}")
    e(f"s_load_dwordx2 s[10:11], s[0:1], {KA_WS}")
    e(f"s_load_dwordx2 s[8:9], s[0:1], {KA_WSP}")
    e("v_and_b32 v1, 63, v0\nv_lshrrev_b32 v2, 6, v0\nv_readfirstlane_b32 s3, v2")
    e("s_and_b32 s16, s2, 7\ns_lshr_b32 s17, s2, 3")
    e("s_and_b32 s18, s16, 3\ns_lshl_b32 s18, s18, 2\ns_and_b32 s19, s17, 3\ns_add_u32 s18, s18, s19")
    e("s_lshr_b32 s19, s16, 2\ns_lshl_b32 s19, s19, 2\ns_bfe_u32 s20, s17, 0x20002\ns_add_u32 s19, s19, s20")
    e("s_lshr_b32 s17, s17, 4\ns_lshl_b32 s17, s17, 3\ns_add_u32 s19, s19, s17")
    e("v_lshlrev_b32 v5, 4, v1")
    e(f"s_cmp_lt_u32 s3, 4\ns_cbranch_scc1 {L('loader')}")
    e("s_sub_u32 s3, s3, 4")
    e("v_and_b32 v2, 15, v1\nv_lshrrev_b32 v3, 4, v1")
    e("v_lshrrev_b32 v15, 2, v2\nv_and_b32 v16, 3, v2")
    e("v_lshrrev_b32 v17, 1, v16\nv_lshlrev_b32 v17, 2, v17\nv_and_b32 v18, 2, v15\nv_or_b32 v17, v17, v18")
    e("v_xor_b32 v17, v17, v3\nv_lshlrev_b32 v17, 4, v17")
    e("v_lshl_add_u32 v16, v15, 3, v16\nv_lshl_add_u32 v6, v16, 7, v17")
    e("s_and_b32 s23, s3, 3\ns_lshl_b32 s23, s23, 12\nv_add_u32 v6, s23, v6\nv_xor_b32 v7, 64, v6")
    e("s_lshr_b32 s23, s3, 2\ns_lshl_b32 s23, s23, 12\nv_add_u32 v12, s23, v5")
    for b in (1, 2):
        e(f"v_add_u32 v{6+2*b}, {65536*b}, v6\nv_add_u32 v{7+2*b}, {65536*b}, v7\nv_add_u32 v{12+b}, {65536*b}, v12")
    e(f"v_mov_b32 v15, {fhex(-C2)}")
    e("s_lshl_b32 s20, s18, 2\ns_and_b32 s21, s3, 3\ns_add_u32 s20, s20, s21")
    e("s_and_b32 s21, s19, 7")
    e("s_waitcnt lgkmcnt(0)")
    ts(k, 1)
    AC, FRG = 32, 64

    def variant(z2, nt, tag):
        if z2:
            srd(k, 24, 10, WS_Z2P, SZ_Z2P)
            srd(k, 28, 10, WS_STATS, SZ_STATS)
            e("s_lshl_b32 s22, s21, 6\ns_add_u32 s22, s22, s20")
        else:
            srd(k, 24, 10, WS_Z1P, SZ_Z1P)
            e("s_lshl_b32 s22, s20, 3\ns_add_u32 s22, s22, s21")
        e(f"s_mul_i32 s22, s22, 7168")
        if nt == 3:
            e("s_add_u32 s22, s22, 4096")

        def reads(kap):
            st, ks = divmod(kap, 2)
            sl = st % 5
            base, off = sl // 2, (sl % 2) * SL
            b = FRG + 24 * (kap % 2)
            out = []
            for mt in range(2):
                out.append(f"ds_read_b128 v[{b+4*mt}:{b+4*mt+3}], v{6+2*base+ks} offset:{off + 512*mt}")
            for j in range(nt):
                out.append(f"ds_read_b128 v[{b+8+4*j}:{b+11+4*j}], v{12+base} offset:{off + 16384 + (7*ks+j)*1024}")
            return out

        ts(k, 2)
        e("s_barrier")
        ts(k, 3)
        for x in reads(0):
            e(x)
        for kap in range(20):
            nxt = kap + 1
            e("s_waitcnt lgkmcnt(0)")
            if nxt < 20 and nxt % 2 == 0:
                e("s_barrier")
                if nxt // 2 in (2, 4, 6, 8):
                    ts(k, 3 + nxt // 4)
            rd = reads(nxt) if nxt < 20 else []
            b = FRG + 24 * (kap % 2)
            for j in range(nt):
                for mt in range(2):
                    a = AC + 8 * j + 4 * mt
                    h, w = f"v[{b+4*mt}:{b+4*mt+3}]", f"v[{b+8+4*j}:{b+11+4*j}]"
                    src = "0" if kap == 0 else f"v[{a}:{a+3}]"
                    for _ in range(2):
                        if rd:
                            e(rd.pop(0))
                    e(f"v_mfma_f32_16x16x32_bf16 v[{a}:{a+3}], {h if z2 else w}, {w if z2 else h}, {src}")
        ts(k, 8)
        ST = 96
        stores = []
        for j in range(nt):
            regs = [AC + 8 * j + i for i in range(8)]
            gelu(e, regs, FRG, 15)
            if z2 and nt == 3 and j == 2:
                e("s_and_b32 s23, s19, 1\ns_cmp_eq_u32 s23, 1\ns_cselect_b32 s40, 0x00ff00ff, -1\ns_mov_b32 s41, s40")
                for r in regs:
                    e(f"v_cndmask_b32 v{r}, 0, v{r}, s[40:41]")
            for i in range(4):
                e(f"v_cvt_pk_bf16_f32 v{FRG+8+4*j+i}, v{regs[2*i]}, v{regs[2*i+1]}")
            st_ = f"buffer_store_dwordx4 v[{FRG+8+4*j}:{FRG+11+4*j}], v5, s[24:27], s22 offen offset:{1024*j} sc1"
            if DEFER:
                stores.append(st_)
            else:
                e(st_)
            if z2:
                for i, r in enumerate(regs):
                    if j == 0:
                        e(f"v_mov_b32 v{ST+2*i}, v{r}\nv_mul_f32 v{ST+2*i+1}, v{r}, v{r}")
                    else:
                        e(f"v_add_f32 v{ST+2*i}, v{ST+2*i}, v{r}\nv_fmac_f32 v{ST+2*i+1}, v{r}, v{r}")
        if z2:
            m = 8
            for mask, dpp in ((0xff00ff00, "row_ror:8"), (0xf0f0f0f0, "row_half_mirror"),
                              (0xcccccccc, "quad_perm:[2,3,0,1]"), (0xaaaaaaaa, "quad_perm:[1,0,3,2]")):
                e(f"s_mov_b32 s40, 0x{mask:x}\ns_mov_b32 s41, s40")
                for i in range(m):
                    e(f"v_cndmask_b32 v{AC+i}, v{ST+i+m}, v{ST+i}, s[40:41]")
                for i in range(m):
                    e(f"v_cndmask_b32 v{ST+i}, v{ST+i}, v{ST+i+m}, s[40:41]")
                for i in range(m):
                    e(f"v_add_f32_dpp v{ST+i}, v{AC+i}, v{ST+i} {dpp} row_mask:0xf bank_mask:0xf")
                m //= 2
            e("v_lshlrev_b32 v2, 2, v1\ns_lshl_b32 s20, s20, 8")
            e(f"buffer_atomic_add_f32 v{ST}, v2, s[28:31], s20 offen")
        for st_ in stores:
            e(st_)
        e(f"s_branch {L('fin')}")

    e(f"s_cmp_ge_u32 s19, 8\ns_cbranch_scc1 {L('z2')}")
    e(f"s_cmp_ge_u32 s3, 4\ns_cbranch_scc1 {L('z1b')}")
    variant(False, 4, "z1a")
    e(f"{L('z1b')}:")
    variant(False, 3, "z1b")
    e(f"{L('z2')}:")
    e(f"s_cmp_ge_u32 s3, 4\ns_cbranch_scc1 {L('z2b')}")
    variant(True, 4, "z2a")
    e(f"{L('z2b')}:")
    variant(True, 3, "z2b")
    e(f"{L('fin')}:")
    ts(k, 9)
    ts_end(k, 2, 10, 120)
    e("s_endpgm")

    e(f"{L('loader')}:")
    e("v_lshrrev_b32 v2, 3, v1\nv_and_b32 v3, 7, v1\nv_bfe_u32 v4, v2, 1, 1\nv_lshlrev_b32 v4, 2, v4")
    e("v_xor_b32 v3, v3, v4\nv_mul_u32_u24 v2, 1280, v2\nv_lshl_add_u32 v10, v3, 4, v2")
    e(f"v_add_u32 v11, {10240-1024}, v10\nv_xor_b32 v12, 32, v10\nv_add_u32 v12, {2*(10240-1024)}, v12\nv_add_u32 v13, {10240-1024}, v12")
    e("s_lshl_b32 s20, s18, 2\ns_add_u32 s20, s20, s3\ns_mul_i32 s20, s20, 40960")
    e("s_mul_i32 s21, s19, 35\ns_add_u32 s21, s21, s3\ns_lshl_b32 s21, s21, 12")
    e("s_lshl_b32 s22, s3, 12")
    e("s_cmp_eq_u32 s3, 3\ns_cselect_b32 s45, 0x40000000, 0")
    e("s_waitcnt lgkmcnt(0)")
    srd(k, 24, 10, WS_H2, SZ_H2)
    srd(k, 28, 10, WS_WINP, SZ_WINP)

    def dma(st):
        sl = (st % 5) * SL
        e(f"s_add_u32 s23, s20, {st*128}\ns_add_u32 m0, s22, {sl}")
        for i in range(4):
            e(f"buffer_load_dwordx4 v{10+i}, s[24:27], s23 offen offset:{1024*i} lds")
        e(f"s_add_u32 s23, s21, {st*14336}\ns_add_u32 m0, s22, {sl + 16384}\ns_add_u32 s44, s23, s45")
        for i in range(4):
            e(f"buffer_load_dwordx4 v5, s[28:31], s{23 if i < 2 else 44} offen offset:{1024*i} lds")

    for st in range(DIST):
        dma(st)
    last = DIST - 1
    q = [t for t in range(DIST) for _ in range(8)]
    for st in range(10):
        e(f"s_waitcnt vmcnt({len(q) - 1 - max(i for i, t in enumerate(q) if t == st)})\ns_barrier")
        hi = min(9, st + DIST)
        while last < hi:
            last += 1
            dma(last)
            q += [last] * 8
        if st == PFST:
            srd(k, 32, 8, 0, S * 4096)
            e("s_lshr_b32 s23, s2, 3\ns_lshl_b32 s23, s23, 2\ns_add_u32 s23, s23, s3\ns_lshl_b32 s23, s23, 13\nv_lshlrev_b32 v2, 7, v1")
            e("s_and_b32 s46, s16, 3\ns_lshl_b32 s46, s46, 21\ns_add_u32 s46, s46, s23\ns_lshr_b32 s23, s16, 2\ns_lshl_b32 s23, s23, 20\ns_add_u32 s46, s46, s23")
            if SPLIT:
                e("v_lshrrev_b32 v2, 3, v1\nv_lshlrev_b32 v2, 11, v2\nv_and_b32 v3, 7, v1\nv_lshl_add_u32 v2, v3, 7, v2\nv_add_u32 v2, 1024, v2\ns_mov_b32 exec_hi, 0")
            e("buffer_load_dword v20, v2, s[32:35], s46 offen\ns_mov_b32 exec_hi, -1")
            q.append("pf")
        if st == PFST2:
            e("s_xor_b32 s46, s46, 0x100000\nbuffer_load_dword v20, v2, s[32:35], s46 offen")
            q.append("pf")
        if st == 8:
            code_srd(k, 36, "p4_kernel", "p2_tab-p4_kernel")
            e("s_lshl_b32 s23, s3, 10\nbuffer_load_dword v21, v5, s[36:39], s23 offen\ns_add_u32 s23, s23, 4096\nbuffer_load_dword v22, v5, s[36:39], s23 offen")
            q += ["pf"] * 2
    e(f"{L('end')}:")
    e("s_endpgm")
    return k
```

```python
from common import *
from k2 import TAB_FA, TAB_TW, TAB_FB, TAB_SZ, wave_allsum, step1
from k3 import gelu, C1, C2
import k2
import os

FB1, FB2 = 8192, 24576
DEFER = 1
NB1 = int(os.environ.get("NB1", 0))
PFST = int(os.environ.get("PFST", 7))


def ACCR(u):
    return 116 + 4 * u


k2.ACCR = ACCR


def build(diag=False):
    HB, HJ = 0, 800 * 4
    TB2, TJ, TE = HB + 8 * HJ, 3104, 192
    YB, YJ = 0, 772 * 4
    TABL = (TB2 + 5 * TJ + 255) // 256 * 256
    MODL = TABL + TAB_SZ
    VL = MODL + 16384
    YM = VL + 4 * 14336
    WOS = VL + 81920
    BS = [VL + 14336 * i for i in range(6)]
    BSL = [0, 1, 2, 3, 4, 5, 0, 1, 2, 3]
    NA = 4
    assert VL % 256 == 0 and BS[5] + 14336 <= 163840 and WOS + 5120 <= 163840
    k = Kern("p1_kernel", 256, 768, 163840, vgpr=168, sgpr=96 if diag else 64)
    k.diag = diag
    e = k.e
    L = k.lab
    ts_begin(k)
    e(f"s_cmp_ge_u32 s2, 256\ns_cbranch_scc1 {L('end')}")
    e(f"s_load_dwordx2 s[4:5], s[0:1], {KA_X}")
    e(f"s_load_dwordx4 s[12:15], s[0:1], {KA_C}")
    e(f"s_load_dwordx4 s[8:11], s[0:1], {KA_DBG}")
    e(f"s_load_dwordx4 s[52:55], s[0:1], {KA_WIN}")
    e(f"s_load_dwordx2 s[56:57], s[0:1], {KA_WOUT}")
    e("v_and_b32 v1, 63, v0\nv_lshrrev_b32 v2, 6, v0\nv_readfirstlane_b32 s3, v2")
    e(f"s_cmp_ge_u32 s3, 8\ns_cbranch_scc1 {L('loader')}")
    e(f"s_cmp_ge_u32 s2, 160\ns_cbranch_scc1 {L('notfft')}")

    TB, OT, XL = 0, 512, VL
    e("s_and_b32 s16, s2, 7\ns_lshr_b32 s17, s2, 3")
    e("s_mul_i32 s18, s17, 205\ns_lshr_b32 s18, s18, 10")
    e("s_mul_i32 s19, s18, 5\ns_sub_u32 s19, s17, s19")
    e("s_lshl_b32 s16, s16, 2\ns_add_u32 s18, s16, s18")
    dma_rows1280_addr(k, 1, 4, 10, 40960)
    e("s_mul_i32 s20, s18, 1280")
    e(f"s_mul_i32 s21, s3, {8*40960}\ns_add_u32 s20, s20, s21")
    e(f"s_mul_i32 s21, s3, 10240\ns_add_u32 s21, s21, {XL}")
    e("s_waitcnt lgkmcnt(0)")
    ts(k, 1)
    srd(k, 24, 4, 0, S * 1280)
    dma_rows1280_issue(k, 4, 24, 20, 21, 22, 40960)
    srd(k, 28, 10, WS_V, SZ_V)
    e("v_and_b32 v10, 15, v1\nv_lshrrev_b32 v11, 4, v1")
    e("s_lshr_b32 s23, s3, 2\ns_lshl_b32 s23, s23, 4")
    e("v_add_u32 v12, s23, v10")
    e("v_cmp_eq_u32 vcc, 0, v12")
    e("v_cvt_f32_u32 v13, v12")
    e(f"v_mul_f32 v13, {fhex(1/64)}, v13")
    e("v_mov_b32 v14, 0.5")
    e("v_cndmask_b32 v14, v13, v14, vcc")
    e(f"v_mov_b32 v15, {fhex(0.25)}")
    e("v_cndmask_b32 v15, v15, 0, vcc")
    e("v_lshlrev_b32 v16, 2, v11\nv_cvt_f32_u32 v16, v16")
    e("v_mul_f32 v17, v13, v16")
    e("v_fma_f32 v18, v14, v16, v15")
    RE, IM = 32, 48
    for ks in range(2):
        for jj in range(8):
            c = 32 * ks + (jj % 4) + 16 * (jj // 4)
            i = 8 * ks + jj
            e(f"v_fmamk_f32 v{RE+i}, v13, {fhex(c)}, v17")
            e(f"v_fmamk_f32 v{IM+i}, v14, {fhex(c)}, v18")
    for i in range(16):
        e(f"v_cos_f32 v{RE+i}, v{RE+i}")
        e(f"v_cos_f32 v{IM+i}, v{IM+i}")
    e("v_lshrrev_b32 v20, 3, v1\nv_and_b32 v21, 7, v1")
    e("v_bfe_u32 v22, v20, 1, 1\nv_lshlrev_b32 v22, 3, v22")
    e("v_add_u32 v22, v22, v21\nv_lshlrev_b32 v22, 4, v22")
    e("v_mul_u32_u24 v23, 1280, v20\nv_add_u32 v22, v22, v23")
    e("v_add_u32 v22, s21, v22")
    e("v_xor_b32 v23, 128, v22")
    e("v_mov_b32 v24, 0x3f803f80")
    for i in range(4):
        e(f"v_mov_b32 v{26+i}, 0")
    e("s_waitcnt vmcnt(0)")
    for i in range(10):
        e(f"ds_read_b128 v[{64+4*i}:{67+4*i}], v{22 + i % 2} offset:{256*(i//2)}")
    for i in range(10):
        e(f"s_waitcnt lgkmcnt({9-i})")
        for d in range(4):
            r = 64 + 4 * i + d
            e(f"v_dot2_f32_bf16 v{26 + d % 2}, v{r}, v24, v{26 + d % 2}")
            e(f"v_dot2_f32_bf16 v{28 + d % 2}, v{r}, v{r}, v{28 + d % 2}")
    e("s_nop 2")
    e("v_add_f32 v26, v26, v27\nv_add_f32 v28, v28, v29")
    for m in ("quad_perm:[1,0,3,2]", "quad_perm:[2,3,0,1]", "row_half_mirror"):
        e(f"v_add_f32_dpp v26, v26, v26 {m} row_mask:0xf bank_mask:0xf")
        e(f"v_add_f32_dpp v28, v28, v28 {m} row_mask:0xf bank_mask:0xf")
    e(f"v_mul_f32 v26, {fhex(1/640)}, v26")
    e(f"v_mul_f32 v28, {fhex(1/640)}, v28")
    e("v_fma_f32 v28, -v26, v26, v28")
    e(f"v_add_f32 v28, {fhex(1e-5)}, v28")
    e("v_rsq_f32 v28, v28")
    e("v_sub_f32 v26, 0, v26")
    e("v_cvt_pk_bf16_f32 v26, v26, v26")
    e("s_lshl_b32 s22, s3, 3")
    e("v_add_u32 v20, s22, v20")
    e("v_lshlrev_b32 v21, 2, v20\nv_lshlrev_b32 v20, 1, v20")
    e(f"ds_write_b32 v21, v28 offset:{TB}")
    e(f"ds_write_b16 v20, v26 offset:{TB+256}")
    e("v_bfe_u32 v20, v1, 2, 2\nv_and_b32 v21, 3, v1")
    e("v_lshl_add_u32 v20, v11, 2, v20")
    e("s_and_b32 s22, s3, 3\ns_lshl_b32 s22, s22, 2")
    e("s_lshl_b32 s23, s19, 4\ns_add_u32 s22, s22, s23")
    e("v_add_u32 v21, s22, v21")
    e("v_and_b32 v22, 7, v20\nv_lshlrev_b32 v22, 1, v22")
    e("v_xor_b32 v21, v21, v22\nv_lshlrev_b32 v21, 4, v21")
    e(f"v_mul_u32_u24 v20, 1280, v20\nv_add_u32 v21, {XL}, v21\nv_add_u32 v20, v20, v21")
    e("v_lshlrev_b32 v21, 4, v11\nv_lshlrev_b32 v22, 3, v11")
    e("s_waitcnt lgkmcnt(0)\ns_barrier")
    RT, MF, DA = 64, 80, 88
    for ks in range(2):
        for h in range(2):
            e(f"ds_read_b128 v[{RT+8*ks+4*h}:{RT+8*ks+4*h+3}], v21 offset:{TB + (32*ks+16*h)*4}")
    for ks in range(2):
        for h in range(2):
            e(f"ds_read_b64 v[{MF+4*ks+2*h}:{MF+4*ks+2*h+1}], v22 offset:{TB + 256 + (32*ks+16*h)*2}")
    for u in range(2):
        for ks in range(2):
            for h in range(2):
                b = DA + 8 * u + 4 * ks + 2 * h
                e(f"ds_read_b64_tr_b16 v[{b}:{b+1}], v20 offset:{8*u + (32*ks+16*h)*1280}")
    e("s_waitcnt lgkmcnt(12)")
    for i in range(16):
        e(f"v_mul_f32 v{RE+i}, v{RE+i}, v{RT+i}")
        e(f"v_mul_f32 v{IM+i}, v{IM+i}, v{RT+i}")
    FR, FI = 104, 112
    for i in range(8):
        e(f"v_cvt_pk_bf16_f32 v{FR+i}, v{RE+2*i}, v{RE+2*i+1}")
        e(f"v_cvt_pk_bf16_f32 v{FI+i}, v{IM+2*i}, v{IM+2*i+1}")
    e("s_waitcnt lgkmcnt(8)")
    KR, KI = 120, 124
    e(f"v_mfma_f32_16x16x32_bf16 v[{KR}:{KR+3}], v[{MF}:{MF+3}], v[{FR}:{FR+3}], 0")
    e(f"v_mfma_f32_16x16x32_bf16 v[{KI}:{KI+3}], v[{MF}:{MF+3}], v[{FI}:{FI+3}], 0")
    e(f"v_mfma_f32_16x16x32_bf16 v[{KR}:{KR+3}], v[{MF+4}:{MF+7}], v[{FR+4}:{FR+7}], v[{KR}:{KR+3}]")
    e(f"v_mfma_f32_16x16x32_bf16 v[{KI}:{KI+3}], v[{MF+4}:{MF+7}], v[{FI+4}:{FI+7}], v[{KI}:{KI+3}]")
    e("s_waitcnt lgkmcnt(0)")
    AC = 32
    for ks in range(2):
        for u in range(2):
            for c, (fm, kk) in enumerate(((FR, KR), (FI, KI))):
                a = AC + 8 * c + 4 * u
                src = f"v[{kk}:{kk+3}]" if ks == 0 else f"v[{a}:{a+3}]"
                d = DA + 8 * u + 4 * ks
                e(f"v_mfma_f32_16x16x32_bf16 v[{a}:{a+3}], v[{d}:{d+3}], v[{fm+4*ks}:{fm+4*ks+3}], {src}")
    e("v_and_b32 v20, 7, v12\nv_lshlrev_b32 v20, 1, v20")
    e("s_and_b32 s22, s3, 3\ns_lshl_b32 s22, s22, 2")
    e("v_add_u32 v21, s22, v11\nv_xor_b32 v21, v21, v20\nv_lshlrev_b32 v21, 4, v21")
    e("v_lshl_add_u32 v21, v12, 9, v21")
    for c in range(2):
        for i in range(4):
            e(f"v_cvt_pk_bf16_f32 v{48+4*c+i}, v{AC+8*c+2*i}, v{AC+8*c+2*i+1}")
    for c in range(2):
        e(f"ds_write_b128 v21, v[{48+4*c}:{51+4*c}] offset:{OT + 256*c}")
    e("s_lshl_b32 s22, s3, 3")
    e("v_add_u32 v22, s22, v11")
    e("s_and_b32 s23, s18, 7\ns_lshl_b32 s23, s23, 1\nv_xor_b32 v28, s23, v10")
    for a in range(2):
        if a:
            e("v_add_u32 v22, 4, v22")
        e("v_bfe_u32 v23, v22, 1, 3\nv_lshlrev_b32 v23, 1, v23")
        e("v_xor_b32 v23, v23, v10\nv_lshlrev_b32 v23, 4, v23")
        e(f"v_lshl_add_u32 v{24+a}, v22, 8, v23")
        e(f"v_mul_u32_u24 v23, 40960, v22")
        e(f"v_lshl_add_u32 v{26+a}, v28, 4, v23")
    e("s_mul_i32 s22, s18, 1280\ns_lshl_b32 s23, s19, 8\ns_add_u32 s22, s22, s23")
    e("s_waitcnt lgkmcnt(0)\ns_barrier")
    for a in range(2):
        e(f"ds_read_b128 v[{56+4*a}:{59+4*a}], v{24+a} offset:{OT}")
    for a in range(2):
        e(f"s_waitcnt lgkmcnt({1-a})")
        e(f"buffer_store_dwordx4 v[{56+4*a}:{59+4*a}], v{26+a}, s[28:31], s22 offen sc1")
    e(f"s_branch {L('p1done')}")

    e(f"{L('notfft')}:")
    e(f"s_cmp_ge_u32 s2, 220\ns_cbranch_scc1 {L('notmod')}")
    e("s_sub_u32 s16, s2, 160")
    e("v_lshrrev_b32 v10, 3, v1\nv_and_b32 v11, 7, v1")
    e("s_mul_i32 s17, s3, 80")
    e("v_add_u32 v12, s17, v10")
    e("v_mul_u32_u24 v13, 7680, v12\nv_lshl_add_u32 v13, v11, 4, v13")
    e("v_lshlrev_b32 v12, 1, v12")
    e("s_lshl_b32 s17, s16, 7")
    e("s_waitcnt lgkmcnt(0)")
    srd(k, 24, 12, 0, 1280)
    srd(k, 28, 14, 0, 640 * 7680)
    for i in range(10):
        e(f"buffer_load_ushort v{20+i}, v12, s[24:27], 0 offen offset:{16*i}")
    for i in range(10):
        e(f"s_add_u32 s18, s17, {i*8*7680}")
        e(f"buffer_load_dwordx4 v[{64+4*i}:{67+4*i}], v13, s[28:31], s18 offen")
    srd(k, 32, 10, WS_MOD, SZ_MOD)
    for j in range(8):
        e(f"v_mov_b32 v{50+j}, 0")
    e("s_waitcnt vmcnt(10)")
    for i in range(10):
        e(f"v_lshlrev_b32 v{20+i}, 16, v{20+i}")
    for i in range(10):
        e(f"v_mul_f32 v{30+i}, {fhex(-1.4426950408889634)}, v{20+i}")
    for i in range(10):
        e(f"v_exp_f32 v{30+i}, v{30+i}")
    for i in range(10):
        e(f"v_add_f32 v{30+i}, 1.0, v{30+i}")
    for i in range(10):
        e(f"v_rcp_f32 v{30+i}, v{30+i}")
    for i in range(10):
        e(f"v_mul_f32 v{20+i}, v{20+i}, v{30+i}")
    for i in range(10):
        e(f"v_cvt_pk_bf16_f32 v{30+i}, v{20+i}, 0")
        e(f"v_cvt_pk_bf16_f32 v{40+i}, 0, v{20+i}")
    for i in range(10):
        e(f"s_waitcnt vmcnt({9-i})")
        for d in range(4):
            e(f"v_dot2_f32_bf16 v{50+2*d}, v{64+4*i+d}, v{30+i}, v{50+2*d}")
            e(f"v_dot2_f32_bf16 v{51+2*d}, v{64+4*i+d}, v{40+i}, v{51+2*d}")
    e("s_nop 2")
    for j in range(4):
        e(f"v_permlane32_swap_b32 v{50+j}, v{54+j}")
    for j in range(4):
        e(f"v_add_f32 v{50+j}, v{50+j}, v{54+j}")
    for j in range(2):
        e(f"v_permlane16_swap_b32 v{50+j}, v{52+j}")
    for j in range(2):
        e(f"v_add_f32 v{50+j}, v{50+j}, v{52+j}")
    e("v_bfe_u32 v14, v1, 3, 1\ns_lshl_b32 s18, s3, 1\nv_add_u32 v14, s18, v14\nv_lshlrev_b32 v14, 8, v14")
    e("v_lshrrev_b32 v15, 4, v1\nv_lshlrev_b32 v15, 3, v15\nv_lshl_add_u32 v15, v11, 5, v15\nv_add_u32 v14, v14, v15")
    e("ds_write_b64 v14, v[50:51]")
    e("s_waitcnt lgkmcnt(0)\ns_barrier")
    e(f"s_cmp_lg_u32 s3, 0\ns_cbranch_scc1 {L('p1done')}")
    e("v_lshlrev_b32 v14, 2, v1")
    for p in range(16):
        e(f"ds_read_b32 v{64+p}, v14 offset:{256*p}")
    e("s_waitcnt lgkmcnt(0)")
    for st in (8, 4, 2, 1):
        for p in range(st):
            e(f"v_add_f32 v{64+p}, v{64+p}, v{64+p+st}")
    e("v_cvt_pk_bf16_f32 v64, 0, v64")
    e("s_mul_i32 s18, s16, 205\ns_lshr_b32 s18, s18, 11")
    e("s_cmp_eq_u32 s18, 1\ns_cselect_b32 s19, 1.0, 0")
    e("s_cmp_eq_u32 s18, 4\ns_cselect_b32 s19, 1.0, s19")
    e("v_add_f32 v64, s19, v64")
    e("v_cvt_pk_bf16_f32 v64, 0, v64")
    e("s_lshl_b32 s18, s16, 8")
    e("buffer_store_dword v64, v14, s[32:35], s18 offen sc1")
    e(f"s_branch {L('p1done')}")

    e(f"{L('notmod')}:")
    e(f"s_waitcnt lgkmcnt(0)\ns_cmp_ge_u32 s2, 228\ns_cbranch_scc1 {L('p1done')}")
    e("s_sub_u32 s16, s2, 220\ns_mul_i32 s16, s16, 7168\nv_lshlrev_b32 v10, 4, v0")
    for i in range(4):
        e(f"v_mov_b32 v{12+i}, 0")
    e("v_cmp_gt_u32 vcc, 0x1c0, v0\nv_cndmask_b32 v10, 0x40000000, v10, vcc")
    srd(k, 24, 10, WS_STATS, SZ_STATS + SZ_FLAG)
    e("buffer_store_dwordx4 v[12:15], v10, s[24:27], s16 offen sc1")
    srd(k, 28, 8, 0, 256)
    e(f"v_mov_b32 v13, 1\ns_waitcnt vmcnt(0)\ns_barrier\ns_cmp_lg_u32 s3, 0\ns_cbranch_scc1 {L('p1done')}")
    e("s_mov_b64 exec, 1\nbuffer_atomic_add v13, v12, s[28:31], 0 offen sc1\ns_mov_b64 exec, -1")
    e(f"{L('p1done')}:")
    ts(k, 2)

    TB = TB2
    e("s_and_b32 s14, s2, 7\ns_lshr_b32 s15, s2, 3")
    srd(k, 28, 10, WS_FLAG, SZ_FLAG)
    srd(k, 32, 8, 0, 256)
    e("s_and_b32 s22, s15, 15\ns_lshl_b32 s22, s22, 7\nv_lshl_add_u32 v46, v1, 11, s22\ns_lshl_b32 s22, s14, 11\nv_lshl_add_u32 v47, v1, 7, s22")
    e("v_mov_b32 v48, 1\nv_mov_b32 v49, 0")

    def signal(tag, off, first):
        e("s_waitcnt vmcnt(0)\ns_barrier")
        ts(k, 3 if first else 7)
        e(f"s_cmp_lg_u32 s3, 0\ns_cbranch_scc1 {L(tag + 's')}\ns_mov_b32 s46, 0\ns_movk_i32 s47, {off}")
        if first:
            e("s_mov_b64 exec, 1")
            e(f"{L(tag + 'z')}:")
            e("buffer_load_dword v2, v49, s[32:35], 0 offen sc0 sc1\ns_add_u32 s46, s46, 1\ns_waitcnt vmcnt(0)")
            e(f"v_cmp_gt_u32 vcc, 8, v2\ns_cbranch_vccz {L(tag + 'zd')}\ns_cmp_lt_u32 s46, 0x400000\ns_cbranch_scc1 {L(tag + 'z')}")
            e(f"{L(tag + 'zd')}:")
        e("s_mov_b64 exec, 0xff\nbuffer_atomic_add v48, v46, s[28:31], s47 offen sc1\ns_mov_b64 exec, -1")
        if first:
            e(f"s_cmp_lt_u32 s2, 228\ns_cbranch_scc1 {L(tag + 's')}")
            srd(k, 36, 52, 0, 640 * 3456)
            srd(k, 40, 56, 0, 864 * 1280)
            e("s_sub_u32 s22, s2, 228\ns_lshl_b32 s22, s22, 13\nv_lshlrev_b32 v2, 7, v1")
            for i in range(10):
                e(f"s_add_u32 s23, s22, {28*8192*i}\nbuffer_load_dword v55, v2, s[36:39], s23 offen")
                if i < 5:
                    e("buffer_load_dword v55, v2, s[40:43], s23 offen")
        e(f"{L(tag + 's')}:")

    def wait(tag, first):
        e(f"s_cmp_lg_u32 s3, 0\ns_cbranch_scc1 {L(tag + 'go')}\ns_mov_b64 exec, 0xffff")
        e(f"{L(tag + 'p')}:")
        e("buffer_load_dword v2, v47, s[28:31], s47 offen sc0 sc1\ns_add_u32 s46, s46, 1\ns_waitcnt vmcnt(0)")
        e(f"v_cmp_gt_u32 vcc, 16, v2\ns_cbranch_vccz {L(tag + 'd')}\ns_cmp_lt_u32 s46, 0x400000\ns_cbranch_scc1 {L(tag + 'p')}")
        e(f"{L(tag + 'd')}:")
        e("s_mov_b64 exec, -1")
        e(f"{L(tag + 'go')}:")
        e("s_waitcnt vmcnt(0)\ns_barrier")
        ts(k, 4 if first else 8)

    signal("h1", FB1, True)
    e("s_lshl_b32 s16, s14, 2\ns_lshr_b32 s18, s15, 3\ns_add_u32 s16, s16, s18")
    e("s_and_b32 s17, s15, 7")
    e("v_lshlrev_b32 v9, 4, v1")
    srd(k, 36, 4, 0, S * 1280)
    e("s_lshl_b32 s18, s17, 8\ns_add_u32 s18, s18, s16")
    e("s_mov_b32 s19, 1.0\ns_mov_b32 s20, 1.0")
    e(f"s_mov_b32 s21, {fhex(-0.25)}")
    e(f"s_cmp_lg_u32 s16, 0\ns_cbranch_scc1 {L('par')}")
    e("s_cmp_ge_u32 s17, 4")
    e("s_cselect_b32 s19, 0, 1.0\ns_cselect_b32 s20, 1.0, 0\ns_cselect_b32 s22, 992, 0")
    e("s_sub_u32 s18, s18, s22\ns_mov_b32 s21, 0")
    e(f"{L('par')}:")
    e("s_and_b32 s44, s3, 3\ns_lshl_b32 s42, s44, 6\ns_add_u32 s42, s42, s18")
    e("s_lshr_b32 s43, s3, 2\ns_sub_u32 s45, 2048, s42")
    e("s_cmp_eq_u32 s43, 1\ns_cselect_b32 s42, s45, s42")
    e("s_cmp_eq_u32 s42, 2048")
    e("s_cselect_b32 s42, 1024, s42\ns_cselect_b32 s43, 0, s43\ns_cselect_b32 s44, 4, s44")
    e("s_mul_i32 s45, s42, 1280")
    CA, FA, TW, FB, X, GA, CB, SB = 104, 136, 144, 104, 50, 128, 138, 148
    e("v_lshlrev_b32 v44, 3, v1\nv_lshlrev_b32 v43, 2, v1")
    e(f"buffer_load_dwordx2 v[{X}:{X+1}], v44, s[36:39], s45 offen")
    e(f"buffer_load_dwordx2 v[{X+2}:{X+3}], v44, s[36:39], s45 offen offset:512")
    e(f"buffer_load_dword v{X+4}, v43, s[36:39], s45 offen offset:1024")
    e("v_and_b32 v10, 15, v1\nv_lshrrev_b32 v11, 4, v1")
    e("v_lshrrev_b32 v14, 2, v10\nv_and_b32 v15, 3, v10")
    e("s_lshl_b32 s22, s3, 3\nv_add_u32 v16, s22, v15\nv_add_u32 v17, 4, v16")
    e(f"s_cmp_lt_u32 s3, 5\ns_cbranch_scc1 {L('pa')}")
    e("s_sub_u32 s22, s3, 5\ns_lshl_b32 s22, s22, 4")
    e("v_mov_b32 v14, 4\nv_add_u32 v16, s22, v10\nv_min_u32 v16, 39, v16\nv_mov_b32 v17, v16")
    e(f"{L('pa')}:")
    RA, TA, TWA = 20, 22, 24
    for r in range(2):
        e(f"v_lshlrev_b32 v18, 7, v{16+r}\nv_lshl_add_u32 v{TWA+r}, v11, 4, v18")
        e(f"v_mul_u32_u24 v18, {HJ}, v14\nv_mul_u32_u24 v19, 80, v{16+r}\nv_add_u32 v18, v18, v19")
        e(f"v_lshl_add_u32 v{RA+r}, v11, 4, v18")
        e(f"v_mul_u32_u24 v18, {TJ}, v14\nv_mul_u32_u24 v19, {2*TE}, v11\nv_add_u32 v18, v18, v19")
        e(f"v_lshl_add_u32 v{TA+r}, v{16+r}, 2, v18")
    RB, RBC, YA, YMA = 26, 28, 4, 30
    for r in range(2):
        e(f"s_add_u32 s22, s3, {8*r}\ns_min_u32 s22, s22, 14")
        e("s_mul_i32 s23, s22, 86\ns_lshr_b32 s23, s23, 8")
        e("s_mul_i32 s40, s23, 3\ns_sub_u32 s40, s22, s40")
        e(f"s_mul_i32 s41, s40, 3072\nv_add_u32 v{6+r}, s41, v9")
        e("s_lshl_b32 s41, s23, 2")
        e("v_lshrrev_b32 v2, 2, v10\nv_and_b32 v3, 3, v10\nv_add_u32 v3, s41, v3")
        e(f"s_cmp_lt_u32 s23, 4\ns_cbranch_scc1 {L('pb%d' % r)}")
        e("v_mov_b32 v2, 4\nv_mov_b32 v3, v10")
        e(f"{L('pb%d' % r)}:")
        e(f"v_lshlrev_b32 v19, 8, v11\nv_lshl_add_u32 v19, v3, 2, v19\ns_lshl_b32 s41, s40, 10\nv_add_u32 v19, s41, v19\nv_mul_u32_u24 v18, {YJ}, v2")
        e(f"v_add_u32 v{YA+r}, v18, v19\nv_sub_u32 v18, v18, v19\nv_add_u32 v{YMA+r}, {YM + 3072 - 192}, v18")
        e(f"v_mul_u32_u24 v2, {TJ}, v2\nv_mul_u32_u24 v3, {TE}, v3\nv_add_u32 v2, v2, v3")
        e(f"v_lshl_add_u32 v{RB+r}, v11, 4, v2")
        e(f"v_and_b32 v3, 1, v11\nv_lshl_add_u32 v{RBC+r}, v3, 4, v2")
    MF = 56
    e("v_lshrrev_b32 v2, 1, v10\nv_and_b32 v3, 1, v10")
    e("v_lshlrev_b32 v12, 6, v2\nv_add_u32 v12, s18, v12")
    e("v_cmp_eq_u32 vcc, 4, v2\nv_mov_b32 v13, 1024\nv_cndmask_b32 v12, v12, v13, vcc")
    e(f"v_cvt_f32_u32 v12, v12\nv_mul_f32 v12, {fhex(1/2048)}, v12")
    e(f"v_cvt_f32_u32 v3, v3\nv_mul_f32 v3, {fhex(0.25)}, v3")
    e("v_lshlrev_b32 v13, 2, v11\nv_cvt_f32_u32 v13, v13\nv_fma_f32 v13, v12, v13, v3")
    MT = 64
    for jj in range(8):
        c = (jj % 4) + 16 * (jj // 4)
        e(f"v_fmamk_f32 v{MT+jj}, v12, {fhex(c)}, v13")
        e(f"v_add_f32 v{MT+8+jj}, s21, v{MT+jj}")
    for i in range(16):
        e(f"v_cos_f32 v{MT+i}, v{MT+i}")
    for i in range(16):
        e(f"v_mul_f32 v{MT+i}, s{19 + i // 8}, v{MT+i}")
    for i in range(8):
        e(f"v_cvt_pk_bf16_f32 v{MF+i}, v{MT+2*i}, v{MT+2*i+1}")
    TR, HW = 32, 37
    e("v_lshrrev_b32 v2, 2, v1\nv_and_b32 v3, 3, v1")
    e("v_and_b32 v12, 7, v2\nv_lshlrev_b32 v12, 1, v12")
    e(f"v_mul_u32_u24 v2, 1280, v2\nv_and_b32 v13, 1, v3\nv_lshl_add_u32 v2, v13, 3, v2\nv_add_u32 v2, {VL}, v2")
    e("s_mul_i32 s22, s3, 10\nv_lshrrev_b32 v3, 1, v3\nv_add_u32 v3, s22, v3")
    for u in range(5):
        e(f"v_add_u32 v13, {2*u}, v3\nv_xor_b32 v13, v13, v12\nv_lshl_add_u32 v{TR+u}, v13, 4, v2")
    e(f"s_mul_i32 s22, s3, 80\nv_add_u32 v2, s22, v10\nv_mul_u32_u24 v3, {2*HJ}, v11")
    e(f"v_lshlrev_b32 v8, 2, v2\nv_add_u32 v8, {MODL}, v8\nv_add_u32 v42, {MODL}, v9\nv_add_u32 v15, {MODL}, v44")
    for u in range(5):
        e(f"v_add_u32 v12, {16*u}, v2\nv_mul_u32_u24 v13, 205, v12\nv_lshrrev_b32 v13, 13, v13")
        e(f"v_mul_u32_u24 v18, 40, v13\nv_sub_u32 v12, v12, v18\nv_mul_u32_u24 v12, 80, v12")
        e(f"v_lshl_add_u32 v12, v13, 2, v12\nv_add_u32 v{HW+u}, v12, v3")
    e(f"s_cmp_eq_u32 s2, 0\ns_cselect_b32 s22, {fhex(2048.0)}, 0")
    e("v_cmp_eq_u32 vcc, 0, v11\nv_mov_b32 v2, s22\nv_cndmask_b32 v45, 0, v2, vcc")
    e(f"s_mul_i32 s22, s44, {YJ}\ns_cmp_eq_u32 s43, 1\ns_cselect_b32 s40, {YM + 512}, {YB}\ns_add_u32 s22, s22, s40")
    e("v_add_u32 v16, s22, v9\nv_add_u32 v17, s22, v44")
    srd(k, 24, 10, WS_X1, SZ_X1)
    srd(k, 36, 10, WS_H2, SZ_H2)

    wait("h1", True)
    e("s_barrier")
    ts(k, 5)
    DA = 64
    for u in range(5):
        for ks in range(2):
            for h in range(2):
                b = DA + 8 * u + 4 * ks + 2 * h
                e(f"ds_read_b64_tr_b16 v[{b}:{b+1}], v{TR+u} offset:{(32*ks+16*h)*1280}")
        e(f"ds_read2st64_b32 v[{CA+2*u}:{CA+2*u+1}], v8 offset0:0 offset1:10")
        if u < 4:
            e("v_add_u32 v8, 64, v8")
        if u >= 2:
            uu = u - 2
            e("s_waitcnt lgkmcnt(10)")
            step1(e, uu, DA, MF)
    for uu in (3, 4):
        e(f"s_waitcnt lgkmcnt({5*(4-uu)})")
        step1(e, uu, DA, MF)
    for a in range(2):
        e(f"ds_read_b128 v[{FA+4*a}:{FA+4*a+3}], v9 offset:{TABL + TAB_FA + 1024*a}")
    for r in range(2):
        for a in range(2):
            b = TW + 8 * r + 4 * a
            e(f"ds_read_b128 v[{b}:{b+3}], v{TWA+r} offset:{TABL + TAB_TW + 64*a}")
    for u in range(5):
        a = ACCR(u)
        sa, ca = CA + 2 * u, CA + 2 * u + 1
        e(f"v_mul_f32 v{sa}, v{sa}, v45")
        e(f"v_fma_f32 v{a}, v{a}, v{ca}, v{sa}")
        for i in range(1, 4):
            e(f"v_mul_f32 v{a+i}, v{a+i}, v{ca}")
        e(f"v_cvt_pk_bf16_f32 v{a}, v{a}, v{a+1}")
        e(f"v_cvt_pk_bf16_f32 v{a+2}, v{a+2}, v{a+3}")
    e("s_mov_b32 exec_hi, 0xffff")
    for u in range(5):
        e(f"ds_write_b32 v{HW+u}, v{ACCR(u)} offset:{HB}")
    e("s_mov_b32 exec_hi, 0")
    for u in range(5):
        e(f"ds_write_b32 v{HW+u}, v{ACCR(u)+2} offset:{HB+HJ}")
    e("s_mov_b32 exec_hi, -1")
    e("s_waitcnt lgkmcnt(0)\ns_barrier")
    for r in range(2):
        e(f"ds_read_b128 v[{64+4*r}:{67+4*r}], v{RA+r} offset:{HB}")
    for r in range(2):
        for ks in range(3):
            b = FB + 12 * r + 4 * ks
            e(f"ds_read_b128 v[{b}:{b+3}], v{6+r} offset:{TABL + TAB_FB + 1024*ks}")
    for r in range(2):
        e(f"s_waitcnt lgkmcnt({7-r})")
        for a in range(2):
            d = 72 + 8 * r + 4 * a
            e(f"v_mfma_f32_16x16x32_bf16 v[{d}:{d+3}], v[{FA+4*a}:{FA+4*a+3}], v[{64+4*r}:{67+4*r}], 0")
    for r in range(2):
        for a in range(2):
            for p in range(2):
                br, bi = 72 + 8 * r + 4 * a + 2 * p, 73 + 8 * r + 4 * a + 2 * p
                tc, tsn = TW + 8 * r + 4 * a + 2 * p, TW + 8 * r + 4 * a + 2 * p + 1
                t = 88 + 8 * r + 4 * a + 2 * p
                e(f"v_mul_f32 v{t}, v{br}, v{tc}")
                e(f"v_mul_f32 v{t+1}, v{bi}, v{tc}")
                e(f"v_fma_f32 v{t}, v{bi}, v{tsn}, v{t}")
                e(f"v_fma_f32 v{t+1}, -v{br}, v{tsn}, v{t+1}")
                e(f"v_cvt_pk_bf16_f32 v{t}, v{t}, v{t+1}")
                e(f"ds_write_b32 v{TA+r}, v{t} offset:{TB + (8*a+p)*TE}")
    e("s_waitcnt lgkmcnt(0)\ns_barrier")
    for r in range(2):
        for ks in range(3):
            b = 64 + 12 * r + 4 * ks
            e(f"ds_read_b128 v[{b}:{b+3}], v{(RB if ks < 2 else RBC)+r} offset:{TB + 64*ks}")
    for (reg, ch) in ((GA, 2), (CB, 4), (SB, 3)):
        e(f"ds_read_b128 v[{reg}:{reg+3}], v42 offset:{ch*2560}")
        e(f"ds_read_b128 v[{reg+4}:{reg+7}], v42 offset:{ch*2560+1024}")
        e(f"ds_read_b64 v[{reg+8}:{reg+9}], v15 offset:{ch*2560+2048}")
    for r in range(2):
        for ks in range(3):
            b = 64 + 12 * r + 4 * ks
            d = 88 + 4 * r
            e(f"s_waitcnt lgkmcnt({9 + 5 - 3*r - ks})")
            src = "0" if ks == 0 else f"v[{d}:{d+3}]"
            e(f"v_mfma_f32_16x16x32_bf16 v[{d}:{d+3}], v[{FB+12*r+4*ks}:{FB+12*r+4*ks+3}], v[{b}:{b+3}], {src}")
    XF = 158
    for u in range(5):
        e(f"v_lshlrev_b32 v{XF+2*u}, 16, v{X+u}")
        e(f"v_and_b32 v{XF+2*u+1}, 0xffff0000, v{X+u}")
    for r in range(2):
        for i in range(4):
            e(f"ds_write_b32 v{YA+r}, v{88+4*r+i} offset:{YB + 64*i}")
            e(f"ds_write_b32 v{YMA+r}, v{88+4*r+i} offset:{64*(3-i)}")
    e("s_waitcnt lgkmcnt(0)\ns_barrier")
    Y = 64
    e(f"ds_read_b128 v[{Y}:{Y+3}], v16\nds_read_b128 v[{Y+4}:{Y+7}], v16 offset:1024\nds_read_b64 v[{Y+8}:{Y+9}], v17 offset:2048")
    e("s_waitcnt lgkmcnt(0)")
    for i in range(10):
        e(f"v_fma_f32 v{XF+i}, v{GA+i}, v{Y+i}, v{XF+i}")
    for u in range(5):
        e(f"v_cvt_pk_bf16_f32 v{X+u}, v{XF+2*u}, v{XF+2*u+1}")

    def store3(R, sd):
        e(f"buffer_store_dwordx2 v[{R}:{R+1}], v44, s[{sd}:{sd+3}], s45 offen sc1")
        e(f"buffer_store_dwordx2 v[{R+2}:{R+3}], v44, s[{sd}:{sd+3}], s45 offen offset:512 sc1")
        e(f"buffer_store_dword v{R+4}, v43, s[{sd}:{sd+3}], s45 offen offset:1024 sc1")

    store3(X, 24)
    for u in range(5):
        e(f"v_lshlrev_b32 v{XF+2*u}, 16, v{X+u}")
        e(f"v_and_b32 v{XF+2*u+1}, 0xffff0000, v{X+u}")
    for i in range(5):
        e(f"v_add_f32 v{Y+i}, v{XF+2*i}, v{XF+2*i+1}")
    e(f"v_add_f32 v{Y}, v{Y}, v{Y+1}\nv_add_f32 v{Y+2}, v{Y+2}, v{Y+3}\nv_add_f32 v{Y}, v{Y}, v{Y+4}\nv_add_f32 v{Y}, v{Y}, v{Y+2}")
    wave_allsum(k, Y, Y + 1)
    e(f"v_mul_f32 v{Y}, {fhex(-1/640)}, v{Y}")
    for i in range(10):
        e(f"v_add_f32 v{XF+i}, v{XF+i}, v{Y}")
    e(f"v_mul_f32 v{Y}, v{XF}, v{XF}\nv_mul_f32 v{Y+1}, v{XF+1}, v{XF+1}")
    for i in range(2, 10):
        e(f"v_fmac_f32 v{Y + i % 2}, v{XF+i}, v{XF+i}")
    e(f"v_add_f32 v{Y}, v{Y}, v{Y+1}")
    wave_allsum(k, Y, Y + 1)
    e(f"v_mov_b32 v{Y+1}, {fhex(1e-5)}\nv_fmamk_f32 v{Y}, v{Y}, {fhex(1/640)}, v{Y+1}")
    e(f"v_rsq_f32 v{Y}, v{Y}")
    for i in range(10):
        e(f"v_mul_f32 v{XF+i}, v{XF+i}, v{Y}")
    for i in range(10):
        e(f"v_fma_f32 v{XF+i}, v{XF+i}, v{CB+i}, v{SB+i}")
    for u in range(5):
        e(f"v_cvt_pk_bf16_f32 v{Y+4+u}, v{XF+2*u}, v{XF+2*u+1}")
    store3(Y + 4, 36)
    ts(k, 6)

    signal("h2", FB2, False)
    e("s_and_b32 s18, s14, 3\ns_lshl_b32 s18, s18, 2\ns_and_b32 s19, s15, 3\ns_add_u32 s18, s18, s19")
    e("s_lshr_b32 s19, s14, 2\ns_lshl_b32 s19, s19, 2\ns_bfe_u32 s20, s15, 0x20002\ns_add_u32 s19, s19, s20")
    e("s_lshr_b32 s20, s15, 4\ns_lshl_b32 s20, s20, 3\ns_add_u32 s19, s19, s20")
    e("v_mov_b32 v5, v9\nv_lshrrev_b32 v15, 2, v10\nv_and_b32 v16, 3, v10")
    e("v_lshrrev_b32 v17, 1, v16\nv_lshlrev_b32 v17, 2, v17\nv_and_b32 v18, 2, v15\nv_or_b32 v17, v17, v18")
    e("v_xor_b32 v17, v17, v11\nv_lshlrev_b32 v17, 4, v17")
    e("v_lshl_add_u32 v16, v15, 3, v16\nv_lshl_add_u32 v6, v16, 7, v17")
    e("s_and_b32 s23, s3, 3\ns_lshl_b32 s23, s23, 12\nv_add_u32 v6, s23, v6\nv_xor_b32 v7, 64, v6")
    e("v_lshrrev_b32 v12, 2, v1\nv_mul_u32_u24 v12, 224, v12\nv_and_b32 v13, 3, v1\nv_lshl_add_u32 v12, v13, 3, v12")
    e(f"s_lshr_b32 s23, s3, 2\ns_lshl_b32 s23, s23, 7\nv_add_u32 v12, s23, v12")
    e(f"v_add_u32 v13, {BS[0]}, v12\nv_add_u32 v14, {BS[4]}, v12")
    e(f"v_mov_b32 v15, {fhex(-C2)}")
    e("s_lshl_b32 s20, s18, 2\ns_and_b32 s21, s3, 3\ns_add_u32 s20, s20, s21")
    e("s_and_b32 s21, s19, 7")
    wait("h2", False)
    AC, FRG = 32, 64

    def variant(z2, nt, tag):
        if z2:
            srd(k, 24, 10, WS_Z2P, SZ_Z2P)
            srd(k, 28, 10, WS_STATS, SZ_STATS)
            e("s_lshl_b32 s22, s21, 6\ns_add_u32 s22, s22, s20")
        else:
            srd(k, 24, 10, WS_Z1P, SZ_Z1P)
            e("s_lshl_b32 s22, s20, 3\ns_add_u32 s22, s22, s21")
        e(f"s_mul_i32 s22, s22, 7168")
        if nt == 3:
            e("s_add_u32 s22, s22, 4096")

        def reads(kap):
            st, ks = divmod(kap, 2)
            sl = BSL[st]
            reg, off = (13, BS[sl] - BS[0]) if sl < 4 else (14, BS[sl] - BS[4])
            b = FRG + 24 * (kap % 2)
            out = [f"ds_read_b128 v[{b+4*mt}:{b+4*mt+3}], v{6+ks} offset:{(st % NA)*16384 + 512*mt}" for mt in range(2)]
            for j in range(nt):
                for h in range(2):
                    out.append(f"ds_read_b64_tr_b16 v[{b+8+4*j+2*h}:{b+9+4*j+2*h}], v{reg} offset:{off + 7168*ks + 3584*h + 32*j}")
            return out

        e("s_barrier")
        ts(k, 9)
        for x in reads(0):
            e(x)
        for kap in range(20):
            nxt = kap + 1
            e("s_waitcnt lgkmcnt(0)")
            if nxt < 20 and nxt % 2 == 0:
                e("s_barrier")
            rd = reads(nxt) if nxt < 20 else []
            b = FRG + 24 * (kap % 2)
            for j in range(nt):
                for mt in range(2):
                    a = AC + 8 * j + 4 * mt
                    h, w = f"v[{b+4*mt}:{b+4*mt+3}]", f"v[{b+8+4*j}:{b+11+4*j}]"
                    src = "0" if kap == 0 else f"v[{a}:{a+3}]"
                    for _ in range(2):
                        if rd:
                            e(rd.pop(0))
                    e(f"v_mfma_f32_16x16x32_bf16 v[{a}:{a+3}], {h if z2 else w}, {w if z2 else h}, {src}")
        ts(k, 10)
        ST = 96
        stores = []
        for j in range(nt):
            regs = [AC + 8 * j + i for i in range(8)]
            gelu(e, regs, FRG, 15)
            if z2 and nt == 3 and j == 2:
                e("s_and_b32 s23, s19, 1\ns_cmp_eq_u32 s23, 1\ns_cselect_b32 s40, 0x00ff00ff, -1\ns_mov_b32 s41, s40")
                for r in regs:
                    e(f"v_cndmask_b32 v{r}, 0, v{r}, s[40:41]")
            for i in range(4):
                e(f"v_cvt_pk_bf16_f32 v{FRG+8+4*j+i}, v{regs[2*i]}, v{regs[2*i+1]}")
            st_ = f"buffer_store_dwordx4 v[{FRG+8+4*j}:{FRG+11+4*j}], v5, s[24:27], s22 offen offset:{1024*j} sc1"
            if DEFER:
                stores.append(st_)
            else:
                e(st_)
            if z2:
                for i, r in enumerate(regs):
                    if j == 0:
                        e(f"v_mov_b32 v{ST+2*i}, v{r}\nv_mul_f32 v{ST+2*i+1}, v{r}, v{r}")
                    else:
                        e(f"v_add_f32 v{ST+2*i}, v{ST+2*i}, v{r}\nv_fmac_f32 v{ST+2*i+1}, v{r}, v{r}")
        if z2:
            m = 8
            for mask, dpp in ((0xff00ff00, "row_ror:8"), (0xf0f0f0f0, "row_half_mirror"),
                              (0xcccccccc, "quad_perm:[2,3,0,1]"), (0xaaaaaaaa, "quad_perm:[1,0,3,2]")):
                e(f"s_mov_b32 s40, 0x{mask:x}\ns_mov_b32 s41, s40")
                for i in range(m):
                    e(f"v_cndmask_b32 v{AC+i}, v{ST+i+m}, v{ST+i}, s[40:41]")
                for i in range(m):
                    e(f"v_cndmask_b32 v{ST+i}, v{ST+i}, v{ST+i+m}, s[40:41]")
                for i in range(m):
                    e(f"v_add_f32_dpp v{ST+i}, v{AC+i}, v{ST+i} {dpp} row_mask:0xf bank_mask:0xf")
                m //= 2
            e("v_lshlrev_b32 v2, 2, v1\ns_lshl_b32 s20, s20, 8")
            e(f"buffer_atomic_add_f32 v{ST}, v2, s[28:31], s20 offen")
        for st_ in stores:
            e(st_)
        e(f"s_branch {L('fin')}")

    e(f"s_cmp_ge_u32 s19, 8\ns_cbranch_scc1 {L('z2')}")
    e(f"s_cmp_ge_u32 s3, 4\ns_cbranch_scc1 {L('z1b')}")
    variant(False, 4, "z1a")
    e(f"{L('z1b')}:")
    variant(False, 3, "z1b")
    e(f"{L('z2')}:")
    e(f"s_cmp_ge_u32 s3, 4\ns_cbranch_scc1 {L('z2b')}")
    variant(True, 4, "z2a")
    e(f"{L('z2b')}:")
    variant(True, 3, "z2b")
    e(f"{L('fin')}:")
    ts_end(k, 0, 10, 120)
    e("s_endpgm")

    e(f"{L('loader')}:")
    e("s_sub_u32 s3, s3, 8\nv_lshlrev_b32 v5, 4, v1")
    code_srd(k, 24, "p2_tab", TAB_SZ)
    e(f"s_lshl_b32 s20, s3, 12\ns_add_u32 m0, s20, {TABL}")
    for i in range(4):
        e(f"buffer_load_dwordx4 v5, s[24:27], s20 offen offset:{1024*i} lds")
    code_srd(k, 28, "p1_kernel", "p2_tab-p1_kernel")
    e("s_lshl_b32 s21, s3, 13\nv_lshlrev_b32 v2, 7, v1\nbuffer_load_dword v20, v2, s[28:31], s21 offen\ns_add_u32 s21, s21, 32768\nbuffer_load_dword v21, v2, s[28:31], s21 offen")
    e("s_and_b32 s58, s2, 7\ns_lshr_b32 s59, s2, 3")
    e("s_lshl_b32 s16, s58, 2\ns_lshr_b32 s18, s59, 3\ns_add_u32 s16, s16, s18")
    e("s_and_b32 s18, s58, 3\ns_lshl_b32 s18, s18, 2\ns_and_b32 s19, s59, 3\ns_add_u32 s18, s18, s19")
    e("s_lshr_b32 s19, s58, 2\ns_lshl_b32 s19, s19, 2\ns_bfe_u32 s21, s59, 0x20002\ns_add_u32 s19, s19, s21")
    e("s_lshr_b32 s21, s59, 4\ns_lshl_b32 s21, s21, 3\ns_add_u32 s19, s19, s21")
    e("v_lshrrev_b32 v2, 3, v1\nv_and_b32 v3, 7, v1\nv_bfe_u32 v4, v2, 1, 1\nv_lshlrev_b32 v4, 2, v4")
    e("v_xor_b32 v4, v3, v4\nv_mul_u32_u24 v6, 1280, v2\nv_lshl_add_u32 v10, v4, 4, v6")
    e(f"v_add_u32 v11, {10240-1024}, v10\nv_xor_b32 v12, 32, v10\nv_add_u32 v12, {2*(10240-1024)}, v12\nv_add_u32 v13, {10240-1024}, v12")
    e("v_lshlrev_b32 v2, 11, v2\nv_lshl_add_u32 v22, v3, 7, v2\nv_add_u32 v23, 1024, v22")
    for i in range(4):
        e(f"s_add_u32 s21, s3, {4*i}\ns_cmp_ge_u32 s21, 7\ns_cselect_b32 s22, 7, 0\ns_cselect_b32 s23, {32*3456}, 0\ns_sub_u32 s21, s21, s22\ns_lshl_b32 s21, s21, 6")
        e("v_add_u32 v2, s21, v1\nv_mul_u32_u24 v3, 4682, v2\nv_lshrrev_b32 v3, 16, v3\nv_mul_u32_u24 v4, 14, v3\nv_sub_u32 v2, v2, v4")
        e("v_and_b32 v4, 3, v3\nv_bfe_u32 v6, v3, 2, 2\nv_lshl_add_u32 v4, v6, 3, v4\nv_lshrrev_b32 v6, 4, v3\nv_lshl_add_u32 v4, v6, 2, v4")
        e(f"v_mul_u32_u24 v4, 3456, v4\nv_lshl_add_u32 v4, v2, 4, v4\nv_add_u32 v{14+i}, s23, v4")
    e("s_mul_i32 s40, s2, 2341\ns_lshr_b32 s40, s40, 16\ns_mul_i32 s41, s40, 28\ns_sub_u32 s41, s2, s41")
    e("s_mul_i32 s22, s41, 37\ns_lshr_b32 s22, s22, 8\ns_mul_i32 s23, s22, 7\ns_sub_u32 s41, s41, s23")
    e("s_lshl_b32 s23, s41, 5\ns_cmp_ge_u32 s41, 3\ns_cselect_b32 s47, 16, 0\ns_add_u32 s23, s23, s47")
    e("s_cmp_eq_u32 s41, 6\ns_cselect_b32 s23, 96, s23\ns_cselect_b32 s47, 96, 0")
    e("s_mul_i32 s22, s22, 216\ns_add_u32 s23, s23, s22\ns_mul_i32 s23, s23, 1280\ns_mul_i32 s40, s40, 160\ns_add_u32 s48, s23, s40")
    for n in range(5):
        e(f"v_add_u32 v3, {64*n}, v1\nv_mul_u32_u24 v2, 6554, v3\nv_lshrrev_b32 v2, 16, v2\nv_mul_u32_u24 v4, 10, v2\nv_sub_u32 v3, v3, v4")
        e(f"v_lshrrev_b32 v4, 4, v2\nv_mul_u32_u24 v4, s47, v4\nv_add_u32 v2, v2, v4\nv_mul_u32_u24 v2, 1280, v2\nv_lshl_add_u32 v{24+n}, v3, 4, v2")
    e(f"v_lshrrev_b32 v2, 2, v1\nv_mul_u32_u24 v2, 160, v2\nv_and_b32 v3, 3, v1\nv_lshl_add_u32 v2, v3, 3, v2\nv_add_u32 v29, {WOS}, v2")
    e("s_lshr_b32 s40, s19, 1\ns_mul_i32 s40, s40, 432\ns_and_b32 s41, s19, 1\ns_mul_i32 s41, s41, 224\ns_add_u32 s49, s40, s41")
    e("s_lshl_b32 s50, s18, 2\ns_add_u32 s50, s50, s3\ns_mul_i32 s50, s50, 40960")
    e("s_lshl_b32 s22, s59, 2\ns_add_u32 s22, s22, s3\ns_lshl_b32 s22, s22, 13")
    e("s_and_b32 s51, s58, 3\ns_lshl_b32 s51, s51, 21\ns_add_u32 s51, s51, s22\ns_lshr_b32 s23, s58, 2\ns_lshl_b32 s23, s23, 20\ns_add_u32 s51, s51, s23")
    e(f"s_mul_i32 s21, s3, 20480\ns_mul_i32 s22, s16, 81920\ns_add_u32 s22, s22, s21\ns_add_u32 s21, s21, {VL}\ns_lshl_b32 s46, s3, 10")
    e("s_waitcnt lgkmcnt(0)")
    srd(k, 24, 10, WS_V, SZ_V)
    srd(k, 28, 10, WS_MOD, SZ_MOD)
    srd(k, 32, 52, 0, 640 * 3456)
    srd(k, 36, 56, 0, 864 * 1280)
    srd(k, 40, 54, 0, S * 4096)
    e(f"s_cmp_ge_u32 s2, 228\ns_cbranch_scc1 {L('lb0')}\ns_barrier\ns_cmp_ge_u32 s2, 160\ns_cbranch_scc1 {L('lb0')}\ns_barrier")
    e(f"{L('lb0')}:")
    e("s_barrier\ns_barrier")
    for g in range(5):
        e(f"s_add_u32 s23, s22, {4096*g}\ns_add_u32 m0, s21, {4096*g}")
        for i in range(4):
            e(f"buffer_load_dwordx4 v5, s[24:27], s23 offen offset:{1024*i} sc1 lds")
    e(f"s_add_u32 m0, s20, {MODL}")
    for i in range(4):
        e(f"buffer_load_dwordx4 v5, s[28:31], s20 offen offset:{1024*i} sc1 lds")
    srd(k, 24, 10, WS_H2, SZ_H2)
    srd(k, 28, 10, WS_WOUTP, SZ_WOUTP)
    e("s_waitcnt vmcnt(0)\ns_barrier")
    e(f"s_cmp_lg_u32 s3, 3\ns_cbranch_scc1 {L('nwo')}")
    for n in range(5):
        e(f"s_mov_b32 m0, {WOS + 1024*n}\nbuffer_load_dwordx4 v{24+n}, s[36:39], s48 offen lds")
    e(f"{L('nwo')}:")
    e("s_mov_b32 exec_hi, 0\nbuffer_load_dword v20, v22, s[40:43], s51 offen\ns_mov_b32 exec_hi, -1")
    nb_ = [0]

    def bdma(st):
        e(f"s_add_u32 s23, s49, {st*64*3456}")
        for i in range(4):
            if i == 3:
                nb_[0] += 1
                e(f"s_cmp_ge_u32 s3, 2\ns_cbranch_scc1 {L('b%d' % nb_[0])}")
            e(f"s_add_u32 m0, s46, {BS[BSL[st]] + 4096*i}\nbuffer_load_dwordx4 v{14+i}, s[32:35], s23 offen lds")
        e(f"{L('b%d' % nb_[0])}:")

    e("s_barrier\ns_barrier")
    e(f"s_cmp_lg_u32 s3, 3\ns_cbranch_scc1 {L('nwe')}\ns_cmp_ge_u32 s2, 224\ns_cbranch_scc1 {L('nwe')}")
    e("s_mul_i32 s23, s2, 5120\ns_add_u32 s44, s23, 4096\ns_waitcnt vmcnt(1)")
    for j in range(5):
        e(f"ds_read_b64_tr_b16 v[{32+4*j}:{33+4*j}], v29 offset:{32*j}\nds_read_b64_tr_b16 v[{34+4*j}:{35+4*j}], v29 offset:{2560+32*j}")
    for j in range(5):
        e(f"s_waitcnt lgkmcnt({2*(4-j)})\nbuffer_store_dwordx4 v[{32+4*j}:{35+4*j}], v5, s[28:31], s{23 if j < 4 else 44} offen offset:{1024*(j % 4)}")
    e(f"{L('nwe')}:")
    e("s_barrier")
    for st in range(NB1):
        bdma(st)
    e("s_barrier")
    for st in range(NB1, 6):
        bdma(st)
    e("s_barrier")

    def adma(st):
        e(f"s_add_u32 s23, s50, {st*128}\ns_add_u32 m0, s20, {(st % NA)*16384}")
        for i in range(4):
            e(f"buffer_load_dwordx4 v{10+i}, s[24:27], s23 offen offset:{1024*i} sc1 lds")

    q = []
    for st in range(NA - 1):
        adma(st)
        q += [st] * 4
    for st in range(10):
        e(f"s_waitcnt vmcnt({len(q) - 1 - max(i for i, t in enumerate(q) if t == st)})\ns_barrier")
        if st + NA - 1 < 10:
            adma(st + NA - 1)
            q += [st + NA - 1] * 4
        if 1 <= st <= 4:
            bdma(st + 5)
            q += [st + 5] * 3
        if st == PFST:
            e("s_mov_b32 exec_hi, 0\nbuffer_load_dword v20, v23, s[40:43], s51 offen\ns_mov_b32 exec_hi, -1")
            q.append("pf")
            code_srd(k, 36, "p4_kernel", "p2_tab-p4_kernel")
            e("s_mul_i32 s23, s3, 3072")
            for i in range(3):
                e(f"buffer_load_dword v21, v5, s[36:39], s23 offen offset:{1024*i}")
            q += ["pf"] * 3
    e(f"{L('end')}:")
    e("s_endpgm")
    return k
```

```python
import sys
import k1, k2, k3, k4, k5, k45, k345, os

HEADER = open("adaLN_cond__spectral_fnet__mixer_gmlp__prompt.s.ref").read().split("; Override launch")[0]


def make(diag=False):
    if os.environ.get("F123", "1") == "1":
        import k123
        k45.KIDX = 1
        ks = [k123.build(diag), k45.build(diag)]
    elif os.environ.get("F345", "0") == "1":
        ks = [k1.build(diag), k2.build(diag), k345.build(diag)]
    elif os.environ.get("F45", "1") == "1":
        ks = [k1.build(diag), k2.build(diag), k3.build(diag), k45.build(diag)]
    else:
        ks = [k1.build(diag), k2.build(diag), k3.build(diag), k4.build(diag), k5.build(diag)]
    out = HEADER + "\n".join(k.launch_line() for k in ks) + "\n"
    out += '.amdgcn_target "amdgcn-amd-amdhsa--gfx950"\n.text\n'
    out += "\n".join(k.text() for k in ks) + "\n"
    out += k2.tables() + "\ncode_end:\n" + '.section .rodata,"a"\n' + "".join(k.desc() for k in ks)
    return out, ks


if __name__ == "__main__":
    diag = "dbg" if "dbg" in sys.argv else ("diag" in sys.argv)
    out, ks = make(diag)
    path = sys.argv[1]
    open(path, "w").write(out)
```
